```python
import torch

def _softmax(x, axis=-1):
    return torch.softmax(x, dim=axis)

def _gelu(x):
    return torch.nn.functional.gelu(x, approximate='tanh')

def _silu(x):
    return torch.nn.functional.silu(x)

def _sigmoid(x):
    return torch.sigmoid(x)

def _layernorm(x, axis=-1, eps=1e-05):
    m = x.mean(dim=axis, keepdim=True)
    v = x.var(dim=axis, keepdim=True, unbiased=False)
    return (x - m) / torch.sqrt(v + eps)

def _scatter_add(tgt, idx, src, axis=0):
    return tgt.clone().index_add_(axis, idx, src)

def _segment_sum(src, seg, n):
    out = torch.zeros((n,) + src.shape[1:], dtype=src.dtype)
    return out.index_add_(0, seg, src)

def _pad(x, pw):
    flat = tuple((v for pair in reversed(pw) for v in pair))
    return torch.nn.functional.pad(x, flat)
kernel_name = 'parallel_sum__spectral_fnet__mixer_gmlp__prompt'

def setup_inputs():

    _w = lambda a: (lambda t: t.to(torch.bfloat16) if t.is_floating_point() else t)(torch.as_tensor(a))

    def _A_setup():
        B, S, D = (1, 2048, 512)
        ns = torch.arange(S)[:, None] * torch.arange(S)[None, :]
        nd = torch.arange(D)[:, None] * torch.arange(D)[None, :]
        Ws_re = torch.cos(-2.0 * torch.pi * ns / S).to(float)
        Ws_im = torch.sin(-2.0 * torch.pi * ns / S).to(float)
        Wd_re = torch.cos(-2.0 * torch.pi * nd / D).to(float)
        Wd_im = torch.sin(-2.0 * torch.pi * nd / D).to(float)
        return {'x': _w((lambda *s: torch.randn(*s, dtype=torch.bfloat16) * 0.05)(B, S, D)), 'dft_seq_re': _w(Ws_re), 'dft_seq_im': _w(Ws_im), 'dft_hid_re': _w(Wd_re), 'dft_hid_im': _w(Wd_im)}
    _A_in = _A_setup()

    def _B_setup():
        B, S, D, F = (1, 2048, 512, 1792)
        Fh = F // 2
        return {'x': _w((lambda *s: torch.randn(*s, dtype=torch.bfloat16) * 0.05)(B, S, D)), 'w_in': _w((lambda *s: torch.randn(*s, dtype=torch.bfloat16) * 0.8)(D, 2 * Fh)), 'w_sp': _w(0.01 * (lambda *s: torch.randn(*s, dtype=torch.bfloat16) * 0.8)(S, S)), 'b_sp': _w(1.0 + 0.01 * (lambda *s: torch.randn(*s, dtype=torch.bfloat16) * 0.8)(S)), 'w_out': _w((lambda *s: torch.randn(*s, dtype=torch.bfloat16) * 0.8)(Fh, D))}
    _B_in = _B_setup()
    return {'A_x': _A_in['x'], 'A_dft_seq_re': _A_in['dft_seq_re'], 'A_dft_seq_im': _A_in['dft_seq_im'], 'A_dft_hid_re': _A_in['dft_hid_re'], 'A_dft_hid_im': _A_in['dft_hid_im'], 'B_x': _B_in['x'], 'B_w_in': _B_in['w_in'], 'B_w_sp': _B_in['w_sp'], 'B_b_sp': _B_in['b_sp'], 'B_w_out': _B_in['w_out']}

def reference(A_x, A_dft_seq_re, A_dft_seq_im, A_dft_hid_re, A_dft_hid_im, B_x, B_w_in, B_w_sp, B_b_sp, B_w_out):

    def _A_ref(x, dft_seq_re, dft_seq_im, dft_hid_re, dft_hid_im):
        a = torch.einsum('bsd,ed->bse', x, dft_hid_re)
        b = torch.einsum('bsd,ed->bse', x, dft_hid_im)
        y = torch.einsum('ts,bse->bte', dft_seq_re, a) - torch.einsum('ts,bse->bte', dft_seq_im, b)
        return y

    def _B_ref(x, w_in, w_sp, b_sp, w_out):
        B, S, D = x.shape
        F = w_in.shape[-1]
        Fh = F // 2
        z = _gelu(torch.einsum('bsd,df->bsf', x, w_in))
        z1 = z[..., :Fh].clone()
        z2 = _layernorm(z[..., Fh:], axis=-1)
        g = torch.einsum('ts,bsf->btf', w_sp, z2) + b_sp[None, :, None]
        return torch.einsum('bsf,fd->bsd', z1 * g, w_out)
    x = A_x
    xn = _layernorm(x, axis=-1)
    return x + _A_ref(xn, A_dft_seq_re, A_dft_seq_im, A_dft_hid_re, A_dft_hid_im) + _B_ref(xn, B_w_in, B_w_sp, B_b_sp, B_w_out)
```

```python
class Asm:
    def __init__(self):
        self.lines = []
        self._lbl = 0

    def __call__(self, s, *more):
        for x in (s,) + more:
            for ln in x.split("\n"):
                ln = ln.rstrip()
                if ln.strip():
                    self.lines.append("    " + ln.strip() if not ln.strip().endswith(":") else ln.strip())

    def raw(self, s):
        self.lines.append(s)

    def label(self, name):
        self.lines.append(name + ":")

    def newlabel(self, prefix="L"):
        self._lbl += 1
        return f"{prefix}_{self._lbl}"

    def comment(self, s):
        self.lines.append("    ; " + s)

    def text(self):
        return "\n".join(self.lines) + "\n"


def v(n, cnt=1):
    return f"v{n}" if cnt == 1 else f"v[{n}:{n+cnt-1}]"


def s(n, cnt=1):
    return f"s{n}" if cnt == 1 else f"s[{n}:{n+cnt-1}]"


def a(n, cnt=1):
    return f"a{n}" if cnt == 1 else f"a[{n}:{n+cnt-1}]"


def kernel_header(A, name):
    A.raw(f".globl {name}")
    A.raw(".p2align 8")
    A.raw(f".type {name},@function")
    A.label(name)


def kernel_desc(name, vgpr, sgpr, accum=None):
    if accum is None:
        accum = (vgpr + 3) // 4 * 4
    return f""".p2align 6
.amdhsa_kernel {name}
  .amdhsa_next_free_vgpr {vgpr}
  .amdhsa_next_free_sgpr {sgpr}
  .amdhsa_accum_offset {accum}
  .amdhsa_group_segment_fixed_size 0
  .amdhsa_kernarg_size 104
  .amdhsa_user_sgpr_count 2
  .amdhsa_user_sgpr_kernarg_segment_ptr 1
  .amdhsa_system_sgpr_workgroup_id_x 1
.end_amdhsa_kernel
"""


def srd(A, d, base_lo, base_hi, nbytes):
    A(f"s_mov_b32 s{d}, {base_lo}")
    A(f"s_and_b32 s{d+1}, {base_hi}, 0xffff")
    A(f"s_mov_b32 s{d+2}, {nbytes}")
    A(f"s_mov_b32 s{d+3}, 0x00020000")
```

```python
import sys
from asmlib import *

HEADER = open("parallel_sum__spectral_fnet__mixer_gmlp__prompt.s.ref").read().split("; Override launch")[0]

def build(kernels, path):
    A = Asm()
    infos = []
    for fn, kw in kernels:
        infos.append(fn(A, **kw))
    import pfpads
    A.lines = pfpads.apply(A.lines, infos[-1]['name'], verbose=True, enable=infos[-1].get('pf', True))
    out = HEADER
    for k in infos:
        out += f"; @launch kernel={k['name']} grid=({k['grid']},1,1) block=({k['block']},1,1) lds={k['lds']}\n"
    out += '.amdgcn_target "amdgcn-amd-amdhsa--gfx950"\n.text\n'
    out += A.text()
    out += '.section .rodata,"a"\n'
    seen = set()
    for k in infos:
        if k['name'] in seen: continue
        seen.add(k['name'])
        out += kernel_desc(k['name'], k['vgpr'], k['sgpr'], k.get('accum'))
    open(path, "w").write(out)
    return infos
```

```python
from asmlib import *
from layout import *


def red16(A, r, tmp=None):
    for ctl in ("quad_perm:[1,0,3,2]", "quad_perm:[2,3,0,1]", "row_half_mirror", "row_mirror"):
        for x in r:
            A(f"v_add_f32_dpp v{x}, v{x}, v{x} {ctl} row_mask:0xf bank_mask:0xf")
        if len(r) < 3:
            A("s_nop 1")


def red64(A, x):
    red16(A, [x])
    A("s_nop 1")
    A(f"v_readlane_b32 s30, v{x}, 0")
    A(f"v_readlane_b32 s31, v{x}, 16")
    A(f"v_readlane_b32 s32, v{x}, 32")
    A(f"v_readlane_b32 s33, v{x}, 48")
    A("s_nop 3")
    A(f"v_mov_b32 v{x}, s30")
    A(f"v_add_f32 v{x}, s31, v{x}")
    A(f"v_add_f32 v{x}, s32, v{x}")
    A(f"v_add_f32 v{x}, s33, v{x}")


def gen_k0(A, name="k0_kernel"):
    kernel_header(A, name)
    L_exit = name + "_exit"
    A("s_cmp_ge_u32 s2, 256")
    A(f"s_cbranch_scc1 {L_exit}")
    A("s_load_dwordx2 s[4:5], s[0:1], 0")
    A("s_load_dwordx2 s[8:9], s[0:1], 96")
    A("v_lshlrev_b32 v1, 4, v0")
    A("s_lshl_b32 s3, s2, 13")
    A("s_waitcnt lgkmcnt(0)")
    srd(A, 20, "s4", "s5", 2048 * 1024)
    srd(A, 24, "s8", "s9", 2048 * 1024)
    A("buffer_load_dwordx4 v[4:7], v1, s[20:23], s3 offen")
    A("s_waitcnt vmcnt(0)")
    for d in range(4):
        A(f"v_lshlrev_b32 v{8+2*d}, 16, v{4+d}")
        A(f"v_and_b32 v{9+2*d}, 0xffff0000, v{4+d}")
    A("v_add_f32 v16, v8, v9")
    for i in range(10, 16):
        A(f"v_add_f32 v16, v16, v{i}")
    A("s_nop 1")
    red64(A, 16)
    A("v_mul_f32 v16, 0x3b000000, v16")
    for i in range(8, 16):
        A(f"v_sub_f32 v{i}, v{i}, v16")
    A("v_mul_f32 v17, v8, v8")
    for i in range(9, 16):
        A(f"v_fmac_f32 v17, v{i}, v{i}")
    A("s_nop 1")
    red64(A, 17)
    A("v_mov_b32 v18, 0x3727c5ac")
    A("v_fmac_f32 v18, 0x3b000000, v17")
    A("v_rsq_f32 v18, v18")
    A("s_nop 1")
    for i in range(8, 16):
        A(f"v_mul_f32 v{i}, v{i}, v18")
    for d in range(4):
        A(f"v_cvt_pk_bf16_f32 v{4+d}, v{8+2*d}, v{9+2*d}")
    A("buffer_store_dwordx4 v[4:7], v1, s[24:27], s3 offen")
    A.label(L_exit)
    A("s_endpgm")
    return dict(name=name, vgpr=32, sgpr=40, grid=256, block=512, lds=0)


def gen_k15(A, name="k15_kernel"):
    kernel_header(A, name)
    L_exit = name + "_exit"
    A("s_cmp_ge_u32 s2, 64")
    A(f"s_cbranch_scc1 {L_exit}")
    A("s_load_dwordx2 s[8:9], s[0:1], 96")
    A("v_lshlrev_b32 v1, 4, v0")
    A("s_lshl_b32 s3, s2, 13")
    A("s_waitcnt lgkmcnt(0)")
    A(f"s_add_u32 s10, s8, {WS_ZB}")
    A("s_addc_u32 s11, s9, 0")
    srd(A, 20, "s10", "s11", 2048 * 896 * 2)
    A(f"s_add_u32 s10, s8, {WS_Z2}")
    A("s_addc_u32 s11, s9, 0")
    srd(A, 24, "s10", "s11", 2048 * 896 * 2)
    for nt in range(7):
        A(f"s_add_u32 s{40+nt}, s3, {nt*524288}")
        A(f"buffer_load_dwordx4 {v(8+4*nt,4)}, v1, s[20:23], s{40+nt} offen")
    A("s_waitcnt vmcnt(0)")
    F = 40
    for nt in range(7):
        for d in range(4):
            A(f"v_lshlrev_b32 v{F+nt*8+2*d}, 16, v{8+4*nt+d}")
            A(f"v_and_b32 v{F+nt*8+2*d+1}, 0xffff0000, v{8+4*nt+d}")
    S = 100
    for e in range(8):
        A(f"v_add_f32 v{S+e}, v{F+e}, v{F+8+e}")
        for nt in range(2, 7):
            A(f"v_add_f32 v{S+e}, v{S+e}, v{F+nt*8+e}")
        A(f"v_mul_f32 v{S+8+e}, v{F+e}, v{F+e}")
        for nt in range(1, 7):
            A(f"v_fmac_f32 v{S+8+e}, v{F+nt*8+e}, v{F+nt*8+e}")
    red16(A, list(range(S, S + 16)))
    A("v_lshrrev_b32 v2, 4, v0")
    A("v_lshlrev_b32 v2, 6, v2")
    for i in range(4):
        A(f"ds_write_b128 v2, {v(S+4*i,4)} offset:{16*i}")
    A("s_waitcnt lgkmcnt(0)")
    A("s_barrier")
    A("v_bfe_u32 v3, v0, 4, 2")
    A("v_lshlrev_b32 v3, 6, v3")
    T = 120
    for w in range(8):
        for i in range(4):
            A(f"ds_read_b128 {v(T+w*16+4*i,4)}, v3 offset:{w*256+16*i}")
    A("s_waitcnt lgkmcnt(0)")
    for w in range(1, 8):
        for i in range(16):
            A(f"v_add_f32 v{T+i}, v{T+i}, v{T+w*16+i}")
    inv = "0x3a924925"
    for e in range(8):
        A(f"v_mul_f32 v{T+e}, {inv}, v{T+e}")
        A(f"v_mul_f32 v{T+8+e}, {inv}, v{T+8+e}")
        A(f"v_fma_f32 v{T+8+e}, -v{T+e}, v{T+e}, v{T+8+e}")
        A(f"v_add_f32 v{T+8+e}, 0x3727c5ac, v{T+8+e}")
        A(f"v_rsq_f32 v{T+8+e}, v{T+8+e}")
    A("s_nop 1")
    for nt in range(7):
        for e in range(8):
            A(f"v_sub_f32 v{F+nt*8+e}, v{F+nt*8+e}, v{T+e}")
            A(f"v_mul_f32 v{F+nt*8+e}, v{F+nt*8+e}, v{T+8+e}")
        for d in range(4):
            A(f"v_cvt_pk_bf16_f32 v{8+4*nt+d}, v{F+nt*8+2*d}, v{F+nt*8+2*d+1}")
        A(f"buffer_store_dwordx4 {v(8+4*nt,4)}, v1, s[24:27], s{40+nt} offen")
    A.label(L_exit)
    A("s_endpgm")
    return dict(name=name, vgpr=248, sgpr=56, grid=64, block=512, lds=2048)
```

```python
from asmlib import *
from layout import *
import struct

def f32(x):
    return hex(struct.unpack('I', struct.pack('f', x))[0])

SLOT = 38912
NS = 4
NST = 8
C0 = -2.0 * 0.7978845608028654 * 1.4426950408889634
C1 = C0 * 0.044715


def gelu_pairs(A, regs, tmp, sc):
    n = len(regs)
    for i, r in enumerate(regs):
        A(f"v_pk_mul_f32 {v(tmp+2*i,2)}, {v(r,2)}, {v(r,2)}")
    for i, r in enumerate(regs):
        A(f"v_pk_fma_f32 {v(tmp+2*i,2)}, {v(tmp+2*i,2)}, {s(sc,2)}, {s(sc+2,2)}")
    for i, r in enumerate(regs):
        A(f"v_pk_mul_f32 {v(tmp+2*i,2)}, {v(tmp+2*i,2)}, {v(r,2)}")
    for i, r in enumerate(regs):
        A(f"v_exp_f32 v{tmp+2*i}, v{tmp+2*i}")
        A(f"v_exp_f32 v{tmp+2*i+1}, v{tmp+2*i+1}")
    for i, r in enumerate(regs):
        A(f"v_pk_add_f32 {v(tmp+2*i,2)}, {v(tmp+2*i,2)}, 1.0 op_sel_hi:[1,0]")
    for i, r in enumerate(regs):
        A(f"v_rcp_f32 v{tmp+2*i}, v{tmp+2*i}")
        A(f"v_rcp_f32 v{tmp+2*i+1}, v{tmp+2*i+1}")
    for i, r in enumerate(regs):
        A(f"v_pk_mul_f32 {v(r,2)}, {v(tmp+2*i,2)}, {v(r,2)}")


def gen_s1(A, name="s1_kernel", src_xn=True, prio_loader=0):
    kernel_header(A, name)
    L_exit = name + "_exit"
    L_loader = name + "_loader"
    A("s_cmp_ge_u32 s2, 256")
    A(f"s_cbranch_scc1 {L_exit}")
    A("s_load_dwordx2 s[4:5], s[0:1], 0")
    A("s_load_dwordx4 s[8:11], s[0:1], 24")
    A("s_load_dwordx2 s[6:7], s[0:1], 48")
    A("s_load_dwordx2 s[12:13], s[0:1], 96")
    A("v_lshrrev_b32 v2, 6, v0")
    A("v_and_b32 v1, 63, v0")
    A("s_lshr_b32 s14, s2, 4")
    A("v_readfirstlane_b32 s19, v2")
    A("s_and_b32 s15, s2, 15")
    A("s_cmp_ge_u32 s15, 14")
    A("s_cselect_b32 s18, 1, 0")
    A("s_cmp_ge_u32 s15, 7")
    A("s_cselect_b32 s16, 1, 0")
    A("s_cselect_b32 s17, 7, 0")
    A("s_sub_u32 s17, s15, s17")
    A("s_mul_i32 s17, s17, 3")
    A("s_cmp_eq_u32 s15, 14")
    A("s_cselect_b32 s16, 0, s16")
    A("s_cmp_eq_u32 s18, 1")
    A("s_cselect_b32 s17, 21, s17")
    A("s_cmp_ge_u32 s19, 4")
    A(f"s_cbranch_scc1 {L_loader}")

    A("s_and_b32 s47, s19, 1")
    A("s_lshr_b32 s48, s19, 1")
    A("v_and_b32 v26, 15, v1")
    A("v_lshrrev_b32 v27, 4, v1")
    A("v_lshrrev_b32 v28, 2, v26")
    A("v_and_b32 v29, 3, v26")
    A("v_lshl_add_u32 v28, v28, 3, v29")
    A("s_lshl_b32 s42, s47, 6")
    A("v_add_u32 v28, s42, v28")
    A("v_lshlrev_b32 v28, 7, v28")
    A("v_bfe_u32 v29, v26, 1, 1")
    A("v_bfe_u32 v30, v26, 3, 1")
    A("v_lshl_or_b32 v29, v30, 1, v29")
    A("v_bfe_u32 v30, v26, 2, 1")
    A("v_lshl_or_b32 v29, v30, 2, v29")
    A("v_xor_b32 v29, v29, v27")
    A("v_lshl_add_u32 v2, v29, 4, v28")
    A("v_xor_b32 v3, 32, v2")
    A("v_add_u32 v3, 512, v3")
    A("v_xor_b32 v4, 64, v2")
    A("v_xor_b32 v5, 64, v3")
    A("v_bfe_u32 v29, v26, 1, 3")
    A("v_xor_b32 v29, v29, v27")
    A("v_lshlrev_b32 v28, 7, v26")
    A("v_lshl_add_u32 v6, v29, 4, v28")
    A("s_mov_b32 s42, 32768")
    A(f"s_mov_b32 s58, {SLOT}")
    A("s_cmp_eq_u32 s18, 1")
    A("s_cselect_b32 s42, 16384, s42")
    A("v_add_u32 v6, s42, v6")
    A("v_xor_b32 v7, 32, v6")
    A("v_xor_b32 v8, 64, v6")
    A("v_xor_b32 v9, 64, v7")
    A("v_lshrrev_b32 v28, 2, v26")
    A("v_lshl_add_u32 v28, v27, 3, v28")
    A("v_lshlrev_b32 v28, 7, v28")
    A("v_and_b32 v29, 3, v26")
    A("v_lshl_add_u32 v28, v29, 3, v28")
    A("s_lshl_b32 s42, s48, 13")
    A("s_add_u32 s42, s42, 16384")
    A("v_add_u32 v28, s42, v28")
    A("v_bfe_u32 v29, v26, 3, 1")
    A("v_and_b32 v30, 1, v27")
    A("v_lshl_or_b32 v29, v30, 1, v29")
    A("v_lshl_add_u32 v10, v29, 5, v28")
    for tt in range(1, 4):
        A(f"v_xor_b32 v{10+tt}, {tt*32}, v10")
    A("v_lshlrev_b32 v14, 4, v1")
    FR = 32
    FS = 40
    ACC = 112
    for i in range(96):
        A(f"v_mov_b32 v{ACC+i}, 0")
    A("s_waitcnt lgkmcnt(0)")
    A(f"s_mov_b32 s42, {WS_A}")
    A("s_cmp_eq_u32 s16, 1")
    A(f"s_cselect_b32 s42, {WS_B}, s42")
    A("s_add_u32 s44, s12, s42")
    A("s_addc_u32 s45, s13, 0")
    srd(A, 20, "s44", "s45", 2048 * 512 * 2)
    A(f"s_mov_b32 s42, {WS_ZB}")
    A("s_cmp_eq_u32 s48, 1")
    A(f"s_cselect_b32 s42, {WS_Z1}, s42")
    A("s_add_u32 s44, s12, s42")
    A("s_addc_u32 s45, s13, 0")
    srd(A, 24, "s44", "s45", 2048 * 896 * 2)
    A("s_lshl_b32 s49, s14, 1")
    A("s_add_u32 s49, s49, s47")
    A("s_lshl_b32 s49, s49, 14")
    A("s_mov_b32 s54, 0")
    A(f"s_mov_b32 s53, {NST}")
    A("s_lshl_b32 s42, s18, 1")
    A("s_add_u32 s42, s42, s48")
    for ty in (1, 2, 3):
        A(f"s_cmp_eq_u32 s42, {ty}")
        A(f"s_cbranch_scc1 {name}_ty{ty}")

    def body(ty):
        ztype = ty < 2
        abt = {0: [0], 1: [1, 2], 2: [0, 1, 2, 3, 4], 3: [5, 6, 7, 8, 9, 10]}[ty]
        nz = 4 if ztype else 0
        nw = nz + len(abt)
        A.label(f"{name}_ty{ty}")
        def rd(sub, item):
            f = FR + FS * sub
            k, i = item
            if k == "x":
                p, T = i >> 1, i & 1
                A(f"ds_read_b128 {v(f+4*i,4)}, v{2+2*sub+T} offset:{p*4096}")
            elif k == "t0":
                A(f"ds_read_b64_tr_b16 {v(f+16+4*i,2)}, v{10+i} offset:{sub*4096}")
            elif k == "t1":
                A(f"ds_read_b64_tr_b16 {v(f+16+4*i+2,2)}, v{10+i} offset:{sub*4096+512}")
            else:
                t = abt[i]
                A(f"ds_read_b128 {v(f+16+4*(nz+i),4)}, v{6+2*sub+(t&1)} offset:{t*2048}")
        reads = []
        def wreads(w):
            return [("t0", w), ("t1", w)] if w < nz else [("d", w - nz)]
        reads += wreads(0) + [("x", 0), ("x", 1), ("x", 2), ("x", 3)]
        for w in range(1, nw):
            reads += wreads(w)
        def accof(w, xt):
            if ty == 1 and w < 4:
                return ACC + (xt * 4 + w) * 4
            return ACC + (w * 4 + xt) * 4
        def mf(sub, idx):
            f = FR + FS * sub
            w, xt = idx >> 2, idx & 3
            ac = accof(w, xt)
            xa, wa = v(f + 4 * xt, 4), v(f + 16 + 4 * w, 4)
            if ty == 1 and w < 4:
                A(f"v_mfma_f32_16x16x32_bf16 {v(ac,4)}, {wa}, {xa}, {v(ac,4)}")
            else:
                A(f"v_mfma_f32_16x16x32_bf16 {v(ac,4)}, {xa}, {wa}, {v(ac,4)}")
        nm = nw * 4
        addr = [2, 3, 4, 5, 6, 7, 8, 9] + ([10, 11, 12, 13] if ztype else [])
        if ty == 0:
            addr = [2, 3, 4, 5, 6, 8, 10, 11, 12, 13]
        A("s_barrier")
        for it in reads:
            rd(0, it)
        L = f"{name}_loop{ty}"
        A.label(L)
        A("s_waitcnt lgkmcnt(0)")
        nr = len(reads)
        ai = 0
        for i in range(nm):
            mf(0, i)
            if i < nr:
                rd(1, reads[i])
            if i == 0:
                A("s_add_u32 s54, s54, 1")
                A(f"s_cmp_eq_u32 s54, {NS}")
                A("s_cselect_b32 s54, 0, s54")
                A(f"s_cselect_b32 s55, {-(NS-1)*SLOT & 0xffffffff}, s58")
            if i >= nr - 1:
                k = (len(addr) + (nm - nr)) // (nm - nr + 1)
                for _ in range(k):
                    if ai < len(addr):
                        A(f"v_add_u32 v{addr[ai]}, s55, v{addr[ai]}")
                        ai += 1
        assert ai == len(addr)
        A("s_waitcnt lgkmcnt(0)")
        mf(1, 0)
        mf(1, 1)
        A("s_barrier")
        for i in range(2, nm):
            mf(1, i)
            if i - 2 < nr:
                rd(0, reads[i - 2])
        A("s_sub_u32 s53, s53, 1")
        A("s_cmp_lg_u32 s53, 0")
        A(f"s_cbranch_scc1 {L}")
        A("s_waitcnt lgkmcnt(0)")
        T = FR
        def ab_epi():
            for i, t in enumerate(abt):
                A(f"s_add_u32 s42, s17, {t}")
                A("s_lshr_b32 s43, s42, 3")
                A("s_lshl_b32 s43, s43, 19")
                A("s_and_b32 s42, s42, 7")
                A("s_lshl_b32 s42, s42, 10")
                A("s_add_u32 s42, s42, s43")
                A("s_add_u32 s42, s42, s49")
                A("s_add_u32 s43, s42, 8192")
                for p in range(2):
                    ac = accof(nz + i, 2 * p)
                    t0 = T + ((i * 2 + p) % 8) * 4
                    for d in range(4):
                        A(f"v_cvt_pk_bf16_f32 v{t0+d}, v{ac+2*d}, v{ac+2*d+1}")
                    A(f"buffer_store_dwordx4 {v(t0,4)}, v14, s[20:23], s{42+p} offen")
        if not ztype:
            A("s_nop 7")
            ab_epi()
            A("s_endpgm")
            return
        A(f"v_mov_b32 v16, {f32(C1)}")
        A(f"v_mov_b32 v17, {f32(C0)}")
        if ty == 0:
            A("s_lshr_b32 s56, s15, 1")
            A("s_lshl_b32 s56, s56, 19")
            A("s_and_b32 s57, s15, 1")
            A("s_lshl_b32 s57, s57, 12")
            A("s_add_u32 s56, s56, s57")
            A("s_add_u32 s56, s56, s49")
            A("s_add_u32 s57, s56, 8192")
            vz = 14
        else:
            A("v_bfe_u32 v18, v26, 3, 1")
            A("v_mul_u32_u24 v18, 28672, v18")
            A("v_lshl_add_u32 v18, v27, 8, v18")
            A("v_bfe_u32 v19, v26, 2, 1")
            A("v_lshl_add_u32 v18, v19, 7, v18")
            A("v_and_b32 v19, 3, v26")
            A("v_lshl_add_u32 v18, v19, 4, v18")
            A("s_lshl_b32 s56, s14, 1")
            A("s_add_u32 s56, s56, s47")
            A("s_mul_i32 s56, s56, 112")
            A("s_lshl_b32 s57, s15, 1")
            A("s_add_u32 s56, s56, s57")
            A("s_lshl_b32 s56, s56, 10")
            A("s_add_u32 s57, s56, 57344")
            vz = 18
        TT = 64
        for g in range(8):
            ac = ACC + g * 8
            pr = [ac, ac + 2, ac + 4, ac + 6]
            tm = TT + (g & 1) * 8
            for i, r in enumerate(pr):
                A(f"v_pk_mul_f32 {v(tm+2*i,2)}, {v(r,2)}, {v(r,2)}")
            for i, r in enumerate(pr):
                A(f"v_pk_fma_f32 {v(tm+2*i,2)}, {v(tm+2*i,2)}, v[16:17], v[16:17] op_sel:[0,0,1] op_sel_hi:[1,0,1]")
            for i, r in enumerate(pr):
                A(f"v_pk_mul_f32 {v(tm+2*i,2)}, {v(tm+2*i,2)}, {v(r,2)}")
            for i in range(8):
                A(f"v_exp_f32 v{tm+i}, v{tm+i}")
            for i, r in enumerate(pr):
                A(f"v_pk_add_f32 {v(tm+2*i,2)}, {v(tm+2*i,2)}, 1.0 op_sel_hi:[1,0]")
            for i in range(8):
                A(f"v_rcp_f32 v{tm+i}, v{tm+i}")
            for i, r in enumerate(pr):
                A(f"v_pk_mul_f32 {v(r,2)}, {v(tm+2*i,2)}, {v(r,2)}")
            o = 80 + g * 4
            for d in range(4):
                A(f"v_cvt_pk_bf16_f32 v{o+d}, v{ac+2*d}, v{ac+2*d+1}")
            if ty == 0:
                tt, p = g >> 1, g & 1
                A(f"buffer_store_dwordx4 {v(o,4)}, v{vz}, s[24:27], s{56+p} offen offset:{tt*1024}")
            else:
                xt, e = g >> 1, g & 1
                p, Tt = xt >> 1, xt & 1
                A(f"buffer_store_dwordx4 {v(o,4)}, v{vz}, s[24:27], s{56+p} offen offset:{e*1024 + Tt*64}")
        ab_epi()
        A("s_endpgm")

    for ty in range(4):
        body(ty)

    A.label(L_loader)
    if prio_loader:
        A(f"s_setprio {prio_loader}")
    A("s_sub_u32 s47, s19, 4")
    A("v_lshrrev_b32 v4, 3, v1")
    A("s_lshl_b32 s42, s47, 3")
    A("v_add_u32 v4, s42, v4")
    A("v_and_b32 v5, 7, v1")
    A("v_lshrrev_b32 v6, 4, v1")
    A("s_and_b32 s42, s47, 1")
    A("s_lshl_b32 s42, s42, 2")
    A("s_and_b32 s43, s47, 2")
    A("s_or_b32 s42, s42, s43")
    A("v_xor_b32 v6, s42, v6")
    A("v_xor_b32 v6, v6, v5")
    A("v_lshlrev_b32 v6, 4, v6")
    A("v_lshl_add_u32 v2, v4, 10, v6")
    A("v_bfe_u32 v6, v1, 4, 1")
    A("s_and_b32 s42, s47, 1")
    A("s_lshl_b32 s42, s42, 1")
    A("v_or_b32 v6, s42, v6")
    A("v_lshlrev_b32 v6, 1, v6")
    A("v_xor_b32 v6, v6, v5")
    A("v_lshlrev_b32 v6, 4, v6")
    A("v_mul_u32_u24 v3, 3584, v4")
    A("v_add_u32 v3, v3, v6")
    A("s_waitcnt lgkmcnt(0)")
    if src_xn:
        srd(A, 20, "s12", "s13", 2048 * 1024)
    else:
        srd(A, 20, "s4", "s5", 2048 * 1024)
    A("s_cmp_eq_u32 s16, 1")
    A("s_cselect_b64 s[44:45], s[10:11], s[8:9]")
    srd(A, 24, "s44", "s45", 512 * 1024)
    srd(A, 28, "s6", "s7", 512 * 3584)
    A("s_lshl_b32 s50, s14, 17")
    A("s_lshl_b32 s51, s17, 14")
    A("s_lshl_b32 s52, s15, 7")
    A("s_lshl_b32 s56, s47, 10")
    A("s_mov_b32 s53, 0")
    A("s_cmp_eq_u32 s18, 1")
    A(f"s_cbranch_scc1 {name}_ldab")

    def loader(ztype):
        tag = "z" if ztype else "ab"
        L = f"{name}_ll{tag}"
        A.label(L)
        for j in range(4):
            A(f"s_add_u32 m0, s56, {j*4096}")
            A(f"s_add_u32 s42, s50, {j*32768}")
            A("buffer_load_dwordx4 v2, s[20:23], s42 offen lds")
            if ztype:
                pan, jj = j >> 1, j & 1
                A(f"s_add_u32 m0, s56, {16384 + pan*8192 + jj*4096}")
                A(f"s_add_u32 s42, s52, {jj*32*3584 + (1792 if pan == 0 else 0)}")
                A("buffer_load_dwordx4 v3, s[28:31], s42 offen lds")
            else:
                A(f"s_add_u32 m0, s56, {16384 + j*4096}")
                A(f"s_add_u32 s42, s51, {j*32768}")
                A("buffer_load_dwordx4 v2, s[24:27], s42 offen lds")
        j0 = 0 if ztype else 4
        A(f"s_add_u32 m0, s56, {32768}")
        A(f"s_add_u32 s42, s51, {j0*32768}")
        A("buffer_load_dwordx4 v2, s[24:27], s42 offen lds")
        A("s_cmp_ge_u32 s47, 2")
        A(f"s_cbranch_scc1 {L}_a")
        A(f"s_add_u32 m0, s56, {32768+4096}")
        A(f"s_add_u32 s42, s51, {(j0+1)*32768}")
        A("buffer_load_dwordx4 v2, s[24:27], s42 offen lds")
        A.label(f"{L}_a")
        A("s_add_u32 s50, s50, 128")
        A("s_add_u32 s51, s51, 128")
        A(f"s_add_u32 s52, s52, {64*3584}")
        A(f"s_add_u32 s56, s56, {SLOT}")
        A(f"s_cmp_ge_u32 s56, {NS*SLOT}")
        A(f"s_cselect_b32 s42, {NS*SLOT}, 0")
        A("s_sub_u32 s56, s56, s42")
        A("s_add_u32 s53, s53, 1")
        A(f"s_cmp_lt_u32 s53, {NS}")
        A(f"s_cbranch_scc1 {L}")
        A(f"s_cmp_gt_u32 s53, {NS}")
        A(f"s_cbranch_scc1 {L}_b")
        waitn(f"{L}_w0", NS - 1)
        A("s_barrier")
        A.label(f"{L}_b")
        waitn(f"{L}_w1", NS - 2)
        A("s_barrier")
        A(f"s_cmp_lt_u32 s53, {NST}")
        A(f"s_cbranch_scc1 {L}")
        if ztype:
            A(f"s_branch {name}_ltail")

    def waitn(lbl, n):
        if n == 0:
            A("s_waitcnt vmcnt(0)")
            return
        A("s_cmp_ge_u32 s47, 2")
        A(f"s_cbranch_scc1 {lbl}_9")
        A(f"s_waitcnt vmcnt({10*n})")
        A.label(f"{lbl}_9")
        A(f"s_waitcnt vmcnt({9*n})" if False else f"s_cbranch_scc0 {lbl}_x")
        A(f"s_waitcnt vmcnt({9*n})")
        A.label(f"{lbl}_x")

    loader(True)
    A.label(f"{name}_ldab")
    loader(False)
    A.label(f"{name}_ltail")
    for n in range(NST - NS + 1, NST):
        rem = max(NST - 1 - (n + 1), 0)
        waitn(f"{name}_lt{n}", rem)
        A("s_barrier")
    A.label(L_exit)
    A("s_endpgm")
    return dict(name=name, vgpr=208, sgpr=64, grid=256, block=512, lds=NS * SLOT)
```

```python
from asmlib import *
from layout import *


def gen_s2(A, name="s2_kernel", NS=4, prio_compute=0, prio_loader=0, no_mfma=False, no_reads=False, no_dma=False,
           stamp=False, PFD=0, qaux="", paux="", pfaux="nt"):
    NST = 32
    kernel_header(A, name)
    L_exit = name + "_exit"
    L_loader = name + "_loader"
    L_tr = name + "_tr"
    A(f"s_cmp_ge_u32 s2, 256")
    A(f"s_cbranch_scc1 {L_exit}")
    A("s_load_dwordx4 s[4:7], s[0:1], 8")
    A("s_load_dwordx4 s[8:11], s[0:1], 56")
    A("s_load_dwordx2 s[12:13], s[0:1], 96")
    A("s_load_dwordx2 s[90:91], s[0:1], 72")
    A("v_lshrrev_b32 v2, 6, v0")
    A("v_and_b32 v1, 63, v0")
    A("s_and_b32 s14, s2, 7")
    A("v_readfirstlane_b32 s19, v2")
    A("s_lshr_b32 s15, s2, 3")
    L_g = name + "_dec_g"
    L_dd = name + "_dec_done"
    A("s_cmp_ge_u32 s14, 4")
    A(f"s_cbranch_scc1 {L_g}")
    A("s_lshr_b32 s18, s14, 1")
    A("s_and_b32 s16, s14, 1")
    A("s_lshl_b32 s16, s16, 3")
    A("s_lshr_b32 s17, s15, 2")
    A("s_add_u32 s16, s16, s17")
    A("s_and_b32 s17, s15, 3")
    A("s_mov_b32 s43, 16")
    A("s_lshr_b32 s76, s15, 2")
    A("s_mov_b32 s77, 4")
    A("s_mov_b32 s78, 8")
    A(f"s_branch {L_dd}")
    A.label(L_g)
    A("s_cmp_ge_u32 s15, 28")
    A(f"s_cbranch_scc1 {L_tr}")
    A("s_mov_b32 s18, 2")
    A("s_mul_i32 s16, s15, 37")
    A("s_lshr_b32 s16, s16, 8")
    A("s_mul_i32 s17, s16, 7")
    A("s_sub_u32 s17, s15, s17")
    A("s_mov_b32 s76, s16")
    A("s_mov_b32 s77, 7")
    A("s_mov_b32 s78, 4")
    A("s_sub_u32 s42, s14, 4")
    A("s_lshl_b32 s42, s42, 2")
    A("s_add_u32 s16, s16, s42")
    A("s_mov_b32 s43, 28")
    A.label(L_dd)
    A("s_waitcnt lgkmcnt(0)")
    A("s_cmp_eq_u32 s18, 0")
    A("s_cselect_b64 s[44:45], s[4:5], s[6:7]")
    A("s_cmp_eq_u32 s18, 2")
    A("s_cselect_b64 s[44:45], s[8:9], s[44:45]")
    A("s_lshl_b32 s42, s16, 19")
    A("s_add_u32 s44, s44, s42")
    A("s_addc_u32 s45, s45, 0")
    srd(A, 20, "s44", "s45", 128 * 4096)
    A(f"s_mov_b32 s46, {WS_A}")
    A("s_cmp_eq_u32 s18, 1")
    A(f"s_cselect_b32 s46, {WS_B}, s46")
    A("s_cmp_eq_u32 s18, 2")
    A(f"s_cselect_b32 s46, {WS_Z2}, s46")
    A("s_lshl_b32 s42, s17, 19")
    A("s_add_u32 s46, s46, s42")
    A("s_add_u32 s44, s12, s46")
    A("s_addc_u32 s45, s13, 0")
    srd(A, 24, "s44", "s45", 524288)
    A("s_cmp_ge_u32 s19, 4")
    A(f"s_cbranch_scc1 {L_loader}")

    A(f"s_mov_b32 s46, {WS_YRE}")
    A("s_cmp_eq_u32 s18, 1")
    A(f"s_cselect_b32 s46, {WS_YIM}, s46")
    A("s_cmp_eq_u32 s18, 2")
    A(f"s_cselect_b32 s46, {WS_H}, s46")
    A("s_add_u32 s44, s12, s46")
    A("s_addc_u32 s45, s13, 0")
    srd(A, 28, "s44", "s45", 2048 * 896 * 2)
    A(f"s_add_u32 s44, s12, {WS_Z1}")
    A("s_addc_u32 s45, s13, 0")
    srd(A, 32, "s44", "s45", 2048 * 896 * 2)
    srd(A, 36, "s10", "s11", 4096)
    if prio_compute:
        A(f"s_setprio {prio_compute}")
    if PFD:
        PF0 = NS
        L_pq = name + "_pfq"
        L_pd = name + "_pfd"
        A("s_cmp_lt_u32 s19, 2")
        A(f"s_cbranch_scc1 {L_pq}")
        for i in range(4):
            A(f"s_mov_b32 s{80+i}, s{24+i}")
        A("s_sub_u32 s84, s19, 2")
        A("s_lshl_b32 s84, s84, 13")
        A(f"s_add_u32 s84, s84, {PF0*16384}")
        A("s_mov_b32 s85, 16384")
        A("s_mov_b32 s86, s76")
        A("s_mov_b32 s87, s78")
        A("v_lshlrev_b32 v180, 7, v1")
        A(f"s_branch {L_pd}")
        A.label(L_pq)
        for i in range(4):
            A(f"s_mov_b32 s{80+i}, s{20+i}")
        A(f"s_mov_b32 s84, {PF0*128}")
        A("s_mov_b32 s85, 128")
        A("s_mov_b32 s86, s17")
        A("s_mov_b32 s87, s77")
        A("s_lshl_b32 s42, s19, 6")
        A("v_add_u32 v180, s42, v1")
        A("v_lshlrev_b32 v180, 12, v180")
        A.label(L_pd)
        A(f"s_mov_b32 s89, {32-NS}")

    def pf(tag):
        if not PFD:
            return
        L = f"{name}_pf{tag}"
        A("s_cmp_lg_u32 s86, 0")
        A(f"s_cbranch_scc1 {L}")
        A("s_mov_b32 s86, s87")
        A("s_cmp_le_i32 s89, 0")
        A(f"s_cbranch_scc1 {L}")
        A(f"buffer_load_dword v181, v180, s[80:83], s84 offen {pfaux}")
        A.label(L)
        A("s_sub_u32 s86, s86, 1")
        A("s_sub_u32 s89, s89, 1")
        A("s_add_u32 s84, s84, s85")
    if PFD:
        A(f"s_mov_b32 s53, {PFD - NS}")
        A.label(name + "_pfpro")
        pf("p")
        A("s_sub_u32 s53, s53, 1")
        A("s_cmp_lg_u32 s53, 0")
        A(f"s_cbranch_scc1 {name}_pfpro")
    FR = 16
    ACC = 80
    Z1 = 144
    BSP = 176
    A("s_and_b32 s47, s19, 1")
    A("s_lshr_b32 s48, s19, 1")
    A("s_lshl_b32 s49, s16, 3")
    A("s_lshl_b32 s42, s48, 2")
    A("s_add_u32 s49, s49, s42")
    A("s_mul_i32 s49, s49, s43")
    A("s_lshl_b32 s42, s17, 2")
    A("s_add_u32 s49, s49, s42")
    A("s_lshl_b32 s42, s47, 1")
    A("s_add_u32 s49, s49, s42")
    A("s_lshl_b32 s49, s49, 10")
    A("s_lshl_b32 s42, s43, 10")
    A("s_add_u32 s50, s49, s42")
    A("s_add_u32 s51, s50, s42")
    A("s_add_u32 s52, s51, s42")
    A("v_lshlrev_b32 v14, 4, v1")
    A("v_and_b32 v15, 15, v1")
    L_noz = name + "_noz"
    A("s_cmp_lg_u32 s18, 2")
    A(f"s_cbranch_scc1 {L_noz}")
    for jt in range(4):
        for p in range(2):
            A(f"buffer_load_dwordx4 {v(Z1 + (jt*2+p)*4, 4)}, v14, s[32:35], s{49+jt} offen offset:{p*1024}")
    A("s_lshl_b32 s42, s16, 7")
    A("s_lshl_b32 s54, s48, 6")
    A("s_add_u32 s42, s42, s54")
    A("v_add_u32 v16, s42, v15")
    A("v_lshlrev_b32 v16, 1, v16")
    for jt in range(4):
        A(f"buffer_load_ushort v{BSP+jt}, v16, s[36:39], 0 offen offset:{jt*32}")
    A.label(L_noz)
    A("v_lshrrev_b32 v16, 4, v1")
    A("v_bfe_u32 v17, v1, 1, 3")
    A("v_xor_b32 v16, v16, v17")
    A("s_lshl_b32 s42, s48, 13")
    A("v_lshlrev_b32 v18, 7, v15")
    A("v_add_u32 v18, s42, v18")
    A("v_lshl_add_u32 v2, v16, 4, v18")
    A("v_xor_b32 v3, 64, v2")
    A("s_lshl_b32 s42, s47, 12")
    A("s_add_u32 s42, s42, 16384")
    A("v_add_u32 v4, s42, v14")
    for i in range(3):
        A(f"v_mov_b32 v{8+i}, v{2+i}")
    for i in range(64):
        A(f"v_mov_b32 v{ACC+i}, 0")
    A("s_mov_b32 s54, 0")
    A(f"s_mov_b32 s53, {NST}")

    order = [("P", 0), ("Q", 0), ("Q", 1), ("Q", 2), ("Q", 3), ("P", 1), ("P", 2), ("P", 3)]

    def read(sub, n):
        if no_reads:
            return
        f = FR + 32 * sub
        k, i = order[n]
        if k == "P":
            A(f"ds_read_b128 {v(f+4*i,4)}, v10 offset:{sub*8192 + i*1024}")
        else:
            A(f"ds_read_b128 {v(f+16+4*i,4)}, v{8+sub} offset:{i*2048}")

    def mfma(sub, idx):
        f = FR + 32 * sub
        it, jt = idx >> 2, idx & 3
        acc = ACC + (jt * 4 + it) * 4
        if no_mfma:
            return
        A(f"v_mfma_f32_16x16x32_bf16 {v(acc,4)}, {v(f+4*it,4)}, {v(f+16+4*jt,4)}, {v(acc,4)}")

    if stamp:
        A("s_memtime s[60:61]")
        A("s_memrealtime s[62:63]")
        A("s_waitcnt lgkmcnt(0)")
    A("s_barrier")
    for n in range(8):
        read(0, n)
    L_loop = name + "_cloop"
    A.label(L_loop)
    A("s_waitcnt lgkmcnt(0)")
    for i in range(16):
        mfma(0, i)
        if i < 8:
            read(1, i)
        if i == 8:
            A("s_add_u32 s54, s54, 32768")
            A(f"s_cmp_eq_u32 s54, {NS*32768}")
            A("s_cselect_b32 s54, 0, s54")
        if i == 9:
            pf("m")
        if 10 <= i < 13:
            A(f"v_add_u32 v{8+i-10}, s54, v{2+i-10}")
    A("s_waitcnt lgkmcnt(0)")
    mfma(1, 0)
    mfma(1, 1)
    A("s_barrier")
    for i in range(2, 16):
        mfma(1, i)
        if i - 2 < 8:
            read(0, i - 2)
    A("s_sub_u32 s53, s53, 1")
    A("s_cmp_lg_u32 s53, 0")
    A(f"s_cbranch_scc1 {L_loop}")
    A("s_waitcnt lgkmcnt(0)")
    A("s_nop 15")
    if stamp:
        A("s_memtime s[64:65]")
        A("s_memrealtime s[66:67]")
        A("s_load_dwordx2 s[68:69], s[0:1], 88")
        A("s_waitcnt lgkmcnt(0)")
        A("s_sub_u32 s64, s64, s60")
        A("s_sub_u32 s66, s66, s62")
        srd(A, 72, "s68", "s69", 64)
        A("v_mov_b32 v20, s64")
        A("v_mov_b32 v21, s66")
        A("s_lshl_b32 s70, s2, 3")
        A("s_cmp_eq_u32 s19, 0")
        A("s_cselect_b32 s70, s70, 0x10000")
        A("v_mov_b32 v22, 0")
        A("buffer_store_dwordx2 v[20:21], v22, s[72:75], s70 offen")
        A("s_nop 4")
    L_eg = name + "_epi_g"
    A("s_cmp_eq_u32 s18, 2")
    A(f"s_cbranch_scc1 {L_eg}")
    T = 16
    for jt in range(4):
        for p in range(2):
            acc = ACC + (jt * 4 + 2 * p) * 4
            t = T + (jt * 2 + p) * 4
            for d in range(4):
                A(f"v_cvt_pk_bf16_f32 v{t+d}, v{acc+2*d}, v{acc+2*d+1}")
            A(f"buffer_store_dwordx4 {v(t,4)}, v14, s[28:31], s{49+jt} offen offset:{p*1024}")
    A("s_endpgm")
    A.label(L_eg)
    A("s_waitcnt vmcnt(0)")
    for jt in range(4):
        A(f"v_lshlrev_b32 v{48+2*jt}, 16, v{BSP+jt}")
    U = 56
    for jt in range(4):
        for p in range(2):
            acc = ACC + (jt * 4 + 2 * p) * 4
            z = Z1 + (jt * 2 + p) * 4
            t = T + (jt * 2 + p) * 4
            for d in range(4):
                u = U + d * 2
                A(f"v_lshlrev_b32 v{u}, 16, v{z+d}")
                A(f"v_and_b32 v{u+1}, 0xffff0000, v{z+d}")
                A(f"v_pk_add_f32 {v(acc+2*d,2)}, {v(acc+2*d,2)}, {v(48+2*jt,2)} op_sel_hi:[1,0]")
                A(f"v_pk_mul_f32 {v(acc+2*d,2)}, {v(acc+2*d,2)}, {v(u,2)}")
                A(f"v_cvt_pk_bf16_f32 v{t+d}, v{acc+2*d}, v{acc+2*d+1}")
            A(f"buffer_store_dwordx4 {v(t,4)}, v14, s[28:31], s{49+jt} offen offset:{p*1024}")
    A("s_endpgm")

    A.label(L_loader)
    if prio_loader:
        A(f"s_setprio {prio_loader}")
    A("s_sub_u32 s47, s19, 4")
    A("v_lshrrev_b32 v4, 3, v1")
    A("s_lshl_b32 s42, s47, 3")
    A("v_add_u32 v4, s42, v4")
    A("v_and_b32 v5, 7, v1")
    A("v_lshrrev_b32 v6, 4, v1")
    A("s_and_b32 s42, s47, 1")
    A("s_lshl_b32 s42, s42, 2")
    A("v_or_b32 v7, s42, v6")
    A("v_xor_b32 v7, v7, v5")
    A("v_lshlrev_b32 v7, 4, v7")
    A("v_lshl_add_u32 v2, v4, 12, v7")
    A("v_lshlrev_b32 v3, 4, v1")
    A("s_mov_b32 s54, 0")
    A("s_lshl_b32 s55, s47, 10")
    A("s_lshl_b32 s56, s47, 10")

    def issue():
        for m in range(4):
            A(f"s_add_u32 m0, s56, {m*4096}")
            A(f"s_add_u32 s42, s54, {m*131072}")
            if not no_dma:
                A(f"buffer_load_dwordx4 v2, s[20:23], s42 offen {qaux} lds")
            A(f"s_add_u32 m0, s56, {16384 + m*4096}")
            A(f"s_add_u32 s42, s55, {m*4096}")
            if not no_dma:
                A(f"buffer_load_dwordx4 v3, s[24:27], s42 offen {paux} lds")
        A("s_add_u32 s54, s54, 128")
        A("s_add_u32 s55, s55, 16384")
        A("s_add_u32 s56, s56, 32768")
        A(f"s_cmp_ge_u32 s56, {NS*32768}")
        A(f"s_cselect_b32 s42, {NS*32768}, 0")
        A("s_sub_u32 s56, s56, s42")

    L_pro = name + "_lpro"
    A(f"s_mov_b32 s53, {NS}")
    A.label(L_pro)
    issue()
    A("s_sub_u32 s53, s53, 1")
    A("s_cmp_lg_u32 s53, 0")
    A(f"s_cbranch_scc1 {L_pro}")
    A(f"s_waitcnt vmcnt({8*(NS-1)})")
    A("s_barrier")
    A(f"s_waitcnt vmcnt({8*(NS-2)})")
    A("s_barrier")
    L_ll = name + "_lloop"
    A(f"s_mov_b32 s53, {NST-NS}")
    A.label(L_ll)
    issue()
    A(f"s_waitcnt vmcnt({8*(NS-2)})")
    A("s_barrier")
    A("s_sub_u32 s53, s53, 1")
    A("s_cmp_lg_u32 s53, 0")
    A(f"s_cbranch_scc1 {L_ll}")
    for n in range(NST - NS + 1, NST):
        rem = max(NST - 1 - (n + 1), 0)
        A(f"s_waitcnt vmcnt({8*rem})")
        A("s_barrier")
    A("s_endpgm")

    A.label(L_tr)
    A("s_sub_u32 s16, s15, 28")
    A("s_lshl_b32 s16, s16, 2")
    A("s_sub_u32 s17, s14, 4")
    A("s_add_u32 s16, s16, s17")
    A("s_lshl_b32 s16, s16, 3")
    A("s_add_u32 s16, s16, s19")
    A("s_waitcnt lgkmcnt(0)")
    srd(A, 20, "s90", "s91", 896 * 512 * 2)
    A(f"s_add_u32 s44, s12, {WS_WOT}")
    A("s_addc_u32 s45, s13, 0")
    srd(A, 24, "s44", "s45", 896 * 512 * 2)
    A("v_lshrrev_b32 v4, 3, v1")
    A("v_and_b32 v5, 7, v1")
    A("v_lshrrev_b32 v6, 5, v1")
    A("v_lshlrev_b32 v6, 1, v6")
    A("v_xor_b32 v5, v5, v6")
    A("v_xor_b32 v6, 4, v5")
    A("v_lshlrev_b32 v5, 4, v5")
    A("v_lshlrev_b32 v6, 4, v6")
    A("v_lshl_add_u32 v2, v4, 10, v5")
    A("v_lshl_add_u32 v3, v4, 10, v6")
    A("v_lshrrev_b32 v4, 4, v1")
    A("v_bfe_u32 v5, v1, 2, 2")
    A("v_lshl_add_u32 v5, v4, 2, v5")
    A("v_lshlrev_b32 v5, 7, v5")
    A("s_lshl_b32 s42, s19, 12")
    A("v_add_u32 v5, s42, v5")
    A("v_and_b32 v6, 1, v1")
    A("v_lshl_add_u32 v5, v6, 3, v5")
    A("v_bfe_u32 v6, v1, 1, 1")
    A("v_lshlrev_b32 v7, 1, v4")
    for db in range(4):
        A(f"v_xor_b32 v12, {2*db}, v7")
        A("v_or_b32 v12, v12, v6")
        A(f"v_lshl_add_u32 v{8+db}, v12, 4, v5")
    A("v_lshlrev_b32 v14, 4, v1")
    L_tl = name + "_trloop"
    A.label(L_tl)
    A("s_lshr_b32 s17, s16, 3")
    A("s_and_b32 s18, s16, 7")
    A("s_lshl_b32 s46, s17, 15")
    A("s_lshl_b32 s47, s18, 7")
    A("s_add_u32 s46, s46, s47")
    for m in range(4):
        A(f"s_add_u32 m0, s42, {m*1024}")
        A(f"s_add_u32 s47, s46, {m*8192}")
        A(f"buffer_load_dwordx4 v{2+(m&1)}, s[20:23], s47 offen lds")
    A("s_mul_i32 s46, s18, 112")
    A("s_add_u32 s46, s46, s17")
    A("s_lshl_b32 s46, s46, 10")
    A("s_waitcnt vmcnt(0)")
    for db in range(4):
        A(f"ds_read_b64_tr_b16 {v(16+4*db,2)}, v{8+db}")
        A(f"ds_read_b64_tr_b16 {v(18+4*db,2)}, v{8+db} offset:2048")
    A("s_waitcnt lgkmcnt(0)")
    for db in range(4):
        A(f"s_add_u32 s47, s46, {db*28*1024}")
        A(f"buffer_store_dwordx4 {v(16+4*db,4)}, v14, s[24:27], s47 offen")
    A("s_add_u32 s16, s16, 128")
    A("s_cmp_lt_u32 s16, 224")
    A(f"s_cbranch_scc1 {L_tl}")
    A.label(L_exit)
    A("s_endpgm")
    return dict(name=name, vgpr=184, sgpr=96, grid=256, block=512, lds=NS * 32768)
```

```python
from asmlib import *
from layout import *


def gen_s3(A, name="s3_kernel"):
    kernel_header(A, name)
    L_exit = name + "_exit"
    A("s_cmp_ge_u32 s2, 256")
    A(f"s_cbranch_scc1 {L_exit}")
    A("s_load_dwordx2 s[4:5], s[0:1], 0")
    A("s_load_dwordx2 s[6:7], s[0:1], 80")
    A("s_load_dwordx2 s[8:9], s[0:1], 96")
    A("v_lshrrev_b32 v2, 6, v0")
    A("v_and_b32 v1, 63, v0")
    A("v_readfirstlane_b32 s19, v2")
    A("s_and_b32 s14, s2, 7")
    A("s_lshr_b32 s15, s2, 3")
    A("s_lshr_b32 s16, s15, 3")
    A("s_lshl_b32 s14, s14, 2")
    A("s_add_u32 s16, s16, s14")
    A("s_and_b32 s17, s15, 7")
    A("v_lshlrev_b32 v2, 4, v1")
    A("s_mul_i32 s42, s19, 7")
    A("s_mul_i32 s40, s16, 112")
    A("s_add_u32 s40, s40, s42")
    A("s_lshl_b32 s40, s40, 10")
    A("s_mul_i32 s44, s17, 112")
    A("s_add_u32 s44, s44, s42")
    A("s_lshl_b32 s44, s44, 10")
    for j in range(1, 4):
        A(f"s_add_u32 s{40+j}, s40, {j*28*1024}")
        A(f"s_add_u32 s{44+j}, s44, {j*28*1024}")
    A("s_waitcnt lgkmcnt(0)")
    A(f"s_add_u32 s10, s8, {WS_H}")
    A("s_addc_u32 s11, s9, 0")
    srd(A, 20, "s10", "s11", 2048 * 896 * 2)
    A(f"s_add_u32 s10, s8, {WS_WOT}")
    A("s_addc_u32 s11, s9, 0")
    srd(A, 24, "s10", "s11", 512 * 896 * 2)
    A(f"s_mov_b32 s12, {WS_YRE}")
    A("s_cmp_eq_u32 s19, 1")
    A(f"s_cselect_b32 s12, {WS_YIM}, s12")
    A("s_add_u32 s10, s8, s12")
    A("s_addc_u32 s11, s9, 0")
    srd(A, 28, "s10", "s11", 2048 * 512 * 2)
    srd(A, 32, "s4", "s5", 2048 * 512 * 2)
    srd(A, 36, "s6", "s7", 2048 * 512 * 2)

    ACC = 16
    FR = 80
    Y = 208
    XR = 240

    def fr(k, idx):
        if k < 4:
            return v(FR + k * 32 + idx * 4, 4)
        return a((k - 4) * 32 + idx * 4, 4)

    for k in range(7):
        off = k * 1024
        for i in range(4):
            if off < 4096:
                A(f"buffer_load_dwordx4 {fr(k,i)}, v2, s[24:27], s{44+i} offen offset:{off}")
                A(f"buffer_load_dwordx4 {fr(k,4+i)}, v2, s[20:23], s{40+i} offen offset:{off}")
            else:
                A(f"buffer_load_dwordx4 {fr(k,i)}, v3, s[24:27], s{44+i} offen offset:{off-4096}")
                A(f"buffer_load_dwordx4 {fr(k,4+i)}, v3, s[20:23], s{40+i} offen offset:{off-4096}")
        if k == 0:
            A("v_add_u32 v3, 4096, v2")
    for i in range(64):
        A(f"v_mov_b32 v{ACC+i}, 0")
    A("v_and_b32 v4, 7, v0")
    A("v_lshrrev_b32 v5, 3, v0")
    A("v_lshlrev_b32 v6, 10, v5")
    A("v_lshl_add_u32 v6, v4, 4, v6")
    A("s_lshl_b32 s48, s16, 16")
    A("s_lshl_b32 s49, s17, 7")
    A("s_add_u32 s48, s48, s49")
    A("s_add_u32 s49, s48, 32768")
    A("v_mul_u32_u24 v7, 272, v5")
    A("v_lshl_add_u32 v7, v4, 5, v7")
    A("v_and_b32 v8, 15, v1")
    A("v_mul_u32_u24 v8, 272, v8")
    A("v_lshrrev_b32 v9, 4, v1")
    A("v_lshl_add_u32 v8, v9, 4, v8")
    A("s_mul_i32 s50, s19, 17408")
    A("v_add_u32 v8, s50, v8")
    A("s_lshl_b32 s52, s16, 16")
    A("s_lshl_b32 s51, s17, 11")
    A("s_add_u32 s52, s52, s51")
    for j in range(1, 4):
        A(f"s_add_u32 s{52+j}, s52, {j*16384}")
    nload = 56
    for k in range(7):
        A(f"s_waitcnt vmcnt({nload - 8*(k+1) + (10 if k > 0 else 0)})")
        for jt in range(4):
            for it in range(4):
                acc = ACC + (jt * 4 + it) * 4
                A(f"v_mfma_f32_16x16x32_bf16 {v(acc,4)}, {fr(k,it)}, {fr(k,4+jt)}, {v(acc,4)}")
        if k == 0:
            for jt in range(4):
                for e in range(2):
                    A(f"buffer_load_dwordx4 {v(Y+(jt*2+e)*4,4)}, v2, s[28:31], s{52+jt} offen offset:{e*1024}")
            A(f"buffer_load_dwordx4 {v(XR,4)}, v6, s[32:35], s48 offen")
            A(f"buffer_load_dwordx4 {v(XR+4,4)}, v6, s[32:35], s49 offen")
    A("s_mov_b32 s56, 0")
    A("s_cmp_eq_u32 s19, 0")
    A("s_cselect_b32 s56, 1.0, s56")
    A("s_cmp_eq_u32 s19, 1")
    A("s_cselect_b32 s56, -1.0, s56")
    A("s_cmp_ge_u32 s19, 2")
    A("s_waitcnt vmcnt(0)")
    L_noy = name + "_noy"
    A("s_nop 7")
    A(f"s_cbranch_scc1 {L_noy}")
    for jt in range(4):
        for e in range(2):
            acc = ACC + (jt * 4 + 2 * e) * 4
            y = Y + (jt * 2 + e) * 4
            for d in range(4):
                A(f"v_lshlrev_b32 v10, 16, v{y+d}")
                A(f"v_and_b32 v11, 0xffff0000, v{y+d}")
                A(f"v_fmac_f32 v{acc+2*d}, s56, v10")
                A(f"v_fmac_f32 v{acc+2*d+1}, s56, v11")
    A.label(L_noy)
    for jt in range(4):
        for it in range(4):
            acc = ACC + (jt * 4 + it) * 4
            A(f"ds_write_b128 v8, {v(acc,4)} offset:{jt*16*272 + it*64}")
    A("s_waitcnt lgkmcnt(0)")
    A("s_barrier")
    R = 80
    for h in range(2):
        for w in range(4):
            for c in range(2):
                A(f"ds_read_b128 {v(R + ((h*4+w)*2+c)*4, 4)}, v7 offset:{w*17408 + h*32*272 + c*16}")
    for h in range(2):
        A(f"s_waitcnt lgkmcnt({8*(1-h)})")
        b = R + h * 32
        for w in range(1, 4):
            for d in range(4):
                A(f"v_pk_add_f32 {v(b+2*d,2)}, {v(b+2*d,2)}, {v(b+w*8+2*d,2)}")
        for d in range(4):
            A(f"v_lshlrev_b32 v10, 16, v{XR+h*4+d}")
            A(f"v_and_b32 v11, 0xffff0000, v{XR+h*4+d}")
            A(f"v_pk_add_f32 {v(b+2*d,2)}, {v(b+2*d,2)}, v[10:11]")
            A(f"v_cvt_pk_bf16_f32 v{12+d}, v{b+2*d}, v{b+2*d+1}")
        A(f"buffer_store_dwordx4 v[12:15], v6, s[36:39], s{48+h} offen")
        if h == 0:
            A("s_nop 1")
    A.label(L_exit)
    A("s_endpgm")
    return dict(name=name, vgpr=256 + 96, accum=256, sgpr=64, grid=256, block=256, lds=4 * 17408)
```

```python
MB = 1 << 20
WS_XN = 0
WS_A = 2 * MB
WS_B = 4 * MB
WS_Z1 = 6 * MB
WS_ZB = 10 * MB
WS_Z2 = 14 * MB
WS_YRE = 18 * MB
WS_YIM = 20 * MB
WS_H = 22 * MB
WS_WOT = 26 * MB
WS_ST = 27 * MB
WS_STAMP = 28 * MB
WS_TOTAL = 32 * MB


def to_p16(m):
    K, N = m.shape
    t = m.reshape(K // 32, 4, 8, N // 128, 8, 16)
    t = t.permute(3, 0, 4, 1, 5, 2)
    return t.contiguous().reshape(-1)

def from_p16(f, K, N):
    t = f.reshape(N // 128, K // 32, 8, 4, 16, 8)
    t = t.permute(1, 3, 5, 0, 2, 4)
    return t.contiguous().reshape(K, N)

def to_g(m):
    T, N = m.shape
    t = m.reshape(T // 16, 16, N // 32, 2, 4, 4)
    t = t.permute(0, 2, 4, 1, 3, 5)
    return t.contiguous().reshape(-1)

def from_g(f, T, N):
    t = f.reshape(T // 16, N // 32, 4, 16, 2, 4)
    t = t.permute(0, 3, 1, 4, 2, 5)
    return t.contiguous().reshape(T, N)
```

```python
import sys
from build import build
from k_ln import *
from k_s1 import gen_s1
from k_s2 import gen_s2
from k_s3 import gen_s3
T = "parallel_sum__spectral_fnet__mixer_gmlp__prompt.s"
ks = [(gen_k0, {}), (gen_s1, {}), (gen_k15, {}), (gen_s2, dict(NS=4, prio_loader=2)), (gen_s3, {})]
build(ks, T)
build(ks, "full.s")
```

```python
class Asm:
    def __init__(self):
        self.lines = []
        self._lbl = 0

    def __call__(self, s, *more):
        for x in (s,) + more:
            for ln in x.split("\n"):
                ln = ln.rstrip()
                if ln.strip():
                    self.lines.append("    " + ln.strip() if not ln.strip().endswith(":") else ln.strip())

    def raw(self, s):
        self.lines.append(s)

    def label(self, name):
        self.lines.append(name + ":")

    def newlabel(self, prefix="L"):
        self._lbl += 1
        return f"{prefix}_{self._lbl}"

    def comment(self, s):
        self.lines.append("    ; " + s)

    def text(self):
        return "\n".join(self.lines) + "\n"


def v(n, cnt=1):
    return f"v{n}" if cnt == 1 else f"v[{n}:{n+cnt-1}]"


def s(n, cnt=1):
    return f"s{n}" if cnt == 1 else f"s[{n}:{n+cnt-1}]"


def a(n, cnt=1):
    return f"a{n}" if cnt == 1 else f"a[{n}:{n+cnt-1}]"


def kernel_header(A, name):
    A.raw(f".globl {name}")
    A.raw(".p2align 8")
    A.raw(f".type {name},@function")
    A.label(name)


def kernel_desc(name, vgpr, sgpr, accum=None):
    if accum is None:
        accum = (vgpr + 3) // 4 * 4
    return f""".p2align 6
.amdhsa_kernel {name}
  .amdhsa_next_free_vgpr {vgpr}
  .amdhsa_next_free_sgpr {sgpr}
  .amdhsa_accum_offset {accum}
  .amdhsa_group_segment_fixed_size 0
  .amdhsa_kernarg_size 104
  .amdhsa_user_sgpr_count 2
  .amdhsa_user_sgpr_kernarg_segment_ptr 1
  .amdhsa_system_sgpr_workgroup_id_x 1
.end_amdhsa_kernel
"""


def srd(A, d, base_lo, base_hi, nbytes):
    A(f"s_mov_b32 s{d}, {base_lo}")
    A(f"s_and_b32 s{d+1}, {base_hi}, 0xffff")
    A(f"s_mov_b32 s{d+2}, {nbytes}")
    A(f"s_mov_b32 s{d+3}, 0x00020000")


def stamp_at(A, k, base=64):
    A(f"s_memtime s[{base+2*k}:{base+2*k+1}]")


def stamp_flush(A, n, wave_sreg, ids=(0, 5, 14, 15), base=64, srdb=84, tag="st"):
    A("s_load_dwordx2 s[80:81], s[0:1], 88")
    A("s_waitcnt lgkmcnt(0)")
    srd(A, srdb, "s80", "s81", 256)
    A("s_mov_b32 s82, 0x10000")
    for i, w in enumerate(ids):
        A(f"s_cmp_eq_u32 s2, {w}")
        A(f"s_cselect_b32 s82, {i*64}, s82")
    A(f"s_lshl_b32 s83, {wave_sreg}, 4")
    A("s_add_u32 s82, s82, s83")
    for k in range(1, 5):
        if k <= n:
            A(f"s_sub_u32 s83, s{base+2*k}, s{base}")
            A(f"v_mov_b32 v{19+k}, s83")
        else:
            A(f"v_mov_b32 v{19+k}, 0")
    A("v_mov_b32 v24, 0")
    A(f"buffer_store_dwordx4 v[20:23], v24, s[{srdb}:{srdb+3}], s82 offen")


def stampw(A, k, base=72):
    A(f"s_memtime s[{base+2*k}:{base+2*k+1}]")
    if k == 0:
        A("s_memrealtime s[88:89]")


def stampw_flush(A, n, wave_sreg, ws_lo, ws_hi, base=72, srdb=84, vt=20, off=None):
    from layout import WS_STAMP
    A("s_memrealtime s[92:93]")
    A(f"s_add_u32 s90, {ws_lo}, {WS_STAMP if off is None else off}")
    A(f"s_addc_u32 s91, {ws_hi}, 0")
    srd(A, srdb, "s90", "s91", 65536 * 2)
    A("s_waitcnt lgkmcnt(0)")
    A(f"v_mov_b32 v{vt}, s88")
    for k in range(1, 6):
        if k <= n:
            A(f"s_sub_u32 s90, s{base+2*k}, s{base}")
            A(f"v_mov_b32 v{vt+k}, s90")
        else:
            A(f"v_mov_b32 v{vt+k}, 0")
    A(f"v_mov_b32 v{vt+6}, s92")
    A(f"s_getreg_b32 s90, hwreg(HW_REG_XCC_ID)")
    A(f"v_mov_b32 v{vt+7}, s90")
    A("s_lshl_b32 s90, s2, 3")
    A(f"s_add_u32 s90, s90, {wave_sreg}")
    A("s_lshl_b32 s90, s90, 5")
    A(f"v_mov_b32 v{vt+8}, 0")
    A("s_mov_b64 exec, 1")
    A(f"buffer_store_dwordx4 v[{vt}:{vt+3}], v{vt+8}, s[{srdb}:{srdb+3}], s90 offen")
    A(f"buffer_store_dwordx4 v[{vt+4}:{vt+7}], v{vt+8}, s[{srdb}:{srdb+3}], s90 offen offset:16")
    A("s_mov_b64 exec, -1")


SREG = [72, 74, 76, 78, 80, 82, 4, 6, 8, 10, 98, 100, 70, 16]

def st2(A, k):
    A(f"s_memtime s[{SREG[k]}:{SREG[k]+1}]")
    if k == 0:
        A("s_memrealtime s[88:89]")


def st2_flush(A, used, wave_sreg, srd_ws, vt=32, idx=0):
    from layout import WS_STAMP
    A("s_memrealtime s[92:93]")
    A("s_waitcnt lgkmcnt(0)")
    A(f"v_mov_b32 v{vt}, s88")
    for k in range(1, 14):
        if k in used:
            A(f"s_sub_u32 s90, s{SREG[k]}, s{SREG[0]}")
            A(f"v_mov_b32 v{vt+k}, s90")
        else:
            A(f"v_mov_b32 v{vt+k}, 0")
    A(f"v_mov_b32 v{vt+14}, s92")
    A(f"s_getreg_b32 s90, hwreg(HW_REG_XCC_ID)")
    A(f"v_mov_b32 v{vt+15}, s90")
    A("s_lshl_b32 s90, s2, 3")
    A(f"s_add_u32 s90, s90, {wave_sreg}")
    A("s_lshl_b32 s90, s90, 6")
    A(f"s_add_u32 s90, s90, {WS_STAMP + idx*131072}")
    A(f"v_mov_b32 v{vt+16}, 0")
    A("s_mov_b64 exec, 1")
    for i in range(4):
        A(f"buffer_store_dwordx4 v[{vt+4*i}:{vt+4*i+3}], v{vt+16}, s[{srd_ws}:{srd_ws+3}], s90 offen offset:{16*i}")
    A("s_mov_b64 exec, -1")
```

```python
from asmlib import *
from layout import *
import struct

def f32(x):
    return hex(struct.unpack('I', struct.pack('f', x))[0])

C0 = -2.0 * 0.7978845608028654 * 1.4426950408889634
C1 = C0 * 0.044715
EPS = f32(1e-5)
KB = 1024
W_ST = WS_ST
W_F1 = WS_ST + 256 * KB
W_F2 = WS_ST + 320 * KB
W_RS = WS_ST + 512 * KB
W_CSD = WS_ST + 528 * KB
LX, LW, LD = 0, 65536, 131072
LRM = 155648
LCSD = LRM + 1024
LCSW = LCSD + 1024
LMISC = LCSW + 512
LDS_TOTAL = 163840
SX, SW, SI, SWS, SDB, SO, SP = 20, 24, 28, 32, 36, 40, 44
SPIN = 0x20000


class Cnt:
    def __init__(self, A, name, mx):
        self.A, self.name, self.mx, self.q = A, name, mx, []
    def op(self, tag=None):
        self.q.append(tag)
    def need(self, tag):
        idx = [i for i, t in enumerate(self.q) if t == tag]
        if not idx:
            return
        n = len(self.q) - 1 - idx[-1]
        self.A(f"s_waitcnt {self.name}({min(n, self.mx)})")
        self.q = self.q[idx[-1] + 1:] if n <= self.mx else self.q[len(self.q) - self.mx:]
    def all(self):
        self.A(f"s_waitcnt {self.name}(0)")
        self.q = []


def gen_f(A, name="f_kernel", phases="123", stamp=False, rot1="x", touch=False, tbl_at=4, rank_at=5,
          st_aux="sc1", prio_loader=2, rot2=2, pf_at=8, pf_n=4, xaux="nt", waux="nt", pro=4, taux="", paux="", qaux="", pfaux="",
          st2_aux="sc1", psleep=2):
    kernel_header(A, name)
    N = name
    gst = stamp == 2
    stamp = stamp == 1
    TY, TT, NT, SL, XC = "s84", "s85", "s86", "s87", "s65"
    SQ = SW
    def G(k):
        if gst:
            st2(A, k)

    def p2_decode():
        A(f"s_lshr_b32 {XC}, {RANK}, 5")
        A(f"s_and_b32 {SL}, {RANK}, 31")
        A(f"s_and_b32 {TY}, {XC}, 1")
        A(f"s_lshr_b32 {TT}, {XC}, 1")
        A(f"s_lshl_b32 {TT}, {TT}, 2")
        A(f"s_lshr_b32 s3, {SL}, 2")
        A(f"s_add_u32 {TT}, {TT}, s3")
        A(f"s_and_b32 {NT}, {SL}, 3")
        A(f"s_cmp_ge_u32 {SL}, 23")
        A("s_cselect_b32 s3, 1, 0")
        A("s_cselect_b32 s18, 23, 16")
        A(f"s_lshl1_add_u32 s3, {XC}, s3")
        A(f"s_sub_u32 s18, {SL}, s18")
        A(f"s_cmp_ge_u32 {SL}, 16")
        A(f"s_cselect_b32 {TY}, 2, {TY}")
        A(f"s_cselect_b32 {TT}, s3, {TT}")
        A(f"s_cselect_b32 {NT}, s18, {NT}")

    WOT, HF, AC3, YR, XR = 32, 144, 200, 232, 240
    def p3_addr():
        A("s_and_b32 s18, s19, 3")
        A("s_mul_i32 s18, s18, 7")
        A(f"s_and_b32 s3, {SL}, 7")
        A("s_mul_i32 s50, s3, 112")
        A("s_add_u32 s50, s50, s18")
        A("s_lshl_b32 s50, s50, 10")
        A(f"s_add_u32 s50, s50, {WS_WOT}")
        for j in range(1, 4):
            A(f"s_add_u32 s{50+j}, s50, {j*28*1024}")
        A("v_add_u32 v15, 4096, v14")
    def p3_wot_loads():
        for k in range(7):
            for i in range(4):
                A(f"buffer_load_dwordx4 {v(WOT+k*16+i*4,4)}, {'v14' if k < 4 else 'v15'}, s[{SWS}:{SWS+3}], s{50+i} offen offset:{(k&3)*1024}")
    def wot_poll_addr(vr):
        A(f"s_lshl_b32 s3, {RANK}, 7")
        A(f"s_add_u32 s3, s3, {W_F2 + 64}")
        A(f"v_and_b32 v{vr}, 15, v1")
        A(f"v_lshl_add_u32 v{vr}, v{vr}, 2, s3")
    def wot_poll_issue(vr):
        A(f"buffer_load_dword v{vr+1}, v{vr}, s[{SWS}:{SWS+3}], 0 offen sc1")
    def wot_poll_check(vr, tag):
        A(f"s_mov_b32 s18, {SPIN}")
        A.label(f"{N}_{tag}_wp0")
        A("s_waitcnt vmcnt(0)")
        A(f"v_cmp_eq_u32 vcc, 0, v{vr+1}")
        A("s_sub_u32 s18, s18, 1")
        A("s_cmp_eq_u64 vcc, 0")
        A(f"s_cbranch_scc1 {N}_{tag}_wp1")
        A("s_cmp_le_i32 s18, 0")
        A(f"s_cbranch_scc1 {N}_{tag}_wp1")
        A("s_sleep 8")
        wot_poll_issue(vr)
        A(f"s_branch {N}_{tag}_wp0")
        A.label(f"{N}_{tag}_wp1")
    RB, CG, ISB, U0, ABO, KEY, RANK = "s60", "s61", "s62", "s63", "s64", "s65", "s66"
    L_exit = N + "_exit"
    A("s_cmp_ge_u32 s2, 256")
    A(f"s_cbranch_scc1 {L_exit}")
    if stamp or gst:
        st2(A, 0)
    A("s_load_dwordx2 s[4:5], s[0:1], 0")
    A("s_load_dwordx4 s[8:11], s[0:1], 24")
    A("s_load_dwordx2 s[6:7], s[0:1], 48")
    A("s_load_dwordx4 s[12:15], s[0:1], 88")
    A("v_lshrrev_b32 v2, 6, v0")
    A("v_and_b32 v1, 63, v0")
    A("s_lshr_b32 s3, s2, 5")
    A("v_readfirstlane_b32 s19, v2")
    A(f"s_and_b32 {RB}, s2, 1")
    A(f"s_lshl_b32 {RB}, {RB}, 3")
    A(f"s_add_u32 {RB}, {RB}, s3")
    A(f"s_bfe_u32 {CG}, s2, 0x20001")
    A(f"s_lshl_b32 {CG}, {CG}, 2")
    A("s_bfe_u32 s3, s2, 0x20003")
    A(f"s_add_u32 {CG}, {CG}, s3")
    A(f"s_cmp_ge_u32 {CG}, 14")
    A(f"s_cselect_b32 {ABO}, 1, 0")
    A(f"s_cmp_ge_u32 {CG}, 7")
    A(f"s_cselect_b32 {ISB}, 1, 0")
    A(f"s_cselect_b32 {U0}, 7, 0")
    A(f"s_sub_u32 {U0}, {CG}, {U0}")
    A(f"s_mul_i32 {U0}, {U0}, 3")
    A(f"s_cmp_eq_u32 {CG}, 14")
    A(f"s_cselect_b32 {ISB}, 0, {ISB}")
    A(f"s_cmp_eq_u32 {ABO}, 1")
    A(f"s_cselect_b32 {U0}, 21, {U0}")
    A("v_lshlrev_b32 v14, 4, v1")
    A("s_cmp_lt_u32 s19, 4")
    A(f"s_cbranch_scc1 {N}_comp")

    W = "s67"
    XO, DO, IO, LDST, KS = "s48", "s49", "s50", "s51", "s52"
    A(f"s_sub_u32 {W}, s19, 4")
    A("v_lshrrev_b32 v4, 3, v1")
    A(f"s_lshl_b32 s3, {W}, 3")
    A("v_add_u32 v4, s3, v4")
    A("v_and_b32 v5, 7, v1")
    A("v_lshrrev_b32 v6, 4, v1")
    A(f"s_and_b32 s3, {W}, 1")
    A("s_lshl_b32 s3, s3, 2")
    A(f"s_and_b32 s18, {W}, 2")
    A("s_or_b32 s3, s3, s18")
    A("v_xor_b32 v6, s3, v6")
    A("v_xor_b32 v6, v6, v5")
    A("v_lshlrev_b32 v6, 4, v6")
    A("v_lshl_add_u32 v2, v4, 10, v6")
    A("v_bfe_u32 v6, v1, 4, 1")
    A(f"s_and_b32 s3, {W}, 1")
    A("s_lshl_b32 s3, s3, 1")
    A("v_or_b32 v6, s3, v6")
    A("v_lshlrev_b32 v6, 1, v6")
    A("v_xor_b32 v6, v6, v5")
    A("v_lshlrev_b32 v6, 4, v6")
    A("v_mul_u32_u24 v3, 3584, v4")
    A("v_add_u32 v3, v3, v6")
    A(f"s_lshl_b32 {XO}, {RB}, 17")
    A(f"s_lshl_b32 {DO}, {U0}, 14")
    A(f"s_lshl_b32 {IO}, {CG}, 7")
    A(f"s_lshl_b32 {LDST}, {W}, 10")
    A(f"s_mov_b32 {KS}, 0")
    if rot1:
        if rot1 == "x":
            A(f"s_getreg_b32 {KS}, hwreg(HW_REG_XCC_ID, 0, 4)")
        elif rot1 == "x2":
            A(f"s_getreg_b32 {KS}, hwreg(HW_REG_XCC_ID, 0, 4)")
            A(f"s_bfe_u32 s3, s2, 0x10005")
            A(f"s_lshl_b32 s3, s3, 2")
            A(f"s_add_u32 {KS}, {KS}, s3")
        else:
            A(f"s_lshl_b32 {KS}, {CG}, 1")
            A(f"s_add_u32 {KS}, {KS}, {RB}")
        A(f"s_and_b32 {KS}, {KS}, 7")
        A(f"s_lshl_b32 s3, {KS}, 7")
        A(f"s_add_u32 {XO}, {XO}, s3")
        A(f"s_add_u32 {DO}, {DO}, s3")
        A(f"s_mul_i32 s3, {KS}, {64*3584}")
        A(f"s_add_u32 {IO}, {IO}, s3")
    A("s_mov_b32 s53, 128")
    A(f"s_mov_b32 s54, {64*3584}")
    A("s_waitcnt lgkmcnt(0)")
    srd(A, SX, "s4", "s5", 2048 * 1024)
    A(f"s_cmp_eq_u32 {ISB}, 1")
    A("s_cselect_b64 s[16:17], s[10:11], s[8:9]")
    srd(A, SW, "s16", "s17", 512 * 1024)
    srd(A, SI, "s6", "s7", 512 * 3584)
    srd(A, SWS, "s14", "s15", WS_TOTAL)
    srd(A, SDB, "s12", "s13", 256)
    A(f"s_lshr_b32 s3, {W}, 1")
    A(f"s_lshl_b32 s18, {ABO}, 1")
    A("s_or_b32 s3, s3, s18")
    for r in (1, 2, 3):
        A(f"s_cmp_eq_u32 s3, {r}")
        A(f"s_cbranch_scc1 {N}_ld{r}")

    def p1_loader(role):
        ztype = role < 2
        hi = role & 1
        vm = Cnt(A, "vmcnt", 63)
        A.label(f"{N}_ld{role}")
        def dma(lds, so_base, so_add, vreg, srdn, tag):
            A(f"s_add_u32 m0, {LDST}, {lds}")
            A(f"s_add_u32 s3, {so_base}, {so_add}")
            A(f"buffer_load_dwordx4 {vreg}, s[{srdn}:{srdn+3}], s3 offen {xaux if srdn == SX else waux} lds")
            vm.op(tag)
        def issue(st):
            sl = st & 3
            for j in range(4):
                dma(LX + sl * 16384 + j * 4096, XO, j * 32768, "v2", SX, st)
                if ztype:
                    pan, jj = j >> 1, j & 1
                    dma(LW + sl * 16384 + pan * 8192 + jj * 4096, IO, jj * 32 * 3584 + (1792 if pan == 0 else 0), "v3", SI, st)
                else:
                    dma(LW + sl * 16384 + j * 4096, DO, j * 32768, "v2", SW, st)
            j0 = 0 if ztype else 4
            dma(LD + sl * 6144, DO, j0 * 32768, "v2", SW, st)
            if not hi:
                dma(LD + sl * 6144 + 4096, DO, (j0 + 1) * 32768, "v2", SW, st)
            if st < 7:
                A(f"s_add_u32 {KS}, {KS}, 1")
                A(f"s_cmp_eq_u32 {KS}, 8")
                A(f"s_cselect_b32 {KS}, 0, {KS}")
                A(f"s_cselect_b32 s3, {(128-1024) & 0xffffffff}, s53")
                A(f"s_cselect_b32 s18, {(-7*64*3584) & 0xffffffff}, s54")
                A(f"s_add_u32 {XO}, {XO}, s3")
                A(f"s_add_u32 {DO}, {DO}, s3")
                A(f"s_add_u32 {IO}, {IO}, s18")
        if stamp:
            st2(A, 1)
        for st in range(pro):
            issue(st)
        A("s_barrier")
        def q_issue(sl, tag):
            for m in range(4):
                A(f"s_add_u32 m0, {LDST}, {sl*16384 + m*4096}")
                A(f"s_add_u32 s3, {QO}, {m*131072}")
                A(f"buffer_load_dwordx4 v7, s[{SQ}:{SQ+3}], s3 offen {qaux} lds")
                vm.op(tag)
            A(f"s_add_u32 {QO}, {QO}, 128")
            A(f"s_and_b32 s3, {QO}, 4095")
            A("s_cselect_b32 s3, 0, 4096")
            A(f"s_sub_u32 {QO}, {QO}, s3")
        def prefetch():
            A(f"s_lshl2_add_u32 s18, {NT}, {W}")
            A(f"s_cmp_eq_u32 {TY}, 2")
            A("s_cselect_b32 s55, 28, 16")
            A("v_lshlrev_b32 v8, 7, v1")
            for k in range(pf_n):
                A("s_min_u32 s3, s18, 63")
                A("s_lshl_b32 s3, s3, 13")
                A(f"s_add_u32 s3, s3, {QB}")
                A(f"buffer_load_dword v250, v8, s[{SQ}:{SQ+3}], s3 offen {pfaux}")
                vm.op("pf")
                A("s_add_u32 s18, s18, s55")
        for b in range(9):
            if b < 8:
                vm.need(b)
            else:
                vm.need("rs")
            if stamp and b < 8:
                st2(A, 2 + b)
            if b == rank_at and "2" in phases:
                A("s_load_dwordx4 s[12:15], s[0:1], 8")
                A("s_load_dwordx4 s[56:59], s[0:1], 56")
                A("s_load_dwordx2 s[94:95], s[0:1], 72", "s_load_dwordx2 s[96:97], s[0:1], 80")
            A("s_barrier")
            if b == 0:
                for st in range(pro, 4):
                    issue(st)
            if 1 <= b <= 4:
                issue(b + 3)
            if b == rank_at and "2" in phases:
                A(f"v_mov_b32 v8, {LMISC}")
                A("ds_read_b32 v9, v8")
                A("v_lshrrev_b32 v6, 4, v1")
                A(f"s_and_b32 s3, {W}, 1")
                A("s_lshl_b32 s3, s3, 2")
                A("v_or_b32 v7, s3, v6")
                A("v_xor_b32 v7, v7, v5")
                A("v_lshlrev_b32 v7, 4, v7")
                A("v_lshl_add_u32 v7, v4, 12, v7")
                A("s_waitcnt lgkmcnt(0)")
                A(f"v_readfirstlane_b32 {RANK}, v9")
                A("s_nop 0")
                A(f"s_and_b32 {RANK}, {RANK}, 255")
            if b == 5 and "2" in phases:
                p2_decode()
                A(f"s_cmp_eq_u32 {TY}, 0")
                A("s_cselect_b64 s[12:13], s[12:13], s[14:15]")
                A(f"s_cmp_eq_u32 {TY}, 2")
                A("s_cselect_b64 s[12:13], s[56:57], s[12:13]")
                srd(A, SQ, "s12", "s13", 2048 * 4096)
                A(f"s_lshl_b32 {QB}, {TT}, 19")
                A(f"s_mul_i32 {KS2}, {TT}, {rot2}")
                A(f"s_and_b32 {KS2}, {KS2}, 31")
                A(f"s_lshl_b32 {QO}, {KS2}, 7")
                A(f"s_add_u32 {QO}, {QO}, {QB}")
            if b == rank_at and not hi:
                A(f"s_lshl_b32 s3, {RB}, 10")
                A(f"s_add_u32 s3, s3, {W_RS}")
                A(f"s_lshl_b32 s18, {ISB}, 11")
                A(f"s_lshl_b32 s55, {U0}, 6")
                A("s_add_u32 s18, s18, s55")
                A(f"s_add_u32 s18, s18, {W_CSD}")
                A(f"s_cmp_eq_u32 {W}, 0")
                A("s_cselect_b32 s3, s3, s18")
                A(f"s_add_u32 m0, {LDST}, {LRM}")
                A("s_nop 0")
                A(f"buffer_load_dwordx4 v14, s[{SWS}:{SWS+3}], s3 offen sc1 lds")
                vm.op("rs")
            if b >= 5 and "2" in phases:
                q_issue(b - 5, "q")
                if b == pf_at and pf_n:
                    prefetch()
        A(f"s_branch {N}_ld_p2")

    QB, PB, QO, PO, KS2, CNT = "s48", "s49", "s50", "s53", "s52", "s54"
    for role in range(4):
        p1_loader(role)
    A.label(f"{N}_ld_p2")
    if stamp:
        st2(A, 10)
        st2_flush(A, range(1, 11), "s19", SWS)
    if "2" not in phases:
        A("s_endpgm")
    else:
        G(1)
        srd(A, SI, "s94", "s95", 896 * 1024)
        srd(A, SO, "s96", "s97", 2048 * 1024)
        A(f"s_cmp_ge_u32 {SL}, 30")
        A(f"s_cbranch_scc1 {N}_tr")
        if prio_loader:
            A(f"s_setprio {prio_loader}")
        A(f"s_mov_b32 {PB}, {WS_A}")
        A(f"s_cmp_eq_u32 {TY}, 1")
        A(f"s_cselect_b32 {PB}, {WS_B}, {PB}")
        A(f"s_cmp_eq_u32 {TY}, 2")
        A(f"s_cselect_b32 {PB}, {WS_Z2}, {PB}")
        A(f"s_lshl_b32 s3, {NT}, 19")
        A(f"s_add_u32 {PB}, {PB}, s3")
        A(f"s_add_u32 {PB}, {PB}, {LDST}")
        A(f"s_lshl_b32 {PO}, {KS2}, 14")
        A(f"v_mov_b32 v8, {LMISC + 4}")
        A(f"s_mov_b32 s18, {SPIN}")
        A(f"s_cmp_eq_u32 {W}, 0")
        A(f"s_cbranch_scc0 {N}_lw0")
        A(f"s_lshl_b32 s3, {NT}, 2")
        A("s_lshr_b32 s55, 0x1343, s3")
        A("s_and_b32 s55, s55, 15")
        A(f"s_cmp_eq_u32 {TY}, 2")
        A("s_cselect_b32 s55, 2, s55")
        A("s_lshl_b32 s55, s55, 4")
        A("s_sub_u32 s55, s55, 1")
        A("v_min_u32 v9, s55, v1")
        A("v_lshlrev_b32 v9, 2, v9")
        A(f"s_lshl_b32 s3, {RANK}, 8")
        A(f"s_add_u32 s3, s3, {W_F1}")
        A.label(f"{N}_lp0")
        A(f"buffer_load_dword v10, v9, s[{SWS}:{SWS+3}], s3 offen sc1")
        A("s_waitcnt vmcnt(0)")
        A("v_cmp_eq_u32 vcc, 0, v10")
        A("s_sub_u32 s18, s18, 1")
        A("s_cmp_eq_u64 vcc, 0")
        A(f"s_cbranch_scc1 {N}_lp1")
        if psleep:
            A(f"s_sleep {psleep}")
        A("s_cmp_gt_i32 s18, 0")
        A(f"s_cbranch_scc1 {N}_lp0")
        A.label(f"{N}_lp1")
        A("v_mov_b32 v10, 1")
        A("ds_write_b32 v8, v10")
        A(f"s_branch {N}_lgo")
        A.label(f"{N}_lw0")
        A("s_lshl_b32 s18, s18, 4")
        A.label(f"{N}_lw1")
        A("ds_read_b32 v10, v8")
        A("s_sub_u32 s18, s18, 1")
        A("s_waitcnt lgkmcnt(0)")
        A("v_readfirstlane_b32 s3, v10")
        A("s_cmp_eq_u32 s3, 1")
        A(f"s_cbranch_scc1 {N}_lgo")
        A("s_sleep 1")
        A("s_cmp_gt_i32 s18, 0")
        A(f"s_cbranch_scc1 {N}_lw1")
        A.label(f"{N}_lgo")
        G(2)
        vm = Cnt(A, "vmcnt", 63)
        def p_adv():
            A(f"s_add_u32 {PO}, {PO}, 16384")
            A(f"s_and_b32 {PO}, {PO}, 0x7ffff")
        def p_issue(sl, tag):
            A(f"s_add_u32 s18, {PB}, {PO}")
            for m in range(4):
                A(f"s_add_u32 m0, {LDST}, {65536 + sl*16384 + m*4096}")
                A(f"s_add_u32 s3, s18, {m*4096}")
                A(f"buffer_load_dwordx4 v14, s[{SWS}:{SWS+3}], s3 offen {paux} lds")
                vm.op(tag)
            p_adv()
        def qp_issue(sl, tag):
            A(f"s_add_u32 s18, {PB}, {PO}")
            for m in range(4):
                A(f"s_add_u32 m0, {LDST}, {sl*16384 + m*4096}")
                A(f"s_add_u32 s3, {QO}, {m*131072}")
                A(f"buffer_load_dwordx4 v7, s[{SQ}:{SQ+3}], s3 offen {qaux} lds")
                vm.op(tag)
                A(f"s_add_u32 m0, {LDST}, {65536 + sl*16384 + m*4096}")
                A(f"s_add_u32 s3, s18, {m*4096}")
                A(f"buffer_load_dwordx4 v14, s[{SWS}:{SWS+3}], s3 offen {paux} lds")
                vm.op(tag)
            p_adv()
            A(f"s_add_u32 {QO}, {QO}, 128")
            A(f"s_and_b32 s3, {QO}, 4095")
            A("s_cselect_b32 s3, 0, 4096")
            A(f"s_sub_u32 {QO}, {QO}, s3")
        for stg in range(4):
            p_issue(stg, stg)
        vm.need(0)
        G(3)
        A("s_barrier")
        vm.need(1)
        A("s_barrier")
        for n in range(1, 5):
            qp_issue((n + 3) & 3, n + 3)
            vm.need(n + 1)
            A("s_barrier")
        A(f"s_mov_b32 {CNT}, 6")
        A.label(f"{N}_lloop")
        for n in range(5, 9):
            qp_issue((n + 3) & 3, None)
            A("s_waitcnt vmcnt(16)")
            A("s_barrier")
        A(f"s_sub_u32 {CNT}, {CNT}, 1")
        A(f"s_cmp_lg_u32 {CNT}, 0")
        A(f"s_cbranch_scc1 {N}_lloop")
        wot_poll_addr(8)
        wot_poll_issue(8)
        p3_addr()
        A("s_waitcnt vmcnt(9)")
        A("s_barrier")
        A("s_waitcnt vmcnt(1)")
        A("s_barrier")
        wot_poll_check(8, "ld")
        p3_wot_loads()
        G(4)
        A("s_barrier")
        A("s_setprio 0")
        A(f"s_branch {N}_p3")

    FR, FS, ACC, CSA, ONE = 32, 52, 136, 224, 16
    A.label(f"{N}_comp")
    A("v_and_b32 v26, 15, v1")
    A("v_lshrrev_b32 v27, 4, v1")
    FL1 = "s68"
    STO = "s69"
    A(f"s_lshl_b32 s3, {RB}, 4")
    A(f"s_add_u32 s3, s3, {CG}")
    A(f"s_lshl_b32 {STO}, s3, 10")
    A(f"s_add_u32 {STO}, {STO}, {W_ST}")
    A(f"s_lshl_b32 s48, {RB}, 7")
    A(f"s_lshl_b32 s3, {CG}, 3")
    A("s_add_u32 s48, s48, s3")
    A("s_mul_i32 s3, s19, 3")
    for i in range(3):
        A(f"s_add_u32 s{49+i}, s3, {i}")
        A(f"s_min_u32 s{49+i}, s{49+i}, 7")
        A(f"s_add_u32 s{49+i}, s{49+i}, s48")
    A("s_getreg_b32 s18, hwreg(HW_REG_XCC_ID, 0, 4)")
    A("s_waitcnt lgkmcnt(0)")
    srd(A, SX, "s4", "s5", 2048 * 1024)
    A(f"s_cmp_eq_u32 {ISB}, 1")
    A("s_cselect_b64 s[16:17], s[10:11], s[8:9]")
    srd(A, SW, "s16", "s17", 512 * 1024)
    srd(A, SWS, "s14", "s15", WS_TOTAL)
    srd(A, SDB, "s12", "s13", 256)
    A("s_and_b32 s18, s18, 7")
    A("s_add_u32 s18, s18, 1")
    A(f"s_lshl_b32 {KEY}, s18, 8")
    A(f"s_or_b32 {KEY}, {KEY}, s2")
    A("s_cmp_eq_u32 s19, 3")
    A(f"s_cbranch_scc0 {N}_p0ld")
    for i in range(4):
        A(f"v_mov_b32 v{ACC+i}, 0")
    A("v_mov_b32 v24, s18")
    A(f"buffer_store_dwordx4 {v(ACC,4)}, v14, s[{SWS}:{SWS+3}], {STO} offen sc1")
    A("s_lshl_b32 s3, s2, 8")
    A(f"s_add_u32 s3, s3, {W_F1}")
    A("s_mov_b64 exec, 0xffff")
    A(f"buffer_store_dwordx4 {v(ACC,4)}, v14, s[{SWS}:{SWS+3}], s3 offen sc1")
    A("s_lshl_b32 s3, s2, 7")
    A(f"s_add_u32 s3, s3, {W_F2}")
    A("s_mov_b64 exec, 0xff")
    A(f"buffer_store_dwordx4 {v(ACC,4)}, v14, s[{SWS}:{SWS+3}], s3 offen sc1")
    A("s_mov_b64 exec, -1")
    A(f"s_branch {N}_p0x")
    A.label(f"{N}_p0ld")
    for i in range(3):
        A(f"s_lshl_b32 s3, s{49+i}, 10")
        A(f"buffer_load_dwordx4 {v(FR+4*i,4)}, v14, s[{SX}:{SX+3}], s3 offen")
    A(f"s_cmp_eq_u32 {ABO}, 1")
    A("s_cselect_b32 s3, 11, 3")
    A(f"s_mul_i32 s52, {RB}, s3")
    A(f"s_lshl_b32 s3, {U0}, 4")
    A("s_add_u32 s52, s52, s3")
    A("s_lshl_b32 s3, s19, 2")
    A(f"s_cmp_eq_u32 {ABO}, 1")
    A("s_cselect_b32 s3, s3, s19")
    for i in range(4):
        A(f"s_add_u32 s{53+i}, s3, {i}")
        A(f"s_min_u32 s{53+i}, s{53+i}, 10")
        A(f"s_add_u32 s{53+i}, s{53+i}, s52")
    A("s_lshl_b32 s3, s53, 10")
    A(f"buffer_load_dwordx4 {v(FR+12,4)}, v14, s[{SW}:{SW+3}], s3 offen")
    A(f"s_cmp_eq_u32 {ABO}, 1")
    A(f"s_cbranch_scc0 {N}_p0x")
    for i in range(1, 4):
        A(f"s_lshl_b32 s3, s{53+i}, 10")
        A(f"buffer_load_dwordx4 {v(FR+12+4*i,4)}, v14, s[{SW}:{SW+3}], s3 offen")
    A.label(f"{N}_p0x")
    if touch:
        srd(A, SI, "s6", "s7", 512 * 3584)
        A("s_mul_i32 s3, s2, 7168")
        A("s_lshl_b32 s18, s19, 11")
        A("s_add_u32 s3, s3, s18")
        A(f"buffer_load_dwordx4 v[236:239], v14, s[{SI}:{SI+3}], s3 offen {taux}")
        A(f"buffer_load_dwordx4 v[240:243], v14, s[{SI}:{SI+3}], s3 offen offset:1024 {taux}")
    A("v_lshrrev_b32 v28, 2, v26")
    A("v_and_b32 v29, 3, v26")
    A("v_lshl_add_u32 v28, v28, 3, v29")
    A("s_lshl_b32 s3, s19, 5")
    A("v_add_u32 v28, s3, v28")
    A("v_lshlrev_b32 v28, 7, v28")
    A("v_bfe_u32 v29, v26, 1, 1")
    A("v_bfe_u32 v25, v26, 3, 1")
    A("v_lshl_or_b32 v29, v25, 1, v29")
    A("v_bfe_u32 v25, v26, 2, 1")
    A("v_lshl_or_b32 v29, v25, 2, v29")
    A("v_xor_b32 v29, v29, v27")
    A("v_lshl_add_u32 v2, v29, 4, v28")
    A("v_xor_b32 v3, 32, v2")
    A("v_add_u32 v3, 512, v3")
    A("v_xor_b32 v4, 64, v2")
    A("v_xor_b32 v5, 64, v3")
    A("v_bfe_u32 v29, v26, 1, 3")
    A("v_xor_b32 v29, v29, v27")
    A("v_lshlrev_b32 v28, 7, v26")
    A("v_lshl_add_u32 v6, v29, 4, v28")
    A(f"v_add_u32 v10, {LW}, v6")
    A(f"v_add_u32 v6, {LD}, v6")
    A("v_xor_b32 v7, 32, v6")
    A("v_xor_b32 v8, 64, v6")
    A("v_xor_b32 v9, 64, v7")
    A("v_xor_b32 v11, 32, v10")
    A("v_xor_b32 v12, 64, v10")
    A("v_xor_b32 v13, 64, v11")
    A(f"s_cmp_eq_u32 {ABO}, 1")
    A(f"s_cbranch_scc1 {N}_natr")
    A("v_lshrrev_b32 v28, 2, v26")
    A("v_lshl_add_u32 v28, v27, 3, v28")
    A("v_lshlrev_b32 v28, 7, v28")
    A("v_and_b32 v29, 3, v26")
    A("v_lshl_add_u32 v28, v29, 3, v28")
    A("v_bfe_u32 v29, v26, 3, 1")
    A("v_and_b32 v25, 1, v27")
    A("v_lshl_or_b32 v29, v25, 1, v29")
    A("v_xor_b32 v29, s19, v29")
    A("v_lshl_add_u32 v10, v29, 5, v28")
    A(f"v_add_u32 v10, {LW}, v10")
    for tt in range(1, 4):
        A(f"v_xor_b32 v{10+tt}, {tt*32}, v10")
    A.label(f"{N}_natr")
    for i in range(96):
        A(f"v_mov_b32 v{ACC+i}, 0")
    for i in range(4):
        A(f"v_mov_b32 v{ONE+i}, 0x3f803f80")
    A("s_cmp_eq_u32 s19, 3")
    A(f"s_cbranch_scc1 {N}_p0done")
    PV = 84
    for i in range(10):
        A(f"v_mov_b32 v{PV+i}, 0")
    A(f"s_lshl_b32 s3, {RB}, 10")
    A(f"s_add_u32 s3, s3, {W_RS}")
    for i in range(3):
        A(f"s_and_b32 s{49+i}, s{49+i}, 127")
        A(f"s_lshl_b32 s{49+i}, s{49+i}, 2")
        A(f"s_add_u32 s{49+i}, s{49+i}, s3")
    A(f"s_lshl_b32 s3, {ISB}, 11")
    A(f"s_add_u32 s3, s3, {W_CSD}")
    for i in range(4):
        A(f"s_lshl_b32 s{53+i}, s{53+i}, 2")
        A(f"s_add_u32 s{53+i}, s{53+i}, s3")
    A("s_waitcnt vmcnt(0)")
    for d in range(4):
        for i in range(3):
            A(f"v_dot2c_f32_bf16 v{PV+2*i}, v{FR+4*i+d}, v{ONE}")
            A(f"v_dot2c_f32_bf16 v{PV+2*i+1}, v{FR+4*i+d}, v{FR+4*i+d}")
        for i in range(4):
            A(f"v_dot2c_f32_bf16 v{PV+6+i}, v{FR+12+4*i+d}, v{ONE}")
    A("s_nop 2")
    for dpp in ("row_ror:8 row_mask:0xf", "row_ror:4 row_mask:0xf", "row_ror:2 row_mask:0xf", "row_ror:1 row_mask:0xf",
                "row_bcast:15 row_mask:0xa", "row_bcast:31 row_mask:0xc"):
        for i in range(10):
            A(f"v_add_f32_dpp v{PV+i}, v{PV+i}, v{PV+i} {dpp} bank_mask:0xf")
    for i in range(3):
        A(f"v_mul_f32 v{PV+2*i}, 0x3b000000, v{PV+2*i}")
        A(f"v_mul_f32 v{PV+2*i+1}, 0x3b000000, v{PV+2*i+1}")
    for i in range(3):
        A(f"v_fma_f32 v{PV+2*i+1}, -v{PV+2*i}, v{PV+2*i}, v{PV+2*i+1}")
    for i in range(3):
        A(f"v_add_f32 v{PV+2*i+1}, {EPS}, v{PV+2*i+1}")
    for i in range(3):
        A(f"v_rsq_f32 v{PV+2*i+1}, v{PV+2*i+1}")
    A("v_mov_b32 v28, 0")
    A("s_mov_b32 exec_lo, 0")
    A("s_mov_b32 exec_hi, 0x80000000")
    for i in range(3):
        A(f"buffer_store_dword v{PV+2*i+1}, v28, s[{SWS}:{SWS+3}], s{49+i} offen sc1")
        A(f"buffer_store_dword v{PV+2*i}, v28, s[{SWS}:{SWS+3}], s{49+i} offen offset:512 sc1")
    A(f"buffer_store_dword v{PV+6}, v28, s[{SWS}:{SWS+3}], s53 offen sc1")
    A(f"s_cmp_eq_u32 {ABO}, 1")
    A(f"s_cbranch_scc0 {N}_p0s")
    for i in range(1, 4):
        A(f"buffer_store_dword v{PV+6+i}, v28, s[{SWS}:{SWS+3}], s{53+i} offen sc1")
    A.label(f"{N}_p0s")
    A("s_mov_b64 exec, -1")
    A.label(f"{N}_p0done")
    A("v_lshlrev_b32 v28, 2, v1")
    A("s_waitcnt vmcnt(0)")
    A("s_barrier")
    A("s_cmp_eq_u32 s19, 3")
    A(f"s_cbranch_scc0 {N}_nb7")
    A("s_mov_b64 exec, 1")
    A(f"buffer_store_byte v24, v{ACC}, s[{SDB}:{SDB+3}], s2 offen sc1")
    A("s_mov_b64 exec, -1")
    A.label(f"{N}_nb7")
    A(f"s_mul_i32 s3, {U0}, 11")
    A("s_lshr_b32 s3, s3, 5")
    A("s_lshl_b32 s3, s3, 2")
    A("s_lshr_b32 s18, 0xA9765210, s3")
    A("s_lshr_b32 s3, 0xC9865410, s3")
    A("s_and_b32 s18, s18, 15")
    A("s_and_b32 s3, s3, 15")
    A("v_mov_b32 v22, s18")
    A("v_mov_b32 v23, s3")
    A("v_cmp_gt_u32 vcc, 16, v1")
    A("v_lshrrev_b32 v21, 2, v26")
    A("v_lshlrev_b32 v21, 14, v21")
    A("v_cndmask_b32 v22, v23, v22, vcc")
    A("v_lshl_add_u32 v21, v22, 6, v21")
    A("v_and_b32 v22, 3, v26")
    A("v_lshl_add_u32 v21, v22, 10, v21")
    A(f"s_lshl_b32 s3, {ISB}, 13")
    A(f"s_lshl2_add_u32 s3, {RB}, s3")
    A(f"s_add_u32 s3, s3, {W_F1}")
    A("v_add_u32 v252, s3, v21")
    A("v_lshrrev_b32 v21, 1, v26")
    A("v_lshlrev_b32 v21, 13, v21")
    A("v_and_b32 v22, 1, v26")
    A(f"v_mad_u32_u24 v21, v22, {7*256}, v21") if False else None
    A("v_mul_u32_u24 v22, 0x700, v22")
    A("v_add_u32 v21, v21, v22")
    A(f"s_lshr_b32 s3, {CG}, 1")
    A("s_lshl_b32 s3, s3, 8")
    A(f"s_and_b32 s18, {CG}, 1")
    A("s_lshl_b32 s18, s18, 6")
    A("s_add_u32 s3, s3, s18")
    A(f"s_lshl2_add_u32 s3, {RB}, s3")
    A(f"s_add_u32 s3, s3, {W_F1 + 16*256}")
    A("v_add_u32 v253, s3, v21")
    A(f"s_cmp_eq_u32 {ABO}, 1")
    A(f"s_cbranch_scc1 {N}_cab")

    def special(b, tag):
        if b == tbl_at:
            A("s_cmp_eq_u32 s19, 3")
            A(f"s_cbranch_scc0 {N}_{tag}_ntl")
            A(f"buffer_load_dword v20, v28, s[{SDB}:{SDB+3}], 0 offen")
            A.label(f"{N}_{tag}_ntl")
        if b == rank_at:
            A("s_cmp_eq_u32 s19, 3")
            A(f"s_cbranch_scc0 {N}_{tag}_nrk")
            A(f"s_mov_b32 s18, {SPIN}")
            A.label(f"{N}_{tag}_rk0")
            A("s_waitcnt vmcnt(0)")
            A("v_and_b32 v21, 0x0f0f0f0f, v20")
            A("v_add_u32 v22, 0x0f0f0f0f, v21")
            A("v_and_b32 v22, 0x10101010, v22")
            A("v_cmp_ne_u32 vcc, 0x10101010, v22")
            A("s_sub_u32 s18, s18, 1")
            A("s_cmp_eq_u64 vcc, 0")
            A(f"s_cbranch_scc1 {N}_{tag}_rk1")
            A("s_cmp_le_i32 s18, 0")
            A(f"s_cbranch_scc1 {N}_{tag}_rk1")
            A("s_sleep 8")
            A(f"buffer_load_dword v20, v28, s[{SDB}:{SDB+3}], 0 offen sc1")
            A(f"s_branch {N}_{tag}_rk0")
            A.label(f"{N}_{tag}_rk1")
            A(f"s_mov_b32 {RANK}, 0")
            for j in range(4):
                A(f"v_bfe_u32 v22, v21, {8*j}, 4")
                A(f"v_lshl_add_u32 v22, v22, 8, v28")
                A(f"v_add_u32 v22, {j}, v22")
                A(f"v_cmp_gt_u32 vcc, {KEY}, v22")
                A("s_nop 0")
                A("s_bcnt1_i32_b64 s3, vcc")
                A(f"s_add_u32 {RANK}, {RANK}, s3")
            A(f"v_mov_b32 v20, {RANK}")
            for j in range(3):
                A(f"v_mov_b32 v{21+j}, 0")
            A(f"v_mov_b32 v24, {LMISC}")
            A("ds_write_b128 v24, v[20:23]")
            A("s_waitcnt lgkmcnt(0)")
            A.label(f"{N}_{tag}_nrk")

    def p1_compute(ztype):
        tag = "cz" if ztype else "cab"
        A.label(f"{N}_{tag}")
        lg = Cnt(A, "lgkmcnt", 15)
        if ztype:
            tiles = [("z2", i) for i in range(4)] + [("z1", i) for i in range(4)] + [("ab", i) for i in range(3)]
        else:
            tiles = [("ab", i) for i in range(11)]
        def reads(ss):
            st, sub = ss >> 1, ss & 1
            sl = st & 3
            f = FR + FS * (ss & 1)
            r = []
            def mk(s_, t_):
                r.append((s_, t_))
            def wr(w):
                k, i = tiles[w]
                fw = f + 8 + 4 * w
                if k == "ab":
                    if ztype:
                        mk(f"ds_read_b128 {v(fw,4)}, v{6+2*sub+(i&1)} offset:{sl*6144 + i*2048}", (ss, "w", w))
                    elif i < 8:
                        mk(f"ds_read_b128 {v(fw,4)}, v{10+2*sub+(i&1)} offset:{sl*16384 + i*2048}", (ss, "w", w))
                    else:
                        mk(f"ds_read_b128 {v(fw,4)}, v{6+2*sub+(i&1)} offset:{sl*6144 + (i-8)*2048}", (ss, "w", w))
                else:
                    o = sl * 16384 + (8192 if k == "z1" else 0) + sub * 4096
                    mk(f"ds_read_b64_tr_b16 {v(fw,2)}, v{10+i} offset:{o}", (ss, "w", w))
                    mk(f"ds_read_b64_tr_b16 {v(fw+2,2)}, v{10+i} offset:{o+512}", (ss, "w", w))
            mk(f"ds_read_b128 {v(f,4)}, v{2+2*sub} offset:{sl*16384}", (ss, "x", 0))
            wr(0)
            mk(f"ds_read_b128 {v(f+4,4)}, v{3+2*sub} offset:{sl*16384}", (ss, "x", 1))
            for w in range(1, len(tiles)):
                wr(w)
            return r
        def accof(w, T):
            k, i = tiles[w]
            if k == "z1":
                return ACC + 32 + (T * 4 + i) * 4
            return ACC + (w * 2 + T) * 4
        ml = []
        for w in range(len(tiles)):
            ml += [(w, 0), (w, 1)]
            if ztype and w in (0, 4):
                ml.append((w, "c"))
        def mf(ss, idx):
            f = FR + FS * (ss & 1)
            w, T = ml[idx]
            wa = v(f + 8 + 4 * w, 4)
            lg.need((ss, "w", w))
            if T == "c":
                c = CSA + (4 if w else 0)
                A(f"v_mfma_f32_16x16x32_bf16 {v(c,4)}, {v(ONE,4)}, {wa}, {v(c,4)}")
                return
            lg.need((ss, "x", T))
            ac = accof(w, T)
            xa = v(f + 4 * T, 4)
            if tiles[w][0] == "z1":
                A(f"v_mfma_f32_16x16x32_bf16 {v(ac,4)}, {wa}, {xa}, {v(ac,4)}")
            else:
                A(f"v_mfma_f32_16x16x32_bf16 {v(ac,4)}, {xa}, {wa}, {v(ac,4)}")
        nm = len(ml)
        special(0, tag)
        if stamp:
            st2(A, 1)
        A("s_barrier")
        if stamp:
            st2(A, 2)
            lg.all()
        for s_, t_ in reads(0):
            A(s_); lg.op(t_)
        for ss in range(16):
            nxt = reads(ss + 1) if ss < 15 else []
            first = 0
            if ss & 1:
                first = 4
            ri = 0
            for i in range(nm):
                mf(ss, i)
                if (ss & 1) and i == 3 and ss < 15:
                    lg.all()
                    special((ss >> 1) + 1, tag)
                    A("s_barrier")
                    if stamp:
                        st2(A, 2 + (ss >> 1) + 1)
                        lg.all()
                if i >= first - 1:
                    slots = nm - 1 - i
                    rem = len(nxt) - ri
                    k = 1 if rem <= slots else rem - slots
                    k = min(max(k, 1), 2) if slots > 0 else rem
                    for _ in range(min(k, rem)):
                        A(nxt[ri][0]); lg.op(nxt[ri][1]); ri += 1
            assert ri == len(nxt)
        if stamp:
            st2(A, 10)
        RQ = FR
        CZ = 48
        AC = 56
        ZR = 80
        ZC = 84
        TT = 100
        SS = 116
        nab = 3 if ztype else 11
        w0 = 8 if ztype else 0
        A("s_lshl_b32 s3, s19, 7")
        A(f"s_add_u32 s3, s3, {LRM}")
        A("v_lshl_add_u32 v28, v27, 5, s3")
        A(f"v_lshlrev_b32 v25, 2, v26")
        if ztype:
            A("s_lshl_b32 s18, s19, 6")
            A(f"s_add_u32 s18, s18, {LCSW}")
            A("v_add_u32 v24, s18, v25")
            A("v_lshl_add_u32 v23, v27, 4, s18")
            A("v_lshrrev_b32 v22, 2, v26")
            A("v_and_b32 v21, 3, v26")
            A("v_lshl_add_u32 v22, v22, 3, v21")
            A("v_lshl_add_u32 v22, v22, 2, s3")
            A(f"v_mov_b32 v30, {f32(C1)}")
            A(f"v_mov_b32 v31, {f32(C0)}")
            A(f"ds_write_b32 v24, v{CSA}")
            A(f"ds_write_b32 v24, v{CSA+4} offset:256")
        A(f"s_lshl_b32 s48, {RB}, 2")
        A("s_add_u32 s48, s48, s19")
        A("s_lshl_b32 s49, s48, 13")
        A(f"s_mul_i32 s50, {ISB}, {WS_B - WS_A}")
        A("s_add_u32 s50, s50, s49")
        A(f"s_add_u32 s50, s50, {WS_A}")
        A("s_waitcnt lgkmcnt(0)")
        A("s_barrier")
        for h in range(2):
            A(f"ds_read_b128 {v(RQ+4*h,4)}, v28 offset:{h*16}")
            A(f"ds_read_b128 {v(RQ+8+4*h,4)}, v28 offset:{512+h*16}")
        if ztype:
            for i in range(4):
                A(f"v_xor_b32 v21, {i*64}, v24")
                A(f"ds_read_b32 v{CZ+2*i}, v21")
        A(f"v_add_u32 v25, {LCSD}, v25")
        for i in range(nab):
            A(f"ds_read_b32 v{AC+2*i}, v25 offset:{i*64}")
        if ztype:
            for T in range(2):
                A(f"ds_read2_b32 {v(ZR+2*T,2)}, v22 offset0:{4*T} offset1:{128+4*T}")
            for i in range(4):
                A(f"v_xor_b32 v21, {i*64}, v23")
                A(f"ds_read_b128 {v(ZC+4*i,4)}, v21 offset:256")

        def fold(ac, cs):
            for d in range(4):
                A(f"v_pk_fma_f32 {v(ac+2*d,2)}, {v(RQ+8+2*d,2)}, {v(cs,2)}, {v(ac+2*d,2)} op_sel_hi:[1,0,1] neg_lo:[0,1,0] neg_hi:[0,1,0]")
            for d in range(4):
                A(f"v_pk_mul_f32 {v(ac+2*d,2)}, {v(ac+2*d,2)}, {v(RQ+2*d,2)}")
        def gelu(ac, tm):
            pr = [ac, ac + 2, ac + 4, ac + 6]
            for i, r in enumerate(pr):
                A(f"v_pk_mul_f32 {v(tm+2*i,2)}, {v(r,2)}, {v(r,2)}")
            for i, r in enumerate(pr):
                A(f"v_pk_fma_f32 {v(tm+2*i,2)}, {v(tm+2*i,2)}, v[30:31], v[30:31] op_sel:[0,0,1] op_sel_hi:[1,0,1]")
            for i, r in enumerate(pr):
                A(f"v_pk_mul_f32 {v(tm+2*i,2)}, {v(tm+2*i,2)}, {v(r,2)}")
            for i in range(8):
                A(f"v_exp_f32 v{tm+i}, v{tm+i}")
            for i, r in enumerate(pr):
                A(f"v_pk_add_f32 {v(tm+2*i,2)}, {v(tm+2*i,2)}, 1.0 op_sel_hi:[1,0]")
            for i in range(8):
                A(f"v_rcp_f32 v{tm+i}, v{tm+i}")
            for i, r in enumerate(pr):
                A(f"v_pk_mul_f32 {v(r,2)}, {v(tm+2*i,2)}, {v(r,2)}")
        def cvt(ac):
            for d in range(4):
                A(f"v_cvt_pk_bf16_f32 v{ac+d}, v{ac+2*d}, v{ac+2*d+1}")
        def ab_epi():
            for i in range(nab):
                ac = accof(w0 + i, 0)
                A(f"s_add_u32 s3, {U0}, {i}")
                A("s_lshr_b32 s18, s3, 3")
                A("s_lshl_b32 s18, s18, 19")
                A("s_and_b32 s3, s3, 7")
                A("s_lshl_b32 s3, s3, 10")
                A("s_add_u32 s3, s3, s18")
                A("s_add_u32 s3, s3, s50")
                fold(ac, AC + 2 * i)
                cvt(ac)
                A(f"buffer_store_dwordx4 {v(ac,4)}, v14, s[{SWS}:{SWS+3}], s3 offen {st_aux}")
        def flag(off):
            L = f"{N}_{tag}_fl{off}"
            A(f"v_mov_b32 v21, {LMISC + (12 if off else 8)}")
            A("v_mov_b32 v20, 1")
            A("s_mov_b64 exec, 1")
            A("ds_add_rtn_u32 v20, v21, v20")
            A("s_waitcnt lgkmcnt(0)")
            A("v_readfirstlane_b32 s3, v20")
            A(f"s_mov_b32 exec_lo, {'0xffff' if off else '-1'}")
            A("s_cmp_eq_u32 s3, 3")
            A(f"s_cbranch_scc0 {L}")
            A(f"buffer_store_dword v{ONE}, v{253 if off else 252}, s[{SWS}:{SWS+3}], 0 offen sc1")
            A.label(L)
            A("s_mov_b64 exec, -1")
        if not ztype:
            A("s_waitcnt lgkmcnt(0)")
            A("s_nop 4")
            ab_epi()
            A("s_waitcnt vmcnt(0)")
            flag(0)
            return
        A("s_mov_b32 s94, 0xaaaaaaaa")
        A("s_mov_b32 s95, 0xaaaaaaaa")
        A("s_mov_b32 s96, 0xcccccccc")
        A("s_mov_b32 s97, 0xcccccccc")
        A(f"s_waitcnt lgkmcnt({nab + 6})")
        for i in range(4):
            ac = accof(i, 0)
            fold(ac, CZ + 2 * i)
            gelu(ac, TT + (i & 1) * 8)
            for d in range(4):
                if i == 0:
                    A(f"v_pk_mul_f32 {v(SS+8+2*d,2)}, {v(ac+2*d,2)}, {v(ac+2*d,2)}")
                else:
                    A(f"v_pk_fma_f32 {v(SS+8+2*d,2)}, {v(ac+2*d,2)}, {v(ac+2*d,2)}, {v(SS+8+2*d,2)}")
                if i == 1:
                    A(f"v_pk_add_f32 {v(SS+2*d,2)}, {v(accof(0,0)+2*d,2)}, {v(ac+2*d,2)}")
                elif i > 1:
                    A(f"v_pk_add_f32 {v(SS+2*d,2)}, {v(SS+2*d,2)}, {v(ac+2*d,2)}")
        A("s_nop 1")
        for i in range(8):
            A(f"v_add_f32_dpp v{SS+i}, v{SS+i}, v{SS+i} row_ror:8 row_mask:0xf bank_mask:0x3")
        for i in range(8):
            A(f"v_add_f32_dpp v{SS+i}, v{SS+8+i}, v{SS+8+i} row_ror:8 row_mask:0xf bank_mask:0xc")
        for i in range(4):
            A(f"v_add_f32_dpp v{SS+i}, v{SS+i}, v{SS+i} row_half_mirror row_mask:0xf bank_mask:0x5")
        for i in range(4):
            A(f"v_add_f32_dpp v{SS+i}, v{SS+4+i}, v{SS+4+i} row_half_mirror row_mask:0xf bank_mask:0xa")
        for dpp in ("quad_perm:[1,0,3,2]", "quad_perm:[2,3,0,1]"):
            for i in range(4):
                A(f"v_add_f32_dpp v{SS+i}, v{SS+i}, v{SS+i} {dpp} row_mask:0xf bank_mask:0xf")
        A(f"v_cndmask_b32 v{SS}, v{SS}, v{SS+1}, s[94:95]")
        A(f"v_cndmask_b32 v{SS+2}, v{SS+2}, v{SS+3}, s[94:95]")
        A(f"v_cndmask_b32 v{SS}, v{SS}, v{SS+2}, s[96:97]")
        A("v_lshlrev_b32 v28, 2, v1")
        A("s_lshl_b32 s3, s19, 8")
        A(f"v_or_b32 v{SS}, 1, v{SS}")
        A("v_add_u32 v28, s3, v28")
        A(f"buffer_store_dword v{SS}, v28, s[{SWS}:{SWS+3}], {STO} offen sc1")
        if stamp:
            st2(A, 11)
        A("s_waitcnt lgkmcnt(0)")
        ab_epi()
        A("v_bfe_u32 v20, v26, 3, 1")
        A("v_mul_u32_u24 v20, 28672, v20")
        A("v_lshl_add_u32 v20, v27, 8, v20")
        A("v_bfe_u32 v21, v26, 2, 1")
        A("v_lshl_add_u32 v20, v21, 7, v20")
        A("v_and_b32 v21, 3, v26")
        A("v_lshl_add_u32 v22, v21, 4, v20")
        A("s_mul_i32 s52, s48, 56")
        A(f"s_lshl_b32 s3, {CG}, 1")
        A("s_add_u32 s52, s52, s3")
        A("s_lshr_b32 s3, s19, 1")
        A("s_add_u32 s53, s52, s3")
        A("s_xor_b32 s3, s3, 1")
        A("s_add_u32 s54, s52, s3")
        A("s_lshl_b32 s53, s53, 10")
        A("s_lshl_b32 s54, s54, 10")
        A(f"s_add_u32 s53, s53, {WS_Z1}")
        A(f"s_add_u32 s54, s54, {WS_Z1}")
        A(f"s_lshl_b32 s56, {RB}, 14")
        A(f"s_add_u32 s56, s56, {W_ST}")
        for i in range(1, 4):
            A(f"s_add_u32 s{56+i}, s56, {4096*i}")
        PT = 232
        def polls():
            for c in range(14):
                A(f"buffer_load_dword v{PT+c}, v28, s[{SWS}:{SWS+3}], s{56+c//4} offen offset:{(c%4)*1024} sc1")
        A("s_and_b32 s3, s19, 1")
        A("s_cmp_eq_u32 s3, 0")
        for g in range(4):
            T, e = g >> 1, g & 1
            ac = ACC + 32 + g * 8
            rm = v(ZR + 2 * T, 2)
            for i in range(4):
                r = ac + 2 * i
                cs = ZC + 4 * (2 * e + (i >> 1)) + 2 * (i & 1)
                A(f"v_pk_fma_f32 {v(r,2)}, {v(cs,2)}, {rm}, {v(r,2)} op_sel:[0,1,0] op_sel_hi:[1,1,1] neg_lo:[0,1,0] neg_hi:[0,1,0]")
            for i in range(4):
                r = ac + 2 * i
                A(f"v_pk_mul_f32 {v(r,2)}, {v(r,2)}, {rm} op_sel_hi:[1,0]")
            gelu(ac, TT + (g & 1) * 8)
            cvt(ac)
            A(f"s_cbranch_scc1 {N}_nsw{g}")
            A(f"v_swap_b32 v{ac}, v{ac+2}")
            A(f"v_swap_b32 v{ac+1}, v{ac+3}")
            A.label(f"{N}_nsw{g}")
            A(f"buffer_store_dwordx4 {v(ac,4)}, v22, s[{SWS}:{SWS+3}], s{53+e} offen offset:{T*64} {st_aux}")
        A(f"s_mov_b32 s18, {SPIN}")
        polls()
        A(f"s_lshr_b32 s52, {CG}, 1")
        A("s_lshl_b32 s52, s52, 19")
        A(f"s_and_b32 s3, {CG}, 1")
        A("s_lshl_b32 s3, s3, 12")
        A("s_add_u32 s52, s52, s3")
        A("s_add_u32 s52, s52, s49")
        A(f"s_add_u32 s52, s52, {WS_Z2}")
        A("s_lshl_b32 s3, s19, 10")
        A("v_xor_b32 v22, s3, v14")
        A("s_waitcnt vmcnt(0)")
        flag(0)
        A(f"s_branch {N}_pchk")
        A.label(f"{N}_poll")
        polls()
        A("s_waitcnt vmcnt(0)")
        A.label(f"{N}_pchk")
        A(f"v_and_b32 v21, v{PT}, v{PT+1}")
        for c in range(2, 14, 2):
            A(f"v_bitop3_b32 v21, v21, v{PT+c}, v{PT+c+1} bitop3:0x80")
        A("v_and_b32 v21, 1, v21")
        A("v_cmp_eq_u32 vcc, 0, v21")
        A("s_sub_u32 s18, s18, 1")
        A("s_cmp_eq_u64 vcc, 0")
        A(f"s_cbranch_scc1 {N}_pok")
        A("s_cmp_gt_i32 s18, 0")
        A(f"s_cbranch_scc1 {N}_poll")
        A.label(f"{N}_pok")
        if stamp:
            st2(A, 12)
        for c in range(3):
            A(f"v_pk_add_f32 {v(PT+2*c,2)}, {v(PT+2*c,2)}, {v(PT+6+2*c,2)}")
        A(f"v_pk_add_f32 {v(PT,2)}, {v(PT,2)}, {v(PT+12,2)}")
        A(f"v_pk_add_f32 {v(PT+2,2)}, {v(PT+2,2)}, {v(PT+4,2)}")
        A(f"v_pk_add_f32 {v(PT,2)}, {v(PT,2)}, {v(PT+2,2)}")
        inv = f32(1.0 / 896)
        A(f"v_add_f32 v{PT}, v{PT}, v{PT+1}")
        A(f"v_mul_f32 v{PT}, {inv}, v{PT}")
        A("s_nop 1")
        A(f"v_mov_b32_dpp v{PT+1}, v{PT} row_ror:8 row_mask:0xf bank_mask:0xf")
        A(f"v_fma_f32 v{PT+1}, -v{PT}, v{PT}, v{PT+1}")
        A(f"v_add_f32 v{PT+1}, {EPS}, v{PT+1}")
        A(f"v_rsq_f32 v{PT+1}, v{PT+1}")
        A("s_nop 0")
        A(f"v_mul_f32 v{PT}, -v{PT}, v{PT+1}")
        A("s_nop 0")
        for i in range(8):
            A(f"v_mov_b32_dpp v{RQ+i}, v{PT+1} row_newbcast:{i} row_mask:0xf bank_mask:0xf")
        for i in range(8):
            A(f"v_mov_b32_dpp v{RQ+8+i}, v{PT} row_newbcast:{i} row_mask:0xf bank_mask:0xf")
        for i in range(4):
            ac = accof(i, 0)
            for d in range(4):
                A(f"v_pk_fma_f32 {v(ac+2*d,2)}, {v(ac+2*d,2)}, {v(RQ+2*d,2)}, {v(RQ+8+2*d,2)}")
            cvt(ac)
            if i:
                A(f"v_xor_b32 v{22+i}, {i*1024}, v22")
            A(f"buffer_store_dwordx4 {v(ac,4)}, v{22+i}, s[{SWS}:{SWS+3}], s52 offen {st_aux}")
        A("s_waitcnt vmcnt(0)")
        flag(16)
        A(f"s_branch {N}_c_p2")

    p1_compute(True)
    p1_compute(False)
    A.label(f"{N}_c_p2")
    if stamp:
        st2(A, 13)
        st2_flush(A, range(1, 14), "s19", SWS)
    if "2" not in phases:
        A.label(L_exit)
        A("s_endpgm")
        return dict(name=name, vgpr=256, sgpr=102, grid=256, block=512, lds=LDS_TOTAL)
    G(1)
    A("s_load_dwordx2 s[58:59], s[0:1], 64")
    A("s_load_dwordx2 s[94:95], s[0:1], 72", "s_load_dwordx2 s[96:97], s[0:1], 80")
    A(f"v_mov_b32 v8, {LMISC}")
    A("ds_read_b32 v9, v8")
    FR2, AC2, Z1, BSP, TP = 16, 80, 144, 176, 200
    WI, WJ, FL2, CN2 = "s56", "s57", "s68", "s69"
    A(f"s_and_b32 {WI}, s19, 1")
    A(f"s_lshr_b32 {WJ}, s19, 1")
    A("v_bfe_u32 v17, v1, 1, 3")
    A("v_xor_b32 v16, v27, v17")
    A(f"s_lshl_b32 s3, {WJ}, 13")
    A("v_lshlrev_b32 v18, 7, v26")
    A("v_add_u32 v18, s3, v18")
    A("v_lshl_add_u32 v2, v16, 4, v18")
    A("v_xor_b32 v3, 64, v2")
    A(f"s_lshl_b32 s3, {WI}, 12")
    A("s_add_u32 s3, s3, 65536")
    A("v_add_u32 v4, s3, v14")
    for i in range(64):
        A(f"v_mov_b32 v{AC2+i}, 0")
    A("s_waitcnt lgkmcnt(0)")
    A(f"v_readfirstlane_b32 {RANK}, v9")
    srd(A, SP, "s58", "s59", 4096)
    srd(A, SI, "s94", "s95", 896 * 1024)
    srd(A, SO, "s96", "s97", 2048 * 1024)
    A(f"s_and_b32 {RANK}, {RANK}, 255")
    p2_decode()
    A(f"s_cmp_ge_u32 {SL}, 30")
    A(f"s_cbranch_scc1 {N}_tr")
    A(f"s_lshl1_add_u32 {FL2}, {TT}, {WJ}")
    A(f"s_lshl_b32 {FL2}, {FL2}, 10")
    A(f"s_lshl1_add_u32 s3, {NT}, {WI}")
    A("s_lshl_b32 s18, s3, 7")
    A(f"s_lshl2_add_u32 s18, {TY}, s18")
    A("s_add_u32 s18, s18, 56")
    A("s_lshl_b32 s3, s3, 2")
    A(f"s_cmp_eq_u32 {TY}, 2")
    A("s_cselect_b32 s3, s3, s18")
    A("s_cselect_b32 s67, 0xff, 1")
    A(f"s_add_u32 {FL2}, {FL2}, s3")
    A(f"s_add_u32 {FL2}, {FL2}, {W_F2}")
    A(f"s_cmp_eq_u32 {TY}, 2")
    A("s_cselect_b32 s18, 28, 16")
    A(f"s_lshl_b32 s48, {TT}, 3")
    A(f"s_lshl2_add_u32 s48, {WJ}, s48")
    A("s_mul_i32 s48, s48, s18")
    A(f"s_lshl2_add_u32 s48, {NT}, s48")
    A(f"s_lshl1_add_u32 s48, {WI}, s48")
    A("s_lshl_b32 s48, s48, 10")
    A("s_lshl_b32 s18, s18, 10")
    A(f"s_add_u32 s52, s48, {WS_Z1}")
    A(f"s_mul_i32 s3, {TY}, {WS_YIM - WS_YRE}")
    A(f"s_add_u32 s3, s3, {WS_YRE}")
    A("s_add_u32 s48, s48, s3")
    for j in range(1, 4):
        A(f"s_add_u32 s{48+j}, s{47+j}, s18")
        A(f"s_add_u32 s{52+j}, s{51+j}, s18")
    assert WS_H - WS_YIM == WS_YIM - WS_YRE
    A(f"s_lshl_b32 s3, {TT}, 7")
    A(f"s_lshl_b32 s18, {WJ}, 6")
    A("s_add_u32 s3, s3, s18")
    A("v_add_u32 v5, s3, v26")
    A("v_lshlrev_b32 v5, 1, v5")
    A(f"s_mov_b32 {CN2}, 8")
    order = [("P", 0), ("Q", 0), ("Q", 1), ("Q", 2), ("Q", 3), ("P", 1), ("P", 2), ("P", 3)]
    def read(sl, sub, n):
        f = FR2 + 32 * sub
        k, i = order[n]
        if k == "P":
            A(f"ds_read_b128 {v(f+4*i,4)}, v4 offset:{sl*16384 + sub*8192 + i*1024}")
        else:
            A(f"ds_read_b128 {v(f+16+4*i,4)}, v{2+sub} offset:{sl*16384 + i*2048}")
    def mfma(sub, idx):
        f = FR2 + 32 * sub
        it, jt = idx >> 2, idx & 3
        acc = AC2 + (jt * 4 + it) * 4
        A(f"v_mfma_f32_16x16x32_bf16 {v(acc,4)}, {v(f+4*it,4)}, {v(f+16+4*jt,4)}, {v(acc,4)}")
    G(2)
    A("s_barrier")
    G(3)
    for n in range(8):
        read(0, 0, n)
    A(f"s_cmp_lg_u32 {TY}, 2")
    A(f"s_cbranch_scc1 {N}_cloop")
    for jt in range(4):
        for p_ in range(2):
            A(f"buffer_load_dwordx4 {v(Z1 + (jt*2+p_)*4, 4)}, v14, s[{SWS}:{SWS+3}], s{52+jt} offen offset:{p_*1024}")
    for jt in range(4):
        A(f"buffer_load_ushort v{BSP+jt}, v5, s[{SP}:{SP+3}], 0 offen offset:{jt*32}")
    A.label(f"{N}_cloop")
    for sl in range(4):
        A("s_waitcnt lgkmcnt(0)")
        for i in range(16):
            mfma(0, i)
            if i < 8:
                read(sl, 1, i)
        A("s_waitcnt lgkmcnt(0)")
        mfma(1, 0)
        mfma(1, 1)
        A("s_barrier")
        for i in range(2, 16):
            mfma(1, i)
            if i - 2 < 8:
                read((sl + 1) & 3, 0, i - 2)
    A(f"s_sub_u32 {CN2}, {CN2}, 1")
    A(f"s_cmp_lg_u32 {CN2}, 0")
    A(f"s_cbranch_scc1 {N}_cloop")
    G(4)
    A(f"s_cmp_eq_u32 {TY}, 2")
    A(f"s_cbranch_scc1 {N}_epg")
    A("s_nop 4")
    for jt in range(4):
        for p_ in range(2):
            acc = AC2 + (jt * 4 + 2 * p_) * 4
            t = TP + (jt * 2 + p_) * 4
            for d in range(4):
                A(f"v_cvt_pk_bf16_f32 v{t+d}, v{acc+2*d}, v{acc+2*d+1}")
            A(f"buffer_store_dwordx4 {v(t,4)}, v14, s[{SWS}:{SWS+3}], s{48+jt} offen offset:{p_*1024} {st2_aux}")
    A(f"s_branch {N}_epx")
    A.label(f"{N}_epg")
    A("s_waitcnt vmcnt(0)")
    for jt in range(4):
        A(f"v_lshlrev_b32 v{184+2*jt}, 16, v{BSP+jt}")
    U = 192
    for jt in range(4):
        for p_ in range(2):
            acc = AC2 + (jt * 4 + 2 * p_) * 4
            z = Z1 + (jt * 2 + p_) * 4
            t = TP + (jt * 2 + p_) * 4
            for d in range(4):
                u = U + d * 2
                A(f"v_lshlrev_b32 v{u}, 16, v{z+d}")
                A(f"v_and_b32 v{u+1}, 0xffff0000, v{z+d}")
                A(f"v_pk_add_f32 {v(acc+2*d,2)}, {v(acc+2*d,2)}, {v(184+2*jt,2)} op_sel_hi:[1,0]")
            for d in range(4):
                u = U + d * 2
                A(f"v_pk_mul_f32 {v(acc+2*d,2)}, {v(acc+2*d,2)}, {v(u,2)}")
            for d in range(4):
                A(f"v_cvt_pk_bf16_f32 v{t+d}, v{acc+2*d}, v{acc+2*d+1}")
            A(f"buffer_store_dwordx4 {v(t,4)}, v14, s[{SWS}:{SWS+3}], s{48+jt} offen offset:{p_*1024} {st2_aux}")
    A.label(f"{N}_epx")
    p3_addr()
    A("s_waitcnt lgkmcnt(0)")
    p3_wot_loads()
    A("v_lshlrev_b32 v2, 7, v1")
    A("v_mov_b32 v3, 1")
    A("s_mov_b32 exec_lo, s67")
    A("s_mov_b32 exec_hi, 0")
    A("s_waitcnt vmcnt(28)")
    A(f"buffer_store_dword v3, v2, s[{SWS}:{SWS+3}], {FL2} offen sc1")
    A("s_mov_b64 exec, -1")
    G(5)
    A(f"s_branch {N}_p3")

    A.label(f"{N}_tr")
    A(f"s_and_b32 s48, {SL}, 1")
    A("s_mul_i32 s48, s48, 14")
    A("s_add_u32 s49, s48, 14")
    A("s_add_u32 s48, s48, s19")
    A("v_lshrrev_b32 v4, 3, v1")
    A("v_and_b32 v5, 7, v1")
    A("v_lshrrev_b32 v6, 5, v1")
    A("v_lshlrev_b32 v6, 1, v6")
    A("v_xor_b32 v5, v5, v6")
    A("v_xor_b32 v6, 4, v5")
    A("v_lshlrev_b32 v5, 4, v5")
    A("v_lshlrev_b32 v6, 4, v6")
    A("v_lshl_add_u32 v2, v4, 10, v5")
    A("v_lshl_add_u32 v3, v4, 10, v6")
    A("v_lshrrev_b32 v4, 4, v1")
    A("v_bfe_u32 v5, v1, 2, 2")
    A("v_lshl_add_u32 v5, v4, 2, v5")
    A("v_lshlrev_b32 v5, 7, v5")
    A("s_lshl_b32 s55, s19, 12")
    A("s_add_u32 s55, s55, 65536")
    A("v_add_u32 v5, s55, v5")
    A("v_and_b32 v6, 1, v1")
    A("v_lshl_add_u32 v5, v6, 3, v5")
    A("v_bfe_u32 v6, v1, 1, 1")
    A("v_lshlrev_b32 v7, 1, v4")
    for db in range(4):
        A(f"v_xor_b32 v12, {2*db}, v7")
        A("v_or_b32 v12, v12, v6")
        A(f"v_lshl_add_u32 v{8+db}, v12, 4, v5")
    A.label(f"{N}_trl")
    A("s_lshl_b32 s50, s48, 15")
    A(f"s_lshl_b32 s3, {XC}, 7")
    A("s_add_u32 s50, s50, s3")
    for m in range(4):
        A(f"s_add_u32 m0, s55, {m*1024}")
        A(f"s_add_u32 s3, s50, {m*8192}")
        A(f"buffer_load_dwordx4 v{2+(m&1)}, s[{SI}:{SI+3}], s3 offen lds")
    A(f"s_mul_i32 s50, {XC}, 112")
    A("s_add_u32 s50, s50, s48")
    A("s_lshl_b32 s50, s50, 10")
    A(f"s_add_u32 s50, s50, {WS_WOT}")
    A("s_waitcnt vmcnt(0)")
    for db in range(4):
        A(f"ds_read_b64_tr_b16 {v(16+4*db,2)}, v{8+db}")
        A(f"ds_read_b64_tr_b16 {v(18+4*db,2)}, v{8+db} offset:2048")
    A("s_waitcnt lgkmcnt(0)")
    for db in range(4):
        A(f"s_add_u32 s3, s50, {db*28*1024}")
        A(f"buffer_store_dwordx4 {v(16+4*db,4)}, v14, s[{SWS}:{SWS+3}], s3 offen sc1")
    A("s_add_u32 s48, s48, 8")
    A("s_cmp_lt_u32 s48, s49")
    A(f"s_cbranch_scc1 {N}_trl")
    A(f"s_lshl_b32 s3, {XC}, 7")
    A("s_lshl2_add_u32 s3, s19, s3")
    A(f"s_and_b32 s18, {SL}, 1")
    A("s_lshl_b32 s18, s18, 5")
    A("s_add_u32 s3, s3, s18")
    A(f"s_add_u32 s3, s3, {W_F2 + 64}")
    A("v_lshlrev_b32 v2, 10, v1")
    A("v_mov_b32 v3, 1")
    A("s_mov_b32 exec_hi, 0")
    A("s_waitcnt vmcnt(0)")
    A(f"buffer_store_dword v3, v2, s[{SWS}:{SWS+3}], s3 offen sc1")
    A("s_mov_b64 exec, -1")
    wot_poll_addr(8)
    wot_poll_issue(8)
    p3_addr()
    wot_poll_check(8, "tr")
    p3_wot_loads()

    A.label(f"{N}_p3")
    TB = "s56"
    A(f"s_lshr_b32 {TB}, {SL}, 3")
    A(f"s_lshl2_add_u32 {TB}, {XC}, {TB}")
    A("s_lshr_b32 s57, s19, 2")
    A("s_and_b32 s58, s19, 3")
    A(f"s_and_b32 s59, {SL}, 7")
    A("v_and_b32 v4, 7, v0")
    A("v_lshrrev_b32 v5, 3, v0")
    A("v_lshlrev_b32 v6, 10, v5")
    A("v_lshl_add_u32 v6, v4, 4, v6")
    A(f"s_lshl_b32 s60, {TB}, 16")
    A("s_lshl_b32 s3, s59, 7")
    A("s_add_u32 s60, s60, s3")
    A(f"buffer_load_dwordx4 {v(XR,4)}, v6, s[{SX}:{SX+3}], s60 offen")
    A(f"s_lshl_b32 s48, {TB}, 1")
    A("s_add_u32 s48, s48, s57")
    A("s_lshl_b32 s61, s48, 1")
    A("s_mul_i32 s48, s61, 28")
    A("s_mul_i32 s3, s58, 7")
    A("s_add_u32 s48, s48, s3")
    A("s_lshl_b32 s48, s48, 10")
    A(f"s_add_u32 s48, s48, {WS_H}")
    A(f"s_add_u32 s49, s48, {28*1024}")
    A("s_lshl_b32 s54, s61, 4")
    A("s_lshl1_add_u32 s54, s59, s54")
    A("s_lshr_b32 s3, s58, 1")
    A("s_add_u32 s54, s54, s3")
    A("s_lshl_b32 s54, s54, 10")
    A("s_and_b32 s3, s58, 1")
    A(f"s_cselect_b32 s3, {WS_YIM - WS_YRE}, 0")
    A("s_cselect_b32 s62, -1.0, 1.0")
    A(f"s_add_u32 s3, s3, {WS_YRE}")
    A("s_add_u32 s54, s54, s3")
    A("s_add_u32 s55, s54, 16384")
    A("v_and_b32 v8, 15, v1")
    A("v_mul_u32_u24 v8, 272, v8")
    A("v_lshrrev_b32 v9, 4, v1")
    A("v_lshl_add_u32 v8, v9, 4, v8")
    A("s_mul_i32 s3, s58, 17408")
    A(f"s_mul_i32 s18, s57, {32*272}")
    A("s_add_u32 s3, s3, s18")
    A("v_add_u32 v8, s3, v8")
    A("v_mul_u32_u24 v7, 272, v5")
    A("v_lshl_add_u32 v7, v4, 5, v7")
    for i in range(32):
        A(f"v_mov_b32 v{AC3+i}, 0")
    A("s_cmp_eq_u32 s19, 4")
    A(f"s_cbranch_scc0 {N}_p3w")
    A("v_and_b32 v9, 15, v1")
    A("v_lshlrev_b32 v9, 2, v9")
    A(f"s_lshl_b32 s3, {RANK}, 7")
    A(f"s_add_u32 s3, s3, {W_F2}")
    A(f"s_mov_b32 s18, {SPIN}")
    A.label(f"{N}_p3p")
    A(f"buffer_load_dword v10, v9, s[{SWS}:{SWS+3}], s3 offen sc1")
    A("s_waitcnt vmcnt(0)")
    A("v_cmp_eq_u32 vcc, 0, v10")
    A("s_sub_u32 s18, s18, 1")
    A("s_cmp_eq_u64 vcc, 0")
    A(f"s_cbranch_scc1 {N}_p3w")
    if psleep:
        A(f"s_sleep {psleep}")
    A("s_cmp_gt_i32 s18, 0")
    A(f"s_cbranch_scc1 {N}_p3p")
    A.label(f"{N}_p3w")
    G(6)
    A("s_barrier")
    G(7)
    for k in range(7):
        for j in range(2):
            A(f"buffer_load_dwordx4 {v(HF+k*8+j*4,4)}, {'v14' if k < 4 else 'v15'}, s[{SWS}:{SWS+3}], s{48+j} offen offset:{(k&3)*1024}")
    for j in range(2):
        A(f"buffer_load_dwordx4 {v(YR+j*4,4)}, v14, s[{SWS}:{SWS+3}], s{54+j} offen")
    for k in range(7):
        for j in range(2):
            A(f"s_waitcnt vmcnt({16 - (2*k+j+1)})")
            for it in range(4):
                acc = AC3 + (j * 4 + it) * 4
                A(f"v_mfma_f32_16x16x32_bf16 {v(acc,4)}, {v(WOT+k*16+it*4,4)}, {v(HF+k*8+j*4,4)}, {v(acc,4)}")
    G(8)
    A("s_waitcnt vmcnt(0)")
    for j in range(2):
        for d in range(4):
            A(f"v_lshlrev_b32 v{16+j*8+2*d}, 16, v{YR+j*4+d}")
            A(f"v_and_b32 v{16+j*8+2*d+1}, 0xffff0000, v{YR+j*4+d}")
    A("s_cmp_ge_u32 s58, 2")
    A(f"s_cbranch_scc1 {N}_p3e1")
    for e in range(2):
        if e:
            A(f"s_branch {N}_p3e2")
            A.label(f"{N}_p3e1")
        for j in range(2):
            for d in range(8):
                A(f"v_fmac_f32 v{AC3 + j*16 + e*8 + d}, s62, v{16+j*8+d}")
    A.label(f"{N}_p3e2")
    for j in range(2):
        for it in range(4):
            acc = AC3 + (j * 4 + it) * 4
            A(f"ds_write_b128 v8, {v(acc,4)} offset:{j*16*272 + it*64}")
    for d in range(4):
        A(f"v_lshlrev_b32 v{16+2*d}, 16, v{XR+d}")
        A(f"v_and_b32 v{16+2*d+1}, 0xffff0000, v{XR+d}")
    A("s_waitcnt lgkmcnt(0)")
    A("s_barrier")
    R = 32
    for w in range(4):
        for c in range(2):
            A(f"ds_read_b128 {v(R + (w*2+c)*4, 4)}, v7 offset:{w*17408 + c*16}")
    for w in range(4):
        A(f"s_waitcnt lgkmcnt({6-2*w})")
        for d in range(4):
            A(f"v_pk_add_f32 {v(16+2*d,2)}, {v(16+2*d,2)}, {v(R+w*8+2*d,2)}")
    for d in range(4):
        A(f"v_cvt_pk_bf16_f32 v{12+d}, v{16+2*d}, v{16+2*d+1}")
    A(f"buffer_store_dwordx4 v[12:15], v6, s[{SO}:{SO+3}], s60 offen")
    if gst:
        A("s_waitcnt vmcnt(0)")
        G(9)
        st2_flush(A, range(1, 10), "s19", SWS)
    A.label(L_exit)
    A("s_endpgm")
    return dict(name=name, vgpr=256, sgpr=102, grid=256, block=512, lds=LDS_TOTAL)
```

```python
from asmlib import *
from layout import *
import struct

def f32(x):
    return hex(struct.unpack('I', struct.pack('f', x))[0])

C0 = -2.0 * 0.7978845608028654 * 1.4426950408889634
C1 = C0 * 0.044715
EPS = f32(1e-5)
KB = 1024
W_ST = WS_ST
W_BX = WS_ST + 256 * KB
W_F1, W_F2 = W_BX, WS_ST + 800 * KB
W_RS = WS_ST + 512 * KB
W_TB = WS_ST + 768 * KB
W_Y = 32 * MB
W_H = 40 * MB
W_H2 = 48 * MB
WS_TOT2 = 56 * MB
LX, LW, LD = 0, 65536, 131072
LRM = 155648
LCSD = LRM + 1024
LCSW = LCSD + 1024
LMISC = LCSW + 512
LTR = 159744
LDS_TOTAL = 163840
RBUF = [48 * KB, 64 * KB, 112 * KB, 128 * KB]
LBS = 159744
PSL = [48 * KB, 112 * KB, 128 * KB, 144 * KB]
SX, SW, SI, SWS, SDB, SO, SP = 20, 24, 28, 32, 36, 40, 44
SPIN = 0x20000


class Cnt:
    def __init__(self, A, name, mx):
        self.A, self.name, self.mx, self.q = A, name, mx, []
    def op(self, tag=None):
        self.q.append(tag)
    def need(self, tag):
        idx = [i for i, t in enumerate(self.q) if t == tag]
        if not idx:
            return
        n = len(self.q) - 1 - idx[-1]
        self.A(f"s_waitcnt {self.name}({min(n, self.mx)})")
        self.q = self.q[idx[-1] + 1:] if n <= self.mx else self.q[len(self.q) - self.mx:]
    def all(self):
        self.A(f"s_waitcnt {self.name}(0)")
        self.q = []

AUXS = {"pair": ("nt", ""), "nt": ("nt",), "d": ("",), "off": ()}


def gen_f(A, name="f_kernel", phases="123", stamp=False, rot1="x", pub_at=2, tbl_at=5, rank_at=6,
          st_aux="sc1", prio_loader=2, xaux="nt", waux="nt", pauxy="", pauxg="", qaux="nt", zaux="",
          st2_aux="sc1", psleep=2, stg=((4, 1, "pair"), (5, 2, "pair"), (6, 3, "pair")),
          rot2=0, npro=2, ramp=1, dbgm="", pairp=1, wot_at=(9, 10, 11, 12), nofast=0, saux="nt", z1_at=2,
          own_wait=1, hst_aux="", haux="", z1_early=1, q_at=(6, 8, "p"), taux="", gmap=0, pf=1, pfsch=None,
          amp=None, relx=0, p3perm=None, paux3='sc1', faux3='sc1', ipf2b='late', f2s=7, f2o=None, wh=None, wy=None, ylate=0, psleep3=None, tlbw=None, oaux='', wbl=0, ipf=0, ipf2=(), z1cp=2, pl_at=(4,), stgrow=0, qaux2='nt', q2_from=4, qreg=None, thr=8, z1s=(8, 9, 10, 11), pre_at=8, qpf=None, qpre=(), ppf=None, spq=0, uni=0, ipfat=0, pull1=0, pull2=0, tsp=0, ey=0, eyt=(3, 8), eya=5):
    kernel_header(A, name)
    N = name
    global W_H, W_Y, W_F2
    W_H = 40 * MB if wh is None else wh
    W_Y = 32 * MB if wy is None else wy
    W_F2 = (WS_ST + 800 * KB if f2s == 7 else W_BX + 256) if f2o is None else f2o
    W_Z1 = W_H if z1cp == 2 else WS_Z1
    assert not qreg
    gst = stamp == 2
    est = stamp == 3
    stamp = stamp == 1
    def E(k):
        if est:
            st2(A, k)
    TY, TT, NT, SL, KH = "s84", "s85", "s86", "s87", "s65"
    SQ = SW
    def G(k):
        if gst:
            st2(A, k)
    def PB_(r, L=2):
        A.raw(f";PF_BEGIN {r} {L}")
    def PE_():
        A.raw(";PF_END")

    def pfload(vaddr, srdn, so, aux, vm=None, off=0):
        for ax in AUXS[aux]:
            A(f"buffer_load_dword v6, {vaddr}, s[{srdn}:{srdn+3}], {so} offen offset:{off} {ax}")
            if vm:
                vm.op("pf")

    JOB = "s58"
    def p2_decode():
        if gmap == 0:
            A(f"s_mov_b32 {JOB}, {RANK}")
        elif gmap == 1:
            A(f"s_and_b32 {SL}, {RANK}, 31")
            A(f"s_and_b32 {JOB}, {RANK}, 0xc0")
            A(f"s_cmp_ge_u32 {SL}, 23")
            A("s_cselect_b32 s3, 25, 0")
            A(f"s_add_u32 {JOB}, {JOB}, s3")
            A(f"s_add_u32 {JOB}, {JOB}, {SL}")
            A(f"s_bitcmp1_b32 {RANK}, 5")
            A("s_cselect_b32 s3, 7, 0")
            A(f"s_add_u32 {JOB}, {JOB}, s3")
            A(f"s_bfe_u32 s3, {RANK}, 0x10005")
            A(f"s_and_b32 s18, {RANK}, 1")
            A("s_lshl4_add_u32 s18, s18, 15")
            A("s_lshl1_add_u32 s3, s18, s3")
            A(f"s_and_b32 s18, {RANK}, 0xc0")
            A("s_add_u32 s3, s3, s18")
            A(f"s_cmp_ge_u32 {SL}, 30")
            A(f"s_cselect_b32 {JOB}, s3, {JOB}")
            A(f"s_cmp_lt_u32 {SL}, 16")
            A(f"s_cselect_b32 {JOB}, {RANK}, {JOB}")
        elif gmap >= 2:
            A(f"s_and_b32 {SL}, {RANK}, 31")
            if gmap == 2:
                A(f"s_and_b32 {JOB}, {RANK}, 0x6f")
                A(f"s_lshr_b32 s3, {SL}, 4")
                A("s_lshl_b32 s3, s3, 7")
                A(f"s_or_b32 {JOB}, {JOB}, s3")
            elif gmap == 3:
                A(f"s_and_b32 {JOB}, {RANK}, 15")
                A(f"s_and_b32 s3, {RANK}, 0x70")
                A(f"s_lshl1_add_u32 {JOB}, s3, {JOB}")
            else:
                A(f"s_and_b32 {JOB}, {RANK}, 0x2f")
                if gmap == 4:
                    A(f"s_xor_b32 {JOB}, {JOB}, 0x20")
                A(f"s_and_b32 s3, {RANK}, 0x10")
                A(f"s_lshl2_add_u32 {JOB}, s3, {JOB}")
                A(f"s_and_b32 s3, {RANK}, 0x40")
                A(f"s_lshl1_add_u32 {JOB}, s3, {JOB}")
            A(f"s_cmp_lt_u32 {RANK}, 128")
            L = A.newlabel(N + "_prm")
            A(f"s_cbranch_scc1 {L}")
            A(f"s_mul_i32 s3, {SL}, 37")
            A("s_lshr_b32 s3, s3, 8")
            A("s_mul_i32 s18, s3, 25")
            A(f"s_add_u32 {JOB}, s18, {SL}")
            A(f"s_add_u32 {JOB}, {JOB}, 16")
            A(f"s_bitcmp1_b32 {RANK}, 5")
            A("s_cselect_b32 s3, 0, 7" if gmap == 4 else "s_cselect_b32 s3, 7, 0")
            A(f"s_add_u32 {JOB}, {JOB}, s3")
            A(f"s_bitcmp1_b32 {RANK}, 6")
            A("s_cselect_b32 s3, 128, 0")
            A(f"s_add_u32 {JOB}, {JOB}, s3")
            if spq:
                A(f"s_lshl_b32 s18, {SL}, 5")
                A(f"s_add_u32 s3, s3, s18")
                A(f"s_add_u32 s3, s3, {(30 - 28*32) & 0xffffffff}")
                A(f"s_bitcmp1_b32 {RANK}, 5")
                A("s_cselect_b32 s18, 0, 1" if gmap == 4 else "s_cselect_b32 s18, 1, 0")
                A("s_add_u32 s3, s3, s18")
                A(f"s_cmp_ge_u32 {SL}, 28")
                A(f"s_cselect_b32 {JOB}, s3, {JOB}")
            else:
                A(f"s_cmp_ge_u32 {SL}, 28")
                A(f"s_cselect_b32 {JOB}, 30, {JOB}")
            A.label(L)
        A(f"s_bfe_u32 {KH}, {JOB}, 0x10005")
        A(f"s_and_b32 {SL}, {JOB}, 31")
        A(f"s_bfe_u32 {TY}, {JOB}, 0x10006")
        A(f"s_lshr_b32 {TT}, {JOB}, 7")
        A(f"s_lshr_b32 s3, {SL}, 2")
        A(f"s_lshl2_add_u32 {TT}, {TT}, s3")
        A(f"s_and_b32 {NT}, {SL}, 3")
        A(f"s_cmp_lt_u32 {SL}, 16")
        L = A.newlabel(N + "_dec")
        A(f"s_cbranch_scc1 {L}")
        A(f"s_cmp_ge_u32 {SL}, 23")
        A("s_cselect_b32 s3, 1, 0")
        A("s_cselect_b32 s18, 23, 16")
        A(f"s_lshr_b32 {TT}, {JOB}, 5")
        A(f"s_mov_b32 {KH}, s3")
        A(f"s_sub_u32 {NT}, {SL}, s18")
        A(f"s_and_b32 s3, {JOB}, 1")
        A(f"s_cmp_ge_u32 {SL}, 30")
        A(f"s_cselect_b32 {TY}, 3, 2")
        A(f"s_cselect_b32 {NT}, 7, {NT}")
        A(f"s_cselect_b32 {KH}, s3, {KH}")
        A.label(L)

    ZR1, AC3, XR = 144, 192, 8
    def SLOT(j):
        return 16 + 32 * j
    def WOTR(i, k):
        return SLOT(i) + 4 * k
    HFR = [144 + 4 * i for i in range(12)] + [SLOT(j) + 28 for j in range(4)]
    if qreg is None:
        qreg = {q: (q - 3, [("pre", 0, 8)]) for q in range(3, 10)}
        for i in range(4):
            qreg[10 + i] = (i, [(2 + 2 * i, 0, 4), (3 + 2 * i, 4, 8)])
    WB = "s59"
    FAST = "s63"
    def p3_addr():
        A(f"s_mul_i32 s18, {W}, 7")
        A(f"s_and_b32 s3, {RANK}, 7")
        A(f"s_mul_i32 {WB}, s3, 112")
        A(f"s_add_u32 {WB}, {WB}, s18")
        A(f"s_lshl_b32 {WB}, {WB}, 10")
        A(f"s_add_u32 {WB}, {WB}, {WS_WOT}")
        A("v_add_u32 v15, 4096, v14")
    def wot_loads(i, vm=None):
        A(f"s_add_u32 s3, {WB}, {i*28*1024}")
        for k in range(7):
            A(f"buffer_load_dwordx4 {v(WOTR(i,k),4)}, {'v14' if k < 4 else 'v15'}, s[{SWS}:{SWS+3}], s3 offen offset:{(k&3)*1024}")
            if vm:
                vm.op("wot")
    W = "s67"
    RB, CG, ISB, U0, ABO, KEY, RANK = "s60", "s61", "s62", "s63", "s64", "s65", "s66"
    L_exit = N + "_exit"
    A("s_cmp_ge_u32 s2, 256")
    A(f"s_cbranch_scc1 {L_exit}")
    if stamp or gst or est:
        st2(A, 0)
    A("s_load_dwordx2 s[4:5], s[0:1], 0")
    A("s_load_dwordx4 s[8:11], s[0:1], 24")
    A("s_load_dwordx2 s[6:7], s[0:1], 48")
    A("s_load_dwordx4 s[12:15], s[0:1], 88")
    A("v_lshrrev_b32 v2, 6, v0")
    A("v_and_b32 v1, 63, v0")
    A("s_lshr_b32 s3, s2, 5")
    A("v_readfirstlane_b32 s19, v2")
    A(f"s_and_b32 {RB}, s2, 1")
    A(f"s_lshl_b32 {RB}, {RB}, 3")
    A(f"s_add_u32 {RB}, {RB}, s3")
    A(f"s_bfe_u32 {CG}, s2, 0x20001")
    A(f"s_lshl_b32 {CG}, {CG}, 2")
    A("s_bfe_u32 s3, s2, 0x20003")
    A(f"s_add_u32 {CG}, {CG}, s3")
    A(f"s_cmp_ge_u32 {CG}, 14")
    A(f"s_cselect_b32 {ABO}, 1, 0")
    A(f"s_cmp_ge_u32 {CG}, 7")
    A(f"s_cselect_b32 {ISB}, 1, 0")
    A(f"s_cselect_b32 {U0}, 7, 0")
    A(f"s_sub_u32 {U0}, {CG}, {U0}")
    A(f"s_mul_i32 {U0}, {U0}, 3")
    A(f"s_cmp_eq_u32 {CG}, 14")
    A(f"s_cselect_b32 {ISB}, 0, {ISB}")
    A(f"s_cmp_eq_u32 {ABO}, 1")
    A(f"s_cselect_b32 {U0}, 21, {U0}")
    A("v_lshlrev_b32 v14, 4, v1")
    KS = "s52"
    if rot1 == "x":
        A(f"s_getreg_b32 {KS}, hwreg(HW_REG_XCC_ID, 0, 3)")
    elif rot1 == "x4":
        A(f"s_getreg_b32 {KS}, hwreg(HW_REG_XCC_ID, 0, 3)")
        A(f"s_and_b32 s3, {KS}, 1")
        A(f"s_mul_i32 s3, s3, 3")
        A(f"s_add_u32 {KS}, {KS}, s3")
        A(f"s_and_b32 {KS}, {KS}, 7")
    elif rot1 == "w":
        A(f"s_lshl1_add_u32 {KS}, {CG}, {RB}")
        A(f"s_and_b32 {KS}, {KS}, 7")
    elif rot1 == "wx":
        A(f"s_getreg_b32 {KS}, hwreg(HW_REG_XCC_ID, 0, 3)")
        A(f"s_add_u32 {KS}, {KS}, {RB}")
        A(f"s_lshl1_add_u32 {KS}, {CG}, {KS}")
        A(f"s_and_b32 {KS}, {KS}, 7")
    elif rot1 == "r":
        A(f"s_and_b32 {KS}, {RB}, 7")
    else:
        A(f"s_mov_b32 {KS}, 0")
    A("s_cmp_lt_u32 s19, 4")
    A(f"s_cbranch_scc1 {N}_comp")

    XO, DO, IO, LDST = "s48", "s49", "s50", "s51"
    A(f"s_sub_u32 {W}, s19, 4")
    if ipf:
        A(f"s_getpc_b64 s[{SP}:{SP+1}]")
        A.label(f"{N}_pc0")
        A(f"s_and_b32 s{SP+1}, s{SP+1}, 0xffff")
        A(f"s_mov_b32 s{SP+2}, {N}_end-{N}_pc0")
        A(f"s_mov_b32 s{SP+3}, 0x00020000")
        A("s_lshr_b32 s3, s2, 3")
        A("s_lshl_b32 s3, s3, 13")
        A(f"s_cmp_eq_u32 {W}, 3")
        A("s_cselect_b32 s68, s3, 0x100000")
        A("v_lshlrev_b32 v13, 7, v1")
        if not ipfat:
            A(f"buffer_load_dword v15, v13, s[{SP}:{SP+3}], s68 offen")
    A("v_lshrrev_b32 v4, 3, v1")
    A(f"s_lshl_b32 s3, {W}, 3")
    A("v_add_u32 v4, s3, v4")
    A("v_and_b32 v5, 7, v1")
    A("v_lshrrev_b32 v6, 4, v1")
    A(f"s_and_b32 s3, {W}, 1")
    A("s_lshl_b32 s3, s3, 2")
    A(f"s_and_b32 s18, {W}, 2")
    A("s_or_b32 s3, s3, s18")
    A("v_xor_b32 v6, s3, v6")
    A("v_xor_b32 v6, v6, v5")
    A("v_lshlrev_b32 v6, 4, v6")
    A("v_lshl_add_u32 v2, v4, 10, v6")
    A("v_bfe_u32 v6, v1, 4, 1")
    A(f"s_and_b32 s3, {W}, 1")
    A("s_lshl_b32 s3, s3, 1")
    A("v_or_b32 v6, s3, v6")
    A("v_lshlrev_b32 v6, 1, v6")
    A("v_xor_b32 v6, v6, v5")
    A("v_lshlrev_b32 v6, 4, v6")
    A("v_mul_u32_u24 v3, 3584, v4")
    A("v_add_u32 v3, v3, v6")
    A(f"s_lshl_b32 {XO}, {RB}, 17")
    A(f"s_lshl_b32 {DO}, {U0}, 14")
    A(f"s_lshl_b32 {IO}, {CG}, 7")
    A(f"s_lshl_b32 {LDST}, {W}, 10")
    A(f"s_lshl_b32 s3, {KS}, 7")
    A(f"s_add_u32 {XO}, {XO}, s3")
    A(f"s_add_u32 {DO}, {DO}, s3")
    A(f"s_mul_i32 s3, {KS}, {64*3584}")
    A(f"s_add_u32 {IO}, {IO}, s3")
    A("s_mov_b32 s53, 128")
    A(f"s_mov_b32 s54, {64*3584}")
    if uni:
        A("v_bfe_u32 v6, v1, 4, 1")
        A(f"s_lshl_b32 s3, {W}, 1")
        A("v_or_b32 v6, s3, v6")
        A("v_xor_b32 v6, v6, v5")
        A("v_lshlrev_b32 v6, 4, v6")
        A("v_lshrrev_b32 v9, 3, v1")
        A("v_lshl_add_u32 v9, v9, 10, v6")
        A(f"s_lshl_b32 s3, {W}, 12")
        A("v_add_u32 v9, s3, v9")
        A(f"s_lshl_b32 s90, {W}, 9")
        A(f"s_cmp_eq_u32 {ABO}, 1")
        A("s_cselect_b64 vcc, -1, 0")
        A("v_cndmask_b32 v3, v3, v2, vcc")
        A(f"s_cselect_b32 {IO}, {DO}, {IO}")
        A("s_cselect_b32 s54, 128, s54")
        A(f"s_mov_b32 s55, {(-7*64*3584) & 0xffffffff}")
        A(f"s_cselect_b32 s55, {(128-1024) & 0xffffffff}, s55")
        A("s_cselect_b32 s84, 0, 1792")
        A(f"s_mov_b32 s85, {32*3584+1792}")
        A("s_cselect_b32 s85, 32768, s85")
        A("s_cselect_b32 s86, 65536, 0")
        A(f"s_mov_b32 s87, {32*3584}")
        A("s_cselect_b32 s87, 98304, s87")
        A("s_cselect_b32 s3, 131072, 0")
        A(f"s_add_u32 {DO}, {DO}, s3")
    A("s_waitcnt lgkmcnt(0)")
    srd(A, SX, "s4", "s5", 2048 * 1024)
    A(f"s_cmp_eq_u32 {ISB}, 1")
    A("s_cselect_b64 s[16:17], s[10:11], s[8:9]")
    srd(A, SW, "s16", "s17", 512 * 1024)
    if uni:
        A(f"s_cmp_eq_u32 {ABO}, 1")
        A("s_cselect_b64 s[6:7], s[16:17], s[6:7]")
    srd(A, SI, "s6", "s7", 512 * 3584)
    if uni:
        A(f"s_cmp_eq_u32 {ABO}, 1")
        A(f"s_cselect_b32 s{SI+2}, {512*1024}, s{SI+2}")
    srd(A, SWS, "s14", "s15", WS_TOT2)
    srd(A, SDB, "s12", "s13", 256)
    A("s_load_dwordx4 s[12:15], s[0:1], 8")
    A("s_load_dwordx4 s[56:59], s[0:1], 56")
    A("s_load_dwordx2 s[94:95], s[0:1], 72", "s_load_dwordx2 s[96:97], s[0:1], 80")
    if not uni:
        A(f"s_lshr_b32 s3, {W}, 1")
        A(f"s_lshl_b32 s18, {ABO}, 1")
        A("s_or_b32 s3, s3, s18")
        for r in (1, 2, 3):
            A(f"s_cmp_eq_u32 s3, {r}")
            A(f"s_cbranch_scc1 {N}_ld{r}")

    PFO, PFR = "s90", "s91"
    QB, PB, KO, CNT = "s48", "s49", "s52", "s54"

    def stg_setup():
        A("s_getreg_b32 s55, hwreg(HW_REG_XCC_ID, 0, 3)")
        A("s_lshr_b32 s3, s2, 3")
        A(f"s_lshl1_add_u32 {PFO}, s3, {W}")
        A("s_lshr_b32 s18, s55, 2")
        A(f"s_lshl_b32 s18, s18, 6")
        A(f"s_add_u32 {PFO}, {PFO}, s18")
        A(f"s_lshr_b32 {PFR}, s3, 3")
        A("s_and_b32 s18, s3, 15")
        A("s_lshl4_add_u32 s18, s55, s18")
        A("s_lshr_b32 s3, s3, 4")
        A(f"s_cmp_lt_u32 {W}, 2")
        A(f"s_cselect_b32 {PFO}, {PFO}, s18")
        A(f"s_cselect_b32 {PFR}, {PFR}, 0")
        A(f"s_cselect_b32 s3, s55, s3")
        A(f"s_lshl_b32 {PFO}, {PFO}, 16")
        A("s_and_b32 s3, s3, 1")
        A("s_lshl_b32 s3, s3, 11")
        A(f"s_add_u32 {PFO}, {PFO}, s3")
        A(f"s_mov_b32 {PFR}, 0")
        A("s_bitcmp1_b32 s55, 1")
        A("s_cselect_b64 s[16:17], s[14:15], s[12:13]")
        A(f"s_cmp_lt_u32 {W}, 2")
        A("s_cselect_b64 s[16:17], s[16:17], s[56:57]")
        srd(A, SP, "s16", "s17", 2048 * 4096)
        A(f"s_cmp_eq_u32 {W}, 3")
        A(f"s_cselect_b32 s{SP+2}, 0, s{SP+2}")
        A(f"v_lshrrev_b32 v11, {4 if stgrow else 2}, v1")
        A(f"v_and_b32 v12, {15 if stgrow else 3}, v1")
        A("v_lshlrev_b32 v12, 7, v12")
        A("v_lshl_add_u32 v11, v11, 12, v12")
    def stg_at(b, vm):
        for bb, c, stgaux in stg:
            if bb != b:
                continue
            A(f"s_add_u32 s3, {PFR}, {c}")
            A("s_and_b32 s3, s3, 3")
            A(f"s_lshl_b32 s3, s3, {14 if stgrow else 9}")
            A(f"s_add_u32 s3, s3, {PFO}")
            pfload("v11", SP, "s3", stgaux, vm)
    curB = [4]
    def q_base(q):
        if not rot2:
            return QB, (q % 4 if "Q" in dbgm else q) * 128
        A(f"s_add_u32 s18, {KO}, {q*128}")
        A("s_and_b32 s18, s18, s55")
        A(f"s_add_u32 s18, s18, {QB}")
        return "s18", (q & ~(curB[0] - 1)) * 128
    def q_issue(q, vm, tag):
        sl = q % 3
        r, c = q_base(q)
        for m in ((0, 1, 4, 5) if "h" in dbgm else range(8)):
            A(f"s_add_u32 m0, {LDST}, {(m>>2)*65536 + sl*16384 + (m&3)*4096}")
            A(f"s_add_u32 s3, {r}, {c + m*131072}")
            A(f"buffer_load_dwordx4 v7, s[{SQ}:{SQ+3}], s3 offen {qaux if q < q2_from else qaux2} lds")
            vm.op(tag)
    def q_touch(q, vm, dst="v10"):
        r, c = q_base(q)
        A(f"s_add_u32 s3, {r}, {c}")
        A(f"buffer_load_dword {dst}, v11, s[{SQ}:{SQ+3}], s3 offen")
        vm.op("pf")
    def q_rload(when, vm, throttle=0):
        for q in sorted(qreg):
            slot, parts = qreg[q]
            for (wh, m0_, m1_) in parts:
                if wh != when:
                    continue
                r, c = q_base(q)
                for m in range(m0_, m1_):
                    if throttle and len(vm.q) >= throttle:
                        A(f"s_waitcnt vmcnt({throttle-1})")
                        vm.q = vm.q[len(vm.q) - (throttle - 1):]
                    A(f"s_add_u32 s3, {r}, {c + m*131072}")
                    A(f"buffer_load_dwordx4 {v(SLOT(slot)+4*m,4)}, v7, s[{SQ}:{SQ+3}], s3 offen {qaux}")
                    vm.op(("r", q))
    def q_write(q, vm):
        slot = qreg[q][0]
        vm.need(("r", q))
        for m in range(8):
            A(f"ds_write_b128 {'v9' if m >= 4 else 'v12'}, {v(SLOT(slot)+4*m,4)} offset:{(q%3)*16384 + (m&3)*4096}")

    def p1_loader(role):
        ztype = role < 2
        hi = role & 1
        vm = Cnt(A, "vmcnt", 63)
        A.label(f"{N}_ld{role}")
        def dma(lds, so_base, so_add, vreg, srdn, tag):
            A(f"s_add_u32 m0, {LDST}, {lds}")
            A(f"s_add_u32 s3, {so_base}, {so_add}")
            A(f"buffer_load_dwordx4 {vreg}, s[{srdn}:{srdn+3}], s3 offen {xaux if srdn == SX else waux} lds")
            vm.op(tag)
        def issue(st):
            sl = st & 3
            for j in range(4):
                dma(LX + sl * 16384 + j * 4096, XO, j * 32768, "v2", SX, st)
                if uni:
                    dma(LW + sl * 16384 + j * 4096, IO, f"s{84+j}", "v3", SI, st)
                elif ztype:
                    pan, jj = j >> 1, j & 1
                    dma(LW + sl * 16384 + pan * 8192 + jj * 4096, IO, jj * 32 * 3584 + (1792 if pan == 0 else 0), "v3", SI, st)
                else:
                    dma(LW + sl * 16384 + j * 4096, DO, j * 32768, "v2", SW, st)
            j0 = 0 if ztype else 4
            dma(LD + sl * 6144, DO, j0 * 32768, "v2", SW, st)
            if uni:
                A(f"s_add_u32 m0, s90, {LD + sl * 6144 + 4096}")
                A(f"s_add_u32 s3, {DO}, 32768")
                A("s_mov_b32 exec_hi, 0")
                A(f"buffer_load_dwordx4 v9, s[{SW}:{SW+3}], s3 offen {waux} lds")
                A("s_mov_b32 exec_hi, -1")
                vm.op(st)
            elif not hi:
                dma(LD + sl * 6144 + 4096, DO, (j0 + 1) * 32768, "v2", SW, st)
            if ipf and ipfat == st + 1:
                A(f"buffer_load_dword v15, v13, s[{SP}:{SP+3}], s68 offen")
                vm.op("ipf")
            if st < 7:
                A(f"s_add_u32 {KS}, {KS}, 1")
                A(f"s_cmp_eq_u32 {KS}, 8")
                A(f"s_cselect_b32 {KS}, 0, {KS}")
                A(f"s_cselect_b32 s3, {(128-1024) & 0xffffffff}, s53")
                A(f"s_cselect_b32 s18, {'s55' if uni else (-7*64*3584) & 0xffffffff}, s54")
                A(f"s_add_u32 {XO}, {XO}, s3")
                A(f"s_add_u32 {DO}, {DO}, s3")
                A(f"s_add_u32 {IO}, {IO}, s18")
        if stamp:
            st2(A, 1)
        for st in range(npro):
            issue(st)
        nxt_st = [npro]
        A("v_lshlrev_b32 v8, 2, v1")
        if uni:
            A(f"s_lshl_b32 s69, {ISB}, 5")
            A(f"s_add_u32 s69, s69, {U0}")
            A("s_lshl_b32 s69, s69, 6")
            A("s_add_u32 s69, s69, s90")
            A(f"s_add_u32 s69, s69, {16384 - 1024}")
            A(f"s_lshl_b32 s18, {RB}, 9")
            A(f"s_lshl_b32 s3, {W}, 13")
            A("s_add_u32 s18, s18, s3")
            A(f"s_cmp_ge_u32 {W}, 2")
            A("s_cselect_b32 s69, s69, s18")
            A(f"s_add_u32 s69, s69, {W_RS}")
        elif hi:
            A(f"s_lshl_b32 s69, {ISB}, 5")
            A(f"s_add_u32 s69, s69, {U0}")
            A("s_lshl_b32 s69, s69, 6")
            A(f"s_lshl_b32 s3, {W}, 9")
            A("s_add_u32 s69, s69, s3")
            A(f"s_add_u32 s69, s69, {W_RS + 16384 - 1024}")
        else:
            A(f"s_lshl_b32 s69, {RB}, 9")
            A(f"s_lshl_b32 s3, {W}, 13")
            A("s_add_u32 s69, s69, s3")
            A(f"s_add_u32 s69, s69, {W_RS}")
        A("v_lshrrev_b32 v6, 4, v1")
        A(f"s_and_b32 s3, {W}, 1")
        A("s_lshl_b32 s3, s3, 2")
        A("v_or_b32 v7, s3, v6")
        A("v_xor_b32 v7, v7, v5")
        A("v_lshlrev_b32 v7, 4, v7")
        A("v_lshl_add_u32 v7, v4, 12, v7")
        A("s_waitcnt lgkmcnt(0)")
        if stg:
            assert not ipf
            stg_setup()
            stg_at(-1, vm)
        def pfc(t):
            for ch in (pfsch or {}).get(("z" if ztype else "a", t), ()):
                A.raw(f";PF_CALL {ch[2*hi]} {ch[2*hi+1]} {W}")
        pfc(-1)
        for b in range(9):
            vm.need(b if b < 8 else "st")
            if stamp and b < 8:
                st2(A, 2 + b)
            A("s_barrier")
            for _ in range(ramp):
                if nxt_st[0] <= min(7, b + 3):
                    issue(nxt_st[0]); nxt_st[0] += 1
            if b == rank_at:
                A(f"s_lshl_b32 s3, {W}, 9")
                for j in range(2):
                    A(f"s_add_u32 m0, s3, {LRM + j*256}")
                    A(f"buffer_load_dword v8, s[{SWS}:{SWS+3}], s69 offen sc1 lds")
                    A("s_add_u32 s69, s69, 256")
                    vm.op("st")
            if b == rank_at and "2" in phases:
                A(f"v_mov_b32 v12, {LMISC}")
                A("ds_read_b32 v13, v12")
                A("s_waitcnt lgkmcnt(0)")
                A(f"v_readfirstlane_b32 {RANK}, v13")
                A("s_nop 0")
                A(f"s_and_b32 {RANK}, {RANK}, 255")
                srd(A, SDB, "s58", "s59", 4096)
                p2_decode()
                A(f"s_lshl_b32 s3, {W}, 8")
                A(f"s_add_u32 m0, s3, {LBS}")
                A(f"s_lshl_b32 s18, {TT}, 9")
                A("s_add_u32 s3, s3, s18")
                A(f"buffer_load_dword v8, s[{SDB}:{SDB+3}], s3 offen lds")
                vm.op("st")
                A(f"s_cmp_eq_u32 {TY}, 0")
                A("s_cselect_b64 s[12:13], s[12:13], s[14:15]")
                A(f"s_cmp_ge_u32 {TY}, 2")
                A("s_cselect_b64 s[12:13], s[56:57], s[12:13]")
                srd(A, SQ, "s12", "s13", 2048 * 4096)
                A(f"s_lshl_b32 {QB}, {TT}, 20")
                A(f"s_lshl_b32 s3, {KH}, 11")
                A(f"s_add_u32 {QB}, {QB}, s3")
                if rot2:
                    By, Bg, my, mg = rot2
                    A(f"s_add_u32 {KO}, {TT}, {NT}")
                    A(f"s_mul_i32 {KO}, {KO}, {my*128}")
                    A(f"s_mul_i32 s3, {NT}, {mg*128}")
                    A(f"s_cmp_ge_u32 {TY}, 2")
                    A(f"s_cselect_b32 {KO}, s3, {KO}")
                    A(f"s_mov_b32 s55, {(By-1)*128}")
                    A(f"s_cselect_b32 s55, {(Bg-1)*128}, s55")
            if "2" in phases:
                for s_ in range(3):
                    if b == q_at[s_]:
                        assert b >= max(5 + s_, rank_at)
                        q_issue(s_, vm, "q")
                q_rload(f"b{b}", vm)
            stg_at(b, vm)
            pfc(b)
        if not uni:
            A(f"s_branch {N}_ld_p2")

    assert rank_at >= 4
    for role in range(1 if uni else 4):
        p1_loader(role)
        if role == 1:
            A.raw(";PF_RET")
    A.label(f"{N}_ld_p2")
    PB_("l2")
    if stamp or est:
        st2(A, 10)
        st2_flush(A, range(1, 11) if stamp else [10], "s19", SWS)
    if "2" not in phases:
        A("s_endpgm")
    else:
        G(1)
        srd(A, SO, "s96", "s97", 2048 * 1024)
        p3_addr()
        if prio_loader:
            A(f"s_setprio {prio_loader}")
        A(f"s_mov_b32 {PB}, {WS_A}")
        A(f"s_cmp_eq_u32 {TY}, 1")
        A(f"s_cselect_b32 {PB}, {WS_B}, {PB}")
        A(f"s_cmp_eq_u32 {TY}, 2")
        A(f"s_cselect_b32 {PB}, {WS_Z2}, {PB}")
        A(f"s_lshl1_add_u32 s3, {NT}, {KH}")
        A("s_lshl_b32 s3, s3, 18")
        A(f"s_add_u32 {PB}, {PB}, s3")
        A(f"s_add_u32 {PB}, {PB}, {LDST}")
        ZB, ZD = "s50", "s53"
        A(f"s_mul_i32 {ZB}, {TT}, {16*28}")
        A(f"s_lshl2_add_u32 {ZB}, {NT}, {ZB}")
        A(f"s_lshl_b32 {ZB}, {ZB}, 10")
        A(f"s_add_u32 {ZB}, {ZB}, {LDST}")
        if z1cp == 2:
            A(f"s_lshl_b32 s3, {KH}, 22")
            A(f"s_add_u32 {ZB}, {ZB}, s3")
        A(f"s_add_u32 {ZB}, {ZB}, {W_Z1}")
        def z1_loads(ts=range(16), vm=None):
            for t in ts:
                A(f"s_add_u32 s3, {ZB}, {t*28*1024}")
                A(f"buffer_load_dwordx4 {v(ZR1+4*t,4)}, v14, s[{SWS}:{SWS+3}], s3 offen {zaux}")
                if vm:
                    vm.op("z1")
        A(f"v_mov_b32 v8, {LMISC + 4}")
        A("v_add_u32 v12, 4, v8")
        A(f"s_cmp_eq_u32 {TY}, 3")
        A(f"s_cbranch_scc1 {N}_spare")
        vm0 = Cnt(A, "vmcnt", 63)
        if qpf or qpre or ppf:
            A(f"s_lshl_b32 s3, {W}, 18")
            A("v_lshl_add_u32 v11, v1, 12, s3")
            A(f"v_lshlrev_b32 v13, 7, v1")
        if qpre:
            A(f"s_cmp_eq_u32 {TY}, 2")
            A(f"s_cbranch_scc1 {N}_qpg")
            curB[0] = rot2[0]
            for q in qpre:
                q_touch(q, vm0, 'v3')
            A(f"s_branch {N}_qpx")
            A.label(f"{N}_qpg")
            curB[0] = rot2[1]
            for q in qpre:
                q_touch(q, vm0, 'v3')
            A.label(f"{N}_qpx")
        if q_at[2] == "e":
            q_issue(2, vm0, "q")
        q_rload("pre", vm0, thr)
        G(5)
        A(f"s_mov_b32 s18, {SPIN << 4}")
        A(f"s_cmp_eq_u32 {W}, 0")
        A(f"s_cbranch_scc0 {N}_lw1")
        if pull1:
            A("v_and_b32 v9, 7, v1")
            A(f"s_lshl_b32 s3, {KH}, 3")
            A("v_add_u32 v9, s3, v9")
            A("v_lshrrev_b32 v10, 3, v1")
            A(f"s_mov_b32 s57, {W_F1}")
            A(f"s_cmp_eq_u32 {TY}, 2")
            A(f"s_cbranch_scc1 {N}_f1g")
            A(f"s_lshl_b32 s3, {NT}, 2")
            A("s_lshr_b32 s91, 0x7520, s3")
            A("s_and_b32 s91, s91, 15")
            A("v_add_u32 v10, s91, v10")
            A("s_lshr_b32 s91, 0x1343, s3")
            A("s_and_b32 s91, s91, 15")
            A("s_lshl_b32 s91, s91, 3")
            A("s_bfm_b64 s[92:93], s91, 0")
            A("s_mov_b32 s91, s92")
            A(f"s_mul_i32 s3, {TY}, 7")
            A("v_cmp_eq_u32 vcc, 7, v10")
            A("v_add_u32 v10, s3, v10")
            A(f"s_add_u32 s3, {TY}, 14")
            A("v_mov_b32 v13, s3")
            A("v_cndmask_b32 v10, v10, v13, vcc")
            A(f"s_branch {N}_f1x")
            A.label(f"{N}_f1g")
            A("v_bfe_u32 v13, v1, 1, 1")
            A("v_cmp_gt_u32 vcc, 16, v1")
            A("s_mov_b32 s91, 0xfffff")
            A("v_cndmask_b32 v10, v13, v10, vcc")
            A(f"s_lshl_b32 s3, {NT}, 1")
            A("v_add_u32 v10, s3, v10")
            A("v_and_b32 v13, 1, v1")
            A(f"s_lshl_b32 s3, {TT}, 1")
            A("v_add_u32 v13, s3, v13")
            A("v_cndmask_b32 v9, v13, v9, vcc")
            A.label(f"{N}_f1x")
            A("v_lshl_add_u32 v9, v9, 4, v10")
            A(f"v_lshlrev_b32 v9, {8 if ey else 7}, v9")
        if ey:
            A(f"s_cmp_eq_u32 {TY}, 2")
            A(f"s_cbranch_scc1 {N}_lo0")
            def lwait(tag, n):
                A.label(f"{N}_{tag}0")
                A("ds_read_b32 v10, v12 offset:4")
                A("s_sub_u32 s18, s18, 1")
                A("s_waitcnt lgkmcnt(0)")
                A("v_readfirstlane_b32 s3, v10")
                A(f"s_cmp_ge_u32 s3, {n}")
                A(f"s_cbranch_scc1 {N}_{tag}1")
                A("s_sleep 1")
                A("s_cmp_gt_i32 s18, 0")
                A(f"s_cbranch_scc1 {N}_{tag}0")
                A.label(f"{N}_{tag}1")
            lwait("ya", eyt[0])
            A(f"s_mov_b32 s18, {SPIN}")
            A(f"s_mov_b32 exec_lo, s91")
            A(f"s_mov_b32 exec_hi, 0")
            A.label(f"{N}_yp0")
            A(f"buffer_load_dwordx4 v[16:19], v9, s[{SWS}:{SWS+3}], s57 offen offset:128 sc1")
            A("s_waitcnt vmcnt(0)")
            A("v_min_u32 v10, v16, v17")
            A("v_min3_u32 v10, v10, v18, v19")
            A("v_cmp_eq_u32 vcc, 0, v10")
            A("s_sub_u32 s18, s18, 1")
            A("s_cmp_eq_u64 vcc, 0")
            A(f"s_cbranch_scc1 {N}_yp1")
            A(f"s_sleep {psleep}")
            A("s_cmp_gt_i32 s18, 0")
            A(f"s_cbranch_scc1 {N}_yp0")
            A.label(f"{N}_yp1")
            A("s_mov_b64 exec, -1")
            G(11)
            A(f"s_mov_b32 s18, {SPIN << 4}")
            if eyt[1]:
                lwait("yb", eyt[1])
            A(f"s_branch {N}_lp1")
        if own_wait:
            A.label(f"{N}_lo0")
            A("ds_read_b32 v10, v12")
            A("s_sub_u32 s18, s18, 1")
            A("s_waitcnt lgkmcnt(0)")
            A("v_readfirstlane_b32 s3, v10")
            A("s_cmp_eq_u32 s3, 4")
            A(f"s_cbranch_scc1 {N}_lo1")
            A("s_sleep 1")
            A("s_cmp_gt_i32 s18, 0")
            A(f"s_cbranch_scc1 {N}_lo0")
            A.label(f"{N}_lo1")
        A(f"s_mov_b32 s18, {SPIN}")
        if pull1:
            A(f"s_mov_b32 exec_lo, s91")
            A(f"s_mov_b32 exec_hi, 0")
        else:
            A(f"s_lshl_b32 s3, {NT}, 2")
            A("s_lshr_b32 s57, 0x1343, s3")
            A("s_and_b32 s57, s57, 15")
            A("s_lshl_b32 s57, s57, 3")
            A(f"s_cmp_eq_u32 {TY}, 2")
            A("s_cselect_b32 s57, 20, s57")
            A("s_sub_u32 s57, s57, 1")
            A("v_min_u32 v9, s57, v1")
            A("v_lshlrev_b32 v9, 2, v9")
            A(f"s_lshl_b32 s57, {JOB}, 10")
            A(f"s_add_u32 s57, s57, {W_F1}")
        A.label(f"{N}_lp0")
        A(f"buffer_load_dword v10, v9, s[{SWS}:{SWS+3}], s57 offen sc1")
        A("s_waitcnt vmcnt(0)")
        A("v_cmp_eq_u32 vcc, 0, v10")
        A("s_sub_u32 s18, s18, 1")
        A("s_cmp_eq_u64 vcc, 0")
        A(f"s_cbranch_scc1 {N}_lp1")
        if psleep:
            A(f"s_sleep {psleep}")
        A("s_cmp_gt_i32 s18, 0")
        A(f"s_cbranch_scc1 {N}_lp0")
        A.label(f"{N}_lp1")
        if pull1:
            A("s_mov_b64 exec, -1")
        A("v_mov_b32 v10, 2")
        A("ds_write_b32 v8, v10")
        A(f"s_branch {N}_lgo")
        A.label(f"{N}_lw1")
        A("ds_read_b32 v10, v8")
        A("s_sub_u32 s18, s18, 1")
        A("s_waitcnt lgkmcnt(0)")
        A("v_readfirstlane_b32 s3, v10")
        A("s_cmp_eq_u32 s3, 2")
        A(f"s_cbranch_scc1 {N}_lgo")
        A("s_sleep 1")
        A("s_cmp_gt_i32 s18, 0")
        A(f"s_cbranch_scc1 {N}_lw1")
        A.label(f"{N}_lgo")
        G(2)
        A("v_and_b32 v12, 0x330, v14")
        A("v_bfe_u32 v9, v1, 2, 1")
        A("v_lshl_add_u32 v12, v9, 7, v12")
        A("v_bfe_u32 v9, v1, 3, 1")
        A("v_lshl_add_u32 v12, v9, 12, v12")
        A(f"v_add_u32 v12, {LDST}, v12")
        A(f"v_add_u32 v9, 65536, v12")
        A(f"s_cmp_eq_u32 {TY}, 2")
        A(f"s_cbranch_scc1 {N}_lg")
        KP = "s55"
        def p2_loader(isg):
            vm = Cnt(A, "vmcnt", 63)
            paux = pauxg if isg else pauxy
            if rot2:
                curB[0] = rot2[1] if isg else rot2[0]
            def p_issue(st):
                if rot2:
                    A(f"s_add_u32 s18, {KO}, {st*128}")
                    A("s_and_b32 s18, s18, s55")
                    A(f"s_lshl_b32 s18, s18, 7")
                    A(f"s_add_u32 s18, s18, {PB}")
                for m in range(4):
                    A(f"s_add_u32 m0, {LDST}, {PSL[st & 3] + m*4096}")
                    if rot2:
                        A(f"s_add_u32 s3, s18, {(st & ~(curB[0]-1))*16384 + m*4096}")
                    else:
                        A(f"s_add_u32 s3, {PB}, {(st % 4 if 'P' in dbgm else st)*16384 + m*4096}")
                    A(f"buffer_load_dwordx4 v14, s[{SWS}:{SWS+3}], s3 offen {paux} lds")
                    vm.op(st)
            def z1_write(h):
                for wj in range(2):
                    for m in range(4):
                        A(f"ds_write_b128 {'v9' if wj else 'v12'}, {v(ZR1 + 4*(wj*8 + 4*h + m), 4)} offset:{(2-h)*16384 + (m&2)*4096 + (m&1)*64}")
            for s_ in range(3):
                if q_at[s_] == "p":
                    q_issue(s_, vm, s_)
                p_issue(s_)
            q_rload("p", vm)
            wrote = False
            for n in range(17):
                if wrote:
                    A("s_waitcnt lgkmcnt(0)")
                    wrote = False
                vm.need(n)
                if n == 0:
                    G(3)
                if n == 16:
                    G(4)
                A("s_barrier")
                if 1 <= n <= 13:
                    if n + 2 in qreg:
                        q_write(n + 2, vm)
                        wrote = True
                    else:
                        q_issue(n + 2, vm, n + 2)
                if pairp:
                    if n == 0:
                        p_issue(3)
                    elif n % 2 == 0 and n <= 12:
                        p_issue(n + 2)
                        p_issue(n + 3)
                elif n <= 12:
                    p_issue(n + 3)
                q_rload(n, vm)
                if qpf:
                    for q in ([n + qpf] if n else range(3, qpf + 1)):
                        if q <= 15 and q not in qpre:
                            q_touch(q, vm)
                if ppf and n % 2 == 0 and n + ppf + 1 <= 15:
                    st = n + ppf
                    assert (st & ~(curB[0]-1)) == ((st + 1) & ~(curB[0]-1))
                    A(f"s_lshr_b32 s3, {W}, 1")
                    A(f"s_lshl_b32 s3, s3, 7")
                    A(f"s_add_u32 s18, {KO}, s3")
                    A(f"s_add_u32 s18, s18, {st*128}")
                    A("s_and_b32 s18, s18, s55")
                    A(f"s_lshl_b32 s18, s18, 7")
                    A(f"s_add_u32 s18, s18, {PB}")
                    A(f"s_sub_u32 s18, s18, {LDST}")
                    A(f"s_and_b32 s3, {W}, 1")
                    A(f"s_lshl_b32 s3, s3, 13")
                    A(f"s_add_u32 s3, s3, s18")
                    A(f"s_add_u32 s3, s3, {(st & ~(curB[0]-1))*16384}")
                    A(f"buffer_load_dword v10, v13, s[{SWS}:{SWS+3}], s3 offen")
                    vm.op("pf")
                if isg:
                    per = 16 // len(z1s)
                    for i, at in enumerate(z1s):
                        if at == n:
                            z1_loads(range(per*i, per*i+per), vm)
                for i, at in enumerate(wot_at):
                    if at == n:
                        wot_loads(i, vm)
                if tlbw is not None and n == tlbw[0]:
                    A("v_lshlrev_b32 v2, 18, v1")
                    A(f"s_mov_b32 s3, {W_Y}")
                    A(f"buffer_load_dword v3, v2, s[{SWS}:{SWS+3}], s3 offen {tlbw[1]}")
                    vm.op("ipf")
                    A("v_lshlrev_b32 v2, 15, v1")
                    A(f"buffer_load_dword v4, v2, s[{SO}:{SO+3}], 0 offen {tlbw[1]}")
                    vm.op("ipf")
                if ipf and n in ipf2:
                    A("v_lshlrev_b32 v2, 7, v1")
                    A(f"s_add_u32 s3, s68, {N}_{ipf2b}-{N}_pc0")
                    A(f"buffer_load_dword v10, v2, s[{SP}:{SP+3}], s3 offen")
                    vm.op("ipf")
                if isg and n in (14, 15):
                    vm.need("z1")
                    z1_write(15 - n)
                    wrote = True
            A(f"s_branch {N}_p3l")
        PE_()
        PB_("ly")
        p2_loader(False)
        PE_()
        A.label(f"{N}_lg")
        PB_("lg")
        p2_loader(True)
        PE_()
        A.label(f"{N}_spare")
        A("s_waitcnt vmcnt(0)")
        A("s_barrier")
        A("v_lshlrev_b32 v9, 7, v1")
        A(f"s_and_b32 s3, {RANK}, 1")
        A(f"s_lshl2_add_u32 s3, s3, {W}")
        A("s_lshl_b32 s3, s3, 13")
        A(f"s_add_u32 s3, s3, {WS_WOT}")
        for i in range(14):
            A(f"buffer_load_dword v8, v9, s[{SWS}:{SWS+3}], s3 offen")
            A("s_add_u32 s3, s3, 65536")
        for i in range(4):
            wot_loads(i)
        A(f"s_branch {N}_p3l")

    FR, FS, ACC, CSA, ONE = 32, 52, 136, 224, 16
    A.label(f"{N}_comp")
    A("v_and_b32 v26, 15, v1")
    A("v_lshrrev_b32 v27, 4, v1")
    STO = "s69"
    A(f"s_lshl_b32 s3, {RB}, 4")
    A(f"s_add_u32 s3, s3, {CG}")
    A(f"s_lshl_b32 {STO}, s3, 10")
    A(f"s_add_u32 {STO}, {STO}, {W_ST}")
    A("s_getreg_b32 s18, hwreg(HW_REG_XCC_ID, 0, 3)")
    A("s_add_u32 s18, s18, 1")
    A(f"s_lshl_b32 {KEY}, s18, 8")
    A("s_and_b32 s3, s2, 7")
    A("s_lshl_b32 s3, s3, 5")
    A(f"s_or_b32 {KEY}, {KEY}, s3")
    A("s_lshr_b32 s3, s2, 3")
    A(f"s_or_b32 {KEY}, {KEY}, s3")
    A("v_mov_b32 v24, s18")
    TV = "v15" if tsp else "v14"
    if tsp:
        A(f"v_lshlrev_b32 v15, {tsp}, v1")
    for i in range(4):
        A(f"v_mov_b32 v{ACC+i}, 0")
    A(f"s_and_b32 s57, {RB}, 7")
    JD, JS = 32, 48
    A("s_cmp_eq_u32 s19, 3")
    A(f"s_cbranch_scc1 {N}_j3")
    A("s_lshl1_add_u32 s48, s2, s19")
    A("s_and_b32 s3, s2, 127")
    A("s_cmp_eq_u32 s19, 2")
    A("s_cselect_b32 s48, s3, s48")
    A("s_lshl_b32 s48, s48, 12")
    A("s_waitcnt lgkmcnt(0)")
    A("s_bitcmp1_b32 s2, 7")
    A("s_cselect_b64 s[16:17], s[10:11], s[8:9]")
    A("s_cmp_eq_u32 s19, 2")
    A("s_cselect_b64 s[16:17], s[16:17], s[4:5]")
    srd(A, SW, "s16", "s17", 2048 * 1024)
    A("s_cmp_eq_u32 s19, 2")
    A(f"s_cselect_b32 s{SW+2}, {512*1024}, s{SW+2}")
    for j in range(4):
        A(f"buffer_load_dwordx4 {v(JD+4*j,4)}, v14, s[{SW}:{SW+3}], s48 offen offset:{j*1024} {saux}")
    A(f"s_branch {N}_tx")
    A.label(f"{N}_j3")
    A("s_load_dwordx2 s[16:17], s[0:1], 72")
    A(f"s_lshl_b32 s49, s2, {(8 if ey else 7) if pull1 else 10}")
    A(f"s_add_u32 s49, s49, {W_BX}")
    A("v_lshrrev_b32 v20, 3, v1")
    A("v_and_b32 v21, 7, v1")
    A("v_lshrrev_b32 v22, 5, v1")
    A("v_lshlrev_b32 v22, 1, v22")
    A("v_xor_b32 v21, v21, v22")
    A("v_xor_b32 v22, 4, v21")
    A("v_lshlrev_b32 v21, 4, v21")
    A("v_lshlrev_b32 v22, 4, v22")
    A("v_lshl_add_u32 v21, v20, 10, v21")
    A("v_lshl_add_u32 v22, v20, 10, v22")
    A("s_lshr_b32 s50, s2, 3")
    A("s_and_b32 s51, s2, 7")
    A("s_lshl_b32 s48, s50, 15")
    A("s_lshl_b32 s3, s51, 7")
    A("s_add_u32 s48, s48, s3")
    A("s_waitcnt lgkmcnt(0)")
    srd(A, SI, "s16", "s17", 896 * 1024)
    srd(A, SWS, "s14", "s15", WS_TOT2)
    A("s_cmp_eq_u32 s2, 0")
    A(f"s_cbranch_scc0 {N}_nan")
    A(f"s_mov_b32 s3, {W_TB}")
    A(f"buffer_store_dwordx4 {v(ACC,4)}, {TV}, s[{SWS}:{SWS+3}], s3 offen sc1")
    srd(A, SDB, "s12", "s13", 256)
    A("s_mov_b64 exec, 1")
    A("s_waitcnt vmcnt(0)")
    A(f"buffer_store_dword v24, v14, s[{SDB}:{SDB+3}], 0 offen sc1")
    A("s_mov_b64 exec, -1")
    A.label(f"{N}_nan")
    for m in range(4):
        A(f"s_mov_b32 m0, {LTR + m*1024}")
        A(f"s_add_u32 s3, s48, {m*8192}")
        A(f"buffer_load_dwordx4 v{21+(m&1)}, s[{SI}:{SI+3}], s3 offen {saux} lds")
    A(f"buffer_store_dwordx4 {v(ACC,4)}, v14, s[{SWS}:{SWS+3}], {STO} offen sc1")
    A(f"s_mov_b64 exec, {'0xffff' if ey else '0xff'}")
    A(f"buffer_store_dwordx4 {v(ACC,4)}, v14, s[{SWS}:{SWS+3}], s49 offen sc1")
    if ey and not pull2:
        A("s_mov_b64 exec, 0xff")
    A(f"s_lshl_b32 s49, s2, {9 if pull2 else f2s}")
    A(f"s_add_u32 s49, s49, {W_F2}")
    if pull2:
        A("s_mov_b32 exec_lo, -1")
    A(f"buffer_store_dwordx4 {v(ACC,4)}, v14, s[{SWS}:{SWS+3}], s49 offen sc1")
    A("s_mov_b64 exec, -1")
    A("s_mul_i32 s51, s51, 112")
    A("s_add_u32 s51, s51, s50")
    A("s_lshl_b32 s51, s51, 10")
    A(f"s_add_u32 s51, s51, {WS_WOT}")
    A("s_cmp_ge_u32 s2, 224")
    A(f"s_cselect_b32 s51, {WS_TOT2}, s51")
    A.label(f"{N}_tx")
    srd(A, SX, "s4", "s5", 2048 * 1024)
    srd(A, SWS, "s14", "s15", WS_TOT2)
    srd(A, SDB, "s12", "s13", 256)
    A("v_lshrrev_b32 v28, 2, v26")
    A("v_and_b32 v29, 3, v26")
    A("v_lshl_add_u32 v28, v28, 3, v29")
    A("s_lshl_b32 s3, s19, 5")
    A("v_add_u32 v28, s3, v28")
    A("v_lshlrev_b32 v28, 7, v28")
    A("v_bfe_u32 v29, v26, 1, 1")
    A("v_bfe_u32 v25, v26, 3, 1")
    A("v_lshl_or_b32 v29, v25, 1, v29")
    A("v_bfe_u32 v25, v26, 2, 1")
    A("v_lshl_or_b32 v29, v25, 2, v29")
    A("v_xor_b32 v29, v29, v27")
    A("v_lshl_add_u32 v2, v29, 4, v28")
    A("v_xor_b32 v3, 32, v2")
    A("v_add_u32 v3, 512, v3")
    A("v_xor_b32 v4, 64, v2")
    A("v_xor_b32 v5, 64, v3")
    A("v_bfe_u32 v29, v26, 1, 3")
    A("v_xor_b32 v29, v29, v27")
    A("v_lshlrev_b32 v28, 7, v26")
    A("v_lshl_add_u32 v6, v29, 4, v28")
    A(f"v_add_u32 v10, {LW}, v6")
    A(f"v_add_u32 v6, {LD}, v6")
    A("v_xor_b32 v7, 32, v6")
    A("v_xor_b32 v8, 64, v6")
    A("v_xor_b32 v9, 64, v7")
    A("v_xor_b32 v11, 32, v10")
    A("v_xor_b32 v12, 64, v10")
    A("v_xor_b32 v13, 64, v11")
    A(f"s_cmp_eq_u32 {ABO}, 1")
    A(f"s_cbranch_scc1 {N}_natr")
    A("v_lshrrev_b32 v28, 2, v26")
    A("v_lshl_add_u32 v28, v27, 3, v28")
    A("v_lshlrev_b32 v28, 7, v28")
    A("v_and_b32 v29, 3, v26")
    A("v_lshl_add_u32 v28, v29, 3, v28")
    A("v_bfe_u32 v29, v26, 3, 1")
    A("v_and_b32 v25, 1, v27")
    A("v_lshl_or_b32 v29, v25, 1, v29")
    A("v_xor_b32 v29, s19, v29")
    A("v_lshl_add_u32 v10, v29, 5, v28")
    A(f"v_add_u32 v10, {LW}, v10")
    for tt in range(1, 4):
        A(f"v_xor_b32 v{10+tt}, {tt*32}, v10")
    A.label(f"{N}_natr")
    for i in range(4, 96):
        A(f"v_mov_b32 v{ACC+i}, 0")
    for i in range(4):
        A(f"v_mov_b32 v{ONE+i}, 0x3f803f80")
    A("v_lshlrev_b32 v28, 2, v1")
    if pull1:
        A(f"s_lshl4_add_u32 s3, {RB}, {CG}")
        A(f"s_lshl_b32 s3, s3, {8 if ey else 7}")
        A(f"s_add_u32 s3, s3, {W_F1}")
        A("v_mov_b32 v252, s3")
        if ey:
            A("s_lshl2_add_u32 s3, s19, s3")
            A("v_mov_b32 v253, s3")
    else:
        A(f"s_mul_i32 s3, {U0}, 11")
        A("s_lshr_b32 s3, s3, 5")
        A("s_lshl_b32 s3, s3, 2")
        A("s_lshr_b32 s18, 0xA9765210, s3")
        A("s_lshr_b32 s3, 0xC9865410, s3")
        for r in ("s18", "s3"):
            A(f"s_bfe_u32 s48, {r}, 0x20002")
            A("s_lshl_b32 s48, s48, 10")
            A(f"s_and_b32 {r}, {r}, 3")
            A(f"s_lshl_b32 {r}, {r}, 5")
            A(f"s_add_u32 {r}, {r}, s48")
        A("v_mov_b32 v22, s18")
        A("v_mov_b32 v23, s3")
        A("v_cmp_gt_u32 vcc, 8, v1")
        A("v_bfe_u32 v21, v1, 2, 1")
        A("v_lshlrev_b32 v21, 17, v21")
        A("v_cndmask_b32 v22, v23, v22, vcc")
        A("v_and_b32 v23, 3, v1")
        A("v_lshl_add_u32 v21, v23, 12, v21")
        A("v_add_u32 v21, v21, v22")
        A(f"s_lshr_b32 s48, {RB}, 3")
        A(f"s_lshl1_add_u32 s3, {ISB}, s48")
        A("s_lshl_b32 s3, s3, 15")
        A("s_lshl2_add_u32 s3, s57, s3")
        A(f"s_add_u32 s3, s3, {W_F1}")
        A("v_add_u32 v252, s3, v21")
        A(f"s_lshr_b32 s49, {CG}, 1")
        A("s_lshl_b32 s49, s49, 10")
        A(f"s_add_u32 s49, s49, {W_F1 + 16384}")
        A(f"s_lshr_b32 s3, {RB}, 1")
        A("s_lshl_b32 s3, s3, 15")
        A("s_add_u32 s3, s3, s49")
        A(f"s_and_b32 s18, {CG}, 1")
        A("s_lshl3_add_u32 s3, s18, s3")
        A(f"s_and_b32 s50, {RB}, 1")
        A("s_lshl2_add_u32 s3, s50, s3")
        A("s_add_u32 s3, s3, 64")
        A("v_and_b32 v21, 1, v1")
        A("v_mul_u32_u24 v21, 7168, v21")
        A("v_cmp_gt_u32 vcc, 16, v1")
        A("v_add_u32 v21, s3, v21")
        A("v_lshlrev_b32 v22, 15, v1")
        A("v_cndmask_b32 v252, v21, v252, vcc")
        A("s_mul_i32 s3, s48, 7168")
        A("s_add_u32 s3, s3, s49")
        A("s_lshl_b32 s18, s18, 5")
        A("s_add_u32 s3, s3, s18")
        A("s_lshl2_add_u32 s3, s57, s3")
        A(f"s_sub_u32 s3, s3, {18 << 15}")
        A("v_cmp_gt_u32 vcc, 18, v1")
        A("v_add_u32 v253, s3, v22")
        A("v_cndmask_b32 v252, v253, v252, vcc")
    A("s_cmp_eq_u32 s19, 3")
    A(f"s_cbranch_scc1 {N}_k3")
    for i in range(8):
        A(f"v_mov_b32 v{JS+i}, 0")
    A("s_lshl1_add_u32 s48, s2, s19")
    A("s_lshl_b32 s48, s48, 4")
    A(f"s_add_u32 s48, s48, {W_RS}")
    A("s_lshl_b32 s49, s2, 4")
    A(f"s_add_u32 s49, s49, {W_RS + 16384}")
    A("v_mov_b32 v20, 0")
    for j in range(4):
        A(f"s_waitcnt vmcnt({3-j})")
        for d in range(4):
            A(f"v_dot2c_f32_bf16 v{JS+j}, v{JD+4*j+d}, v{ONE}")
            A(f"v_dot2c_f32_bf16 v{JS+4+j}, v{JD+4*j+d}, v{JD+4*j+d}")
    A("s_nop 2")
    for dpp in ("quad_perm:[1,0,3,2] row_mask:0xf", "quad_perm:[2,3,0,1] row_mask:0xf", "row_half_mirror row_mask:0xf", "row_mirror row_mask:0xf",
                "row_bcast:15 row_mask:0xa", "row_bcast:31 row_mask:0xc"):
        for i in range(8):
            A(f"v_add_f32_dpp v{JS+i}, v{JS+i}, v{JS+i} {dpp} bank_mask:0xf")
    A("s_mov_b32 exec_lo, 0")
    A("s_mov_b32 exec_hi, 0x80000000")
    A("s_cmp_eq_u32 s19, 2")
    A(f"s_cbranch_scc0 {N}_k0")
    A(f"buffer_store_dwordx4 {v(JS,4)}, v20, s[{SWS}:{SWS+3}], s49 offen sc1")
    A(f"s_branch {N}_kx")
    A.label(f"{N}_k0")
    for i in range(8):
        A(f"v_mul_f32 v{JS+i}, 0x3b000000, v{JS+i}")
    for j in range(4):
        A(f"v_fma_f32 v{JS+4+j}, -v{JS+j}, v{JS+j}, v{JS+4+j}")
    for j in range(4):
        A(f"v_add_f32 v{JS+4+j}, {EPS}, v{JS+4+j}")
    for j in range(4):
        A(f"v_rsq_f32 v{JS+4+j}, v{JS+4+j}")
    A("s_add_u32 s49, s48, 8192")
    A(f"buffer_store_dwordx4 {v(JS,4)}, v20, s[{SWS}:{SWS+3}], s49 offen sc1")
    A(f"buffer_store_dwordx4 {v(JS+4,4)}, v20, s[{SWS}:{SWS+3}], s48 offen sc1")
    A(f"s_branch {N}_kx")
    A.label(f"{N}_k3")
    A("v_bfe_u32 v20, v1, 2, 2")
    A("v_lshl_add_u32 v20, v27, 2, v20")
    A("v_lshlrev_b32 v20, 7, v20")
    A(f"v_add_u32 v20, {LTR}, v20")
    A("v_and_b32 v21, 1, v1")
    A("v_lshl_add_u32 v20, v21, 3, v20")
    A("v_bfe_u32 v21, v1, 1, 1")
    A("v_lshlrev_b32 v22, 1, v27")
    for db in range(4):
        A(f"v_xor_b32 v23, {2*db}, v22")
        A("v_or_b32 v23, v23, v21")
        A(f"v_lshl_add_u32 v{JS+db}, v23, 4, v20")
    A("s_waitcnt vmcnt(3)")
    for db in range(4):
        A(f"ds_read_b64_tr_b16 {v(JD+4*db,2)}, v{JS+db}")
        A(f"ds_read_b64_tr_b16 {v(JD+2+4*db,2)}, v{JS+db} offset:2048")
    A("s_waitcnt lgkmcnt(0)")
    for db in range(4):
        A(f"s_add_u32 s3, s51, {db*28*1024}")
        A(f"buffer_store_dwordx4 {v(JD+4*db,4)}, v14, s[{SWS}:{SWS+3}], s3 offen sc1")
    A.label(f"{N}_kx")
    A("s_mov_b64 exec, -1")
    A(f"s_cmp_eq_u32 {ABO}, 1")
    A(f"s_cbranch_scc1 {N}_cab")

    def special(b, tag):
        if b == pub_at:
            A("s_waitcnt vmcnt(0)")
            A("s_cmp_eq_u32 s19, 3")
            A(f"s_cbranch_scc0 {N}_{tag}_nan")
            A(f"s_mov_b32 s18, {SPIN}")
            A.label(f"{N}_{tag}_an0")
            A("v_readfirstlane_b32 s3, v20")
            A("s_sub_u32 s18, s18, 1")
            A("s_cmp_lg_u32 s3, 0")
            A(f"s_cbranch_scc1 {N}_{tag}_nan")
            A("s_cmp_le_i32 s18, 0")
            A(f"s_cbranch_scc1 {N}_{tag}_nan")
            A(f"buffer_load_dword v20, off, s[{SDB}:{SDB+3}], 0 sc1")
            A("s_waitcnt vmcnt(0)")
            A(f"s_branch {N}_{tag}_an0")
            A.label(f"{N}_{tag}_nan")
        if b == tbl_at:
            A("s_cmp_eq_u32 s19, 3")
            A(f"s_cbranch_scc0 {N}_{tag}_ntl")
            A(f"s_mov_b32 s3, {W_TB}")
            A(f"buffer_load_dwordx4 v[20:23], {TV}, s[{SWS}:{SWS+3}], s3 offen {taux}")
            A.label(f"{N}_{tag}_ntl")
        if b == rank_at:
            A("s_cmp_eq_u32 s19, 3")
            A(f"s_cbranch_scc0 {N}_{tag}_nrk")
            A(f"s_mov_b32 s18, {SPIN}")
            A.label(f"{N}_{tag}_rk0")
            A("s_waitcnt vmcnt(0)")
            A("v_min_u32 v24, v20, v21")
            A("v_min3_u32 v24, v24, v22, v23")
            A("v_cmp_eq_u32 vcc, 0, v24")
            A("s_sub_u32 s18, s18, 1")
            A("s_cmp_eq_u64 vcc, 0")
            A(f"s_cbranch_scc1 {N}_{tag}_rk1")
            A("s_cmp_le_i32 s18, 0")
            A(f"s_cbranch_scc1 {N}_{tag}_rk1")
            A("s_sleep 2")
            A(f"s_mov_b32 s3, {W_TB}")
            A(f"buffer_load_dwordx4 v[20:23], {TV}, s[{SWS}:{SWS+3}], s3 offen sc1")
            A(f"s_branch {N}_{tag}_rk0")
            A.label(f"{N}_{tag}_rk1")
            A(f"s_mov_b32 {RANK}, 0")
            A("s_mov_b32 s48, 0")
            A("s_mov_b32 s49, 0")
            A(f"s_lshr_b32 s18, {KEY}, 8")
            for j in range(4):
                A(f"v_lshl_add_u32 v24, v{20+j}, 8, v28")
                A(f"v_cmp_gt_u32 s[50:51], s18, v{20+j}")
                A(f"v_add_u32 v24, {j}, v24")
                A(f"v_cmp_eq_u32 s[52:53], s18, v{20+j}")
                A(f"v_cmp_gt_u32 vcc, {KEY}, v24")
                A("s_bcnt1_i32_b64 s3, s[50:51]")
                A("s_add_u32 s48, s48, s3")
                A("s_bcnt1_i32_b64 s3, s[52:53]")
                A("s_add_u32 s49, s49, s3")
                A("s_bcnt1_i32_b64 s3, vcc")
                A(f"s_add_u32 {RANK}, {RANK}, s3")
            A("s_and_b32 s48, s48, 31")
            A("s_xor_b32 s49, s49, 32")
            A("s_or_b32 s48, s48, s49")
            A("s_cmp_eq_u32 s48, 0")
            A(f"s_cselect_b32 s3, {0 if (nofast or gmap) else 256}, 0")
            A(f"s_or_b32 {RANK}, {RANK}, s3")
            A(f"v_mov_b32 v20, {RANK}")
            for j in range(3):
                A(f"v_mov_b32 v{21+j}, 0")
            A(f"v_mov_b32 v24, {LMISC}")
            A("ds_write_b128 v24, v[20:23]")
            A("s_waitcnt lgkmcnt(0)")
            A.label(f"{N}_{tag}_nrk")

    def after(b, tag):
        if b == pub_at - 1:
            A("s_cmp_eq_u32 s19, 3")
            A(f"s_cbranch_scc0 {N}_{tag}_nal")
            A(f"buffer_load_dword v20, off, s[{SDB}:{SDB+3}], 0 sc1")
            A.label(f"{N}_{tag}_nal")
        if b == pub_at:
            A("s_cmp_eq_u32 s19, 3")
            A(f"s_cbranch_scc0 {N}_{tag}_npb")
            if relx:
                A("v_readfirstlane_b32 s18, v20")
                A(f"s_lshr_b32 s3, {KEY}, 8")
                A("s_sub_u32 s3, s3, s18")
                A("s_and_b32 s3, s3, 7")
                A("s_add_u32 s3, s3, 1")
                A("v_mov_b32 v24, s3")
                A("s_lshl_b32 s3, s3, 8")
                A(f"s_and_b32 {KEY}, {KEY}, 255")
                A(f"s_or_b32 {KEY}, {KEY}, s3")
            if tsp:
                A(f"s_bfe_u32 s3, {KEY}, 0x60002")
                A(f"s_lshl_b32 s3, s3, {tsp}")
                A(f"s_and_b32 s18, {KEY}, 3")
                A("s_lshl2_add_u32 s3, s18, s3")
            else:
                A(f"s_and_b32 s3, {KEY}, 255")
                A("s_lshl_b32 s3, s3, 2")
            A(f"s_add_u32 s3, s3, {W_TB}")
            A("s_mov_b64 exec, 1")
            A(f"buffer_store_dword v24, off, s[{SWS}:{SWS+3}], s3 sc1")
            A("s_mov_b64 exec, -1")
            A.label(f"{N}_{tag}_npb")

    def p1_compute(ztype):
        tag = "cz" if ztype else "cab"
        A.label(f"{N}_{tag}")
        lg = Cnt(A, "lgkmcnt", 15)
        if ztype:
            tiles = [("z2", i) for i in range(4)] + [("z1", i) for i in range(4)] + [("ab", i) for i in range(3)]
        else:
            tiles = [("ab", i) for i in range(11)]
        def reads(ss):
            st, sub = ss >> 1, ss & 1
            sl = st & 3
            f = FR + FS * (ss & 1)
            r = []
            def mk(s_, t_):
                r.append((s_, t_))
            def wr(w):
                k, i = tiles[w]
                fw = f + 8 + 4 * w
                if k == "ab":
                    if ztype:
                        mk(f"ds_read_b128 {v(fw,4)}, v{6+2*sub+(i&1)} offset:{sl*6144 + i*2048}", (ss, "w", w))
                    elif i < 8:
                        mk(f"ds_read_b128 {v(fw,4)}, v{10+2*sub+(i&1)} offset:{sl*16384 + i*2048}", (ss, "w", w))
                    else:
                        mk(f"ds_read_b128 {v(fw,4)}, v{6+2*sub+(i&1)} offset:{sl*6144 + (i-8)*2048}", (ss, "w", w))
                else:
                    o = sl * 16384 + (8192 if k == "z1" else 0) + sub * 4096
                    mk(f"ds_read_b64_tr_b16 {v(fw,2)}, v{10+i} offset:{o}", (ss, "w", w))
                    mk(f"ds_read_b64_tr_b16 {v(fw+2,2)}, v{10+i} offset:{o+512}", (ss, "w", w))
            mk(f"ds_read_b128 {v(f,4)}, v{2+2*sub} offset:{sl*16384}", (ss, "x", 0))
            wr(0)
            mk(f"ds_read_b128 {v(f+4,4)}, v{3+2*sub} offset:{sl*16384}", (ss, "x", 1))
            for w in range(1, len(tiles)):
                wr(w)
            return r
        def accof(w, T):
            k, i = tiles[w]
            if k == "z1":
                return ACC + 32 + (T * 4 + i) * 4
            return ACC + (w * 2 + T) * 4
        ml = []
        for w in range(len(tiles)):
            ml += [(w, 0), (w, 1)]
            if ztype and w in (0, 4):
                ml.append((w, "c"))
        def mf(ss, idx):
            f = FR + FS * (ss & 1)
            w, T = ml[idx]
            wa = v(f + 8 + 4 * w, 4)
            lg.need((ss, "w", w))
            if T == "c":
                c = CSA + (4 if w else 0)
                A(f"v_mfma_f32_16x16x32_bf16 {v(c,4)}, {v(ONE,4)}, {wa}, {v(c,4)}")
                return
            lg.need((ss, "x", T))
            ac = accof(w, T)
            xa = v(f + 4 * T, 4)
            if tiles[w][0] == "z1":
                A(f"v_mfma_f32_16x16x32_bf16 {v(ac,4)}, {wa}, {xa}, {v(ac,4)}")
            else:
                A(f"v_mfma_f32_16x16x32_bf16 {v(ac,4)}, {xa}, {wa}, {v(ac,4)}")
        nm = len(ml)
        PB_(tag, 4)
        special(0, tag)
        if stamp:
            st2(A, 1)
        A("s_barrier")
        after(0, tag)
        if stamp:
            st2(A, 2)
            lg.all()
        for s_, t_ in reads(0):
            A(s_); lg.op(t_)
        for ss in range(16):
            nxt = reads(ss + 1) if ss < 15 else []
            first = 0
            if ss & 1:
                first = 4
            ri = 0
            for i in range(nm):
                mf(ss, i)
                if (ss & 1) and i == 3 and ss < 15:
                    lg.all()
                    special((ss >> 1) + 1, tag)
                    A("s_barrier")
                    after((ss >> 1) + 1, tag)
                    if stamp:
                        st2(A, 2 + (ss >> 1) + 1)
                        lg.all()
                if i >= first - 1:
                    slots = nm - 1 - i
                    rem = len(nxt) - ri
                    k = 1 if rem <= slots else rem - slots
                    k = min(max(k, 1), 2) if slots > 0 else rem
                    for _ in range(min(k, rem)):
                        A(nxt[ri][0]); lg.op(nxt[ri][1]); ri += 1
            assert ri == len(nxt)
        if stamp:
            st2(A, 10)
        E(1)
        PE_()
        PB_("e" + tag)
        RQ = FR
        CZ = 48
        AC = 56
        ZR = 80
        ZC = 84
        TT = 100
        SS = 116
        nab = 3 if ztype else 11
        w0 = 8 if ztype else 0
        A("s_lshl_b32 s3, s19, 7")
        A(f"s_add_u32 s3, s3, {LRM}")
        A("v_lshl_add_u32 v28, v27, 5, s3")
        A(f"v_lshlrev_b32 v25, 2, v26")
        if ztype:
            A("s_lshl_b32 s18, s19, 6")
            A(f"s_add_u32 s18, s18, {LCSW}")
            A("v_add_u32 v24, s18, v25")
            A("v_lshl_add_u32 v23, v27, 4, s18")
            A("v_lshrrev_b32 v22, 2, v26")
            A("v_and_b32 v21, 3, v26")
            A("v_lshl_add_u32 v22, v22, 3, v21")
            A("v_lshl_add_u32 v22, v22, 2, s3")
            A(f"v_mov_b32 v30, {f32(C1)}")
            A(f"v_mov_b32 v31, {f32(C0)}")
            A(f"ds_write_b32 v24, v{CSA}")
            A(f"ds_write_b32 v24, v{CSA+4} offset:256")
        A(f"s_lshl_b32 s48, {RB}, 2")
        A("s_add_u32 s48, s48, s19")
        A("s_lshl_b32 s49, s48, 13")
        A(f"s_mul_i32 s50, {ISB}, {WS_B - WS_A}")
        A("s_add_u32 s50, s50, s49")
        A(f"s_add_u32 s50, s50, {WS_A}")
        A("s_waitcnt lgkmcnt(0)")
        A("s_barrier")
        E(2)
        if est:
            A("s_waitcnt lgkmcnt(0)")
        for h in range(2):
            A(f"ds_read_b128 {v(RQ+4*h,4)}, v28 offset:{h*16}")
            A(f"ds_read_b128 {v(RQ+8+4*h,4)}, v28 offset:{512+h*16}")
        def czr():
            for i in range(4):
                A(f"v_xor_b32 v21, {i*64}, v24")
                A(f"ds_read_b32 v{CZ+2*i}, v21")
        if ztype and not ey:
            czr()
        A(f"v_add_u32 v25, {LCSD}, v25")
        for i in range(nab):
            A(f"ds_read_b32 v{AC+2*i}, v25 offset:{i*64}")
        if ztype and ey:
            czr()
        if ztype:
            for T in range(2):
                A(f"ds_read2_b32 {v(ZR+2*T,2)}, v22 offset0:{4*T} offset1:{128+4*T}")
            for i in range(4):
                A(f"v_xor_b32 v21, {i*64}, v23")
                A(f"ds_read_b128 {v(ZC+4*i,4)}, v21 offset:256")

        def fold(ac, cs, RR=RQ):
            for d in range(4):
                A(f"v_pk_fma_f32 {v(ac+2*d,2)}, {v(RQ+8+2*d,2)}, {v(cs,2)}, {v(ac+2*d,2)} op_sel_hi:[1,0,1] neg_lo:[0,1,0] neg_hi:[0,1,0]")
            for d in range(4):
                A(f"v_pk_mul_f32 {v(ac+2*d,2)}, {v(ac+2*d,2)}, {v(RR+2*d,2)}")
        def gelu(ac, tm):
            pr = [ac, ac + 2, ac + 4, ac + 6]
            for i, r in enumerate(pr):
                A(f"v_pk_mul_f32 {v(tm+2*i,2)}, {v(r,2)}, {v(r,2)}")
            for i, r in enumerate(pr):
                A(f"v_pk_fma_f32 {v(tm+2*i,2)}, {v(tm+2*i,2)}, v[30:31], v[30:31] op_sel:[0,0,1] op_sel_hi:[1,0,1]")
            for i, r in enumerate(pr):
                A(f"v_pk_mul_f32 {v(tm+2*i,2)}, {v(tm+2*i,2)}, {v(r,2)}")
            for i in range(8):
                A(f"v_exp_f32 v{tm+i}, v{tm+i}")
            for i, r in enumerate(pr):
                A(f"v_pk_add_f32 {v(tm+2*i,2)}, {v(tm+2*i,2)}, 1.0 op_sel_hi:[1,0]")
            for i in range(8):
                A(f"v_rcp_f32 v{tm+i}, v{tm+i}")
            for i, r in enumerate(pr):
                A(f"v_pk_mul_f32 {v(r,2)}, {v(tm+2*i,2)}, {v(r,2)}")
        def cvt(ac):
            for d in range(4):
                A(f"v_cvt_pk_bf16_f32 v{ac+d}, v{ac+2*d}, v{ac+2*d+1}")
        RA = SS if ey else RQ
        def aflag():
            A("s_mov_b64 exec, 1")
            A(f"buffer_store_dword v{ONE}, v253, s[{SWS}:{SWS+3}], 0 offen offset:128 sc1")
            A("s_mov_b64 exec, -1")
        def tick(n=1):
            A(f"v_mov_b32 v21, {LMISC + 12}")
            A(f"v_mov_b32 v20, {n}")
            A("s_mov_b64 exec, 1")
            A("ds_add_u32 v21, v20")
            A("s_mov_b64 exec, -1")
        def ab_epi():
            A(f"s_lshl_b32 s3, {ISB}, 31")
            for i in range(8):
                A(f"v_xor_b32 v{RA+i}, s3, v{RQ+i}")
            for i in range(nab):
                ac = accof(w0 + i, 0)
                A(f"s_add_u32 s3, {U0}, {i}")
                A("s_lshr_b32 s18, s3, 3")
                A("s_lshl_b32 s18, s18, 19")
                A("s_and_b32 s3, s3, 7")
                A("s_lshl_b32 s3, s3, 10")
                A("s_add_u32 s3, s3, s18")
                A("s_add_u32 s3, s3, s50")
                fold(ac, AC + 2 * i, RA)
                cvt(ac)
                if "A" not in dbgm:
                    A(f"buffer_store_dwordx4 {v(ac,4)}, v14, s[{SWS}:{SWS+3}], s3 offen {st_aux}")
        def flag():
            L = f"{N}_{tag}_fl"
            A("ds_add_rtn_u32 v20, v21, v20")
            A("s_waitcnt lgkmcnt(0)")
            A("v_readfirstlane_b32 s3, v20")
            if not pull1:
                A(f"s_mov_b32 exec_lo, {'0x3ffffff' if ztype else '0xffff'}")
            A("s_cmp_eq_u32 s3, 3")
            A(f"s_cbranch_scc0 {L}")
            A(f"buffer_store_dword v{ONE}, v252, s[{SWS}:{SWS+3}], 0 offen sc1")
            A.label(L)
            A("s_mov_b64 exec, -1")
        def flag_pre():
            A(f"v_mov_b32 v21, {LMISC + 8}")
            A("v_mov_b32 v20, 1")
            A("s_mov_b64 exec, 1")
        if not ztype:
            A("s_waitcnt lgkmcnt(0)")
            A("s_nop 4")
            ab_epi()
            if ey:
                tick(2)
            flag_pre()
            A("s_waitcnt vmcnt(0)")
            flag()
            if ey:
                aflag()
            PE_()
            return
        A("s_mov_b32 s94, 0xaaaaaaaa")
        A("s_mov_b32 s95, 0xaaaaaaaa")
        A("s_mov_b32 s96, 0xcccccccc")
        A("s_mov_b32 s97, 0xcccccccc")
        if ey:
            A("s_waitcnt lgkmcnt(10)")
            ab_epi()
        A(f"s_waitcnt lgkmcnt({6 if ey else nab + 6})")
        for i in range(4):
            if ey and i == eya:
                A("s_waitcnt vmcnt(0)")
                aflag()
            ac = accof(i, 0)
            fold(ac, CZ + 2 * i)
            gelu(ac, TT + (i & 1) * 8)
            for d in range(4):
                if i == 0:
                    A(f"v_pk_mul_f32 {v(SS+8+2*d,2)}, {v(ac+2*d,2)}, {v(ac+2*d,2)}")
                else:
                    A(f"v_pk_fma_f32 {v(SS+8+2*d,2)}, {v(ac+2*d,2)}, {v(ac+2*d,2)}, {v(SS+8+2*d,2)}")
                if i == 1:
                    A(f"v_pk_add_f32 {v(SS+2*d,2)}, {v(accof(0,0)+2*d,2)}, {v(ac+2*d,2)}")
                elif i > 1:
                    A(f"v_pk_add_f32 {v(SS+2*d,2)}, {v(SS+2*d,2)}, {v(ac+2*d,2)}")
        A("s_nop 1")
        for i in range(8):
            A(f"v_add_f32_dpp v{SS+i}, v{SS+i}, v{SS+i} row_ror:8 row_mask:0xf bank_mask:0x3")
        for i in range(8):
            A(f"v_add_f32_dpp v{SS+i}, v{SS+8+i}, v{SS+8+i} row_ror:8 row_mask:0xf bank_mask:0xc")
        for i in range(4):
            A(f"v_add_f32_dpp v{SS+i}, v{SS+i}, v{SS+i} row_half_mirror row_mask:0xf bank_mask:0x5")
        for i in range(4):
            A(f"v_add_f32_dpp v{SS+i}, v{SS+4+i}, v{SS+4+i} row_half_mirror row_mask:0xf bank_mask:0xa")
        for dpp in ("quad_perm:[1,0,3,2]", "quad_perm:[2,3,0,1]"):
            for i in range(4):
                A(f"v_add_f32_dpp v{SS+i}, v{SS+i}, v{SS+i} {dpp} row_mask:0xf bank_mask:0xf")
        A(f"v_cndmask_b32 v{SS}, v{SS}, v{SS+1}, s[94:95]")
        A(f"v_cndmask_b32 v{SS+2}, v{SS+2}, v{SS+3}, s[94:95]")
        A(f"v_cndmask_b32 v{SS}, v{SS}, v{SS+2}, s[96:97]")
        A("v_lshlrev_b32 v28, 2, v1")
        A("s_lshl_b32 s3, s19, 8")
        A(f"v_or_b32 v{SS}, 1, v{SS}")
        A("v_add_u32 v28, s3, v28")
        A(f"buffer_store_dword v{SS}, v28, s[{SWS}:{SWS+3}], {STO} offen sc1")
        if stamp:
            st2(A, 11)
        E(3)
        A("s_waitcnt lgkmcnt(0)")
        if not ey:
            ab_epi()
        elif eya > 3:
            A("s_waitcnt vmcnt(1)")
            aflag()
        E(4)
        A("s_mul_i32 s52, s48, 56")
        A(f"s_lshl_b32 s3, {CG}, 1")
        A("s_add_u32 s52, s52, s3")
        A("s_lshr_b32 s3, s19, 1")
        A("s_add_u32 s53, s52, s3")
        A("s_xor_b32 s3, s3, 1")
        A("s_add_u32 s54, s52, s3")
        A("s_lshl_b32 s53, s53, 10")
        A("s_lshl_b32 s54, s54, 10")
        A(f"s_add_u32 s53, s53, {W_Z1}")
        A(f"s_add_u32 s54, s54, {W_Z1}")
        A(f"v_add_u32 v22, 28672, v14")
        if z1cp == 2:
            A(f"v_add_u32 v23, {4*MB}, v14")
            A(f"v_add_u32 v24, {4*MB}, v22")
        A(f"s_lshl_b32 s56, {RB}, 14")
        A(f"s_add_u32 s56, s56, {W_ST}")
        for i in range(1, 4):
            A(f"s_add_u32 s{56+i}, s56, {4096*i}")
        PT, PT2 = 232, 116
        vm = Cnt(A, "vmcnt", 63)
        def polls(pt=PT):
            for c in range(14):
                A(f"buffer_load_dword v{pt+c}, v28, s[{SWS}:{SWS+3}], s{56+c//4} offen offset:{(c%4)*1024} sc1")
                vm.op(pt)
        for c in range(14):
            A(f"v_mov_b32 v{PT+c}, 0")
        A(f"s_lshr_b32 s52, {CG}, 1")
        A("s_lshl_b32 s52, s52, 19")
        A(f"s_and_b32 s3, {CG}, 1")
        A("s_lshl_b32 s3, s3, 12")
        A("s_add_u32 s52, s52, s3")
        A("s_add_u32 s52, s52, s49")
        A(f"s_add_u32 s52, s52, {WS_Z2}")
        A(f"s_mov_b32 s18, {SPIN}")
        A("s_and_b32 s3, s19, 1")
        A("s_cmp_eq_u32 s3, 0")
        for g in range(5):
            if g == pl_at[0]:
                E(5)
                polls()
            if ey and g == ey:
                tick()
            if len(pl_at) > 1 and g == pl_at[1]:
                polls(PT2)
            if g == 4:
                break
            T, e = g >> 1, g & 1
            ac = ACC + 32 + g * 8
            rm = v(ZR + 2 * T, 2)
            for i in range(4):
                r = ac + 2 * i
                cs = ZC + 4 * (2 * e + (i >> 1)) + 2 * (i & 1)
                A(f"v_pk_fma_f32 {v(r,2)}, {v(cs,2)}, {rm}, {v(r,2)} op_sel:[0,1,0] op_sel_hi:[1,1,1] neg_lo:[0,1,0] neg_hi:[0,1,0]")
            for i in range(4):
                r = ac + 2 * i
                A(f"v_pk_mul_f32 {v(r,2)}, {v(r,2)}, {rm} op_sel_hi:[1,0]")
            gelu(ac, TT + (g & 1) * 8)
            cvt(ac)
            A(f"s_cbranch_scc1 {N}_nsw{g}")
            A(f"v_swap_b32 v{ac}, v{ac+2}")
            A(f"v_swap_b32 v{ac+1}, v{ac+3}")
            A.label(f"{N}_nsw{g}")
            if "Z" in dbgm:
                continue
            A(f"buffer_store_dwordx4 {v(ac,4)}, {'v22' if T else 'v14'}, s[{SWS}:{SWS+3}], s{53+e} offen {st_aux if 'z' not in dbgm else ''}")
            vm.op("z1")
            if z1cp == 2:
                A(f"buffer_store_dwordx4 {v(ac,4)}, {'v24' if T else 'v23'}, s[{SWS}:{SWS+3}], s{53+e} offen {st_aux}")
                vm.op("z1")
        A("s_lshl_b32 s3, s19, 10")
        A("v_xor_b32 v22, s3, v14")
        E(6)
        vm.need(PT)
        E(7)
        def pcheck(lab_ok):
            A(f"v_and_b32 v21, v{PT}, v{PT+1}")
            for c in range(2, 14, 2):
                A(f"v_bitop3_b32 v21, v21, v{PT+c}, v{PT+c+1} bitop3:0x80")
            A("v_and_b32 v21, 1, v21")
            A("v_cmp_eq_u32 vcc, 0, v21")
            A("s_sub_u32 s18, s18, 1")
            A("s_cmp_eq_u64 vcc, 0")
            A(f"s_cbranch_scc1 {lab_ok}")
        if len(pl_at) > 1:
            pcheck(f"{N}_pok")
            A("s_waitcnt vmcnt(0)")
            for c in range(0, 14, 2):
                A(f"v_pk_mov_b32 {v(PT+c,2)}, {v(PT2+c,2)}, {v(PT2+c,2)} op_sel:[0,1]")
        A(f"s_branch {N}_pchk")
        A.label(f"{N}_poll")
        A("s_waitcnt vmcnt(0)")
        polls()
        A("s_waitcnt vmcnt(0)")
        A.label(f"{N}_pchk")
        pcheck(f"{N}_pok")
        A("s_cmp_gt_i32 s18, 0")
        A(f"s_cbranch_scc1 {N}_poll")
        A.label(f"{N}_pok")
        if stamp:
            st2(A, 12)
        E(8)
        if est:
            A(f"s_sub_u32 s{SREG[12]}, {SPIN}, s18")
            A(f"s_mul_i32 s{SREG[12]}, s{SREG[12]}, 100")
            A(f"s_add_u32 s{SREG[12]}, s{SREG[12]}, s{SREG[0]}")
        for c in range(3):
            A(f"v_pk_add_f32 {v(PT+2*c,2)}, {v(PT+2*c,2)}, {v(PT+6+2*c,2)}")
        A(f"v_pk_add_f32 {v(PT,2)}, {v(PT,2)}, {v(PT+12,2)}")
        A(f"v_pk_add_f32 {v(PT+2,2)}, {v(PT+2,2)}, {v(PT+4,2)}")
        A(f"v_pk_add_f32 {v(PT,2)}, {v(PT,2)}, {v(PT+2,2)}")
        inv = f32(1.0 / 896)
        A(f"v_add_f32 v{PT}, v{PT}, v{PT+1}")
        A(f"v_mul_f32 v{PT}, {inv}, v{PT}")
        A("s_nop 1")
        A(f"v_mov_b32_dpp v{PT+1}, v{PT} row_ror:8 row_mask:0xf bank_mask:0xf")
        A(f"v_fma_f32 v{PT+1}, -v{PT}, v{PT}, v{PT+1}")
        A(f"v_add_f32 v{PT+1}, {EPS}, v{PT+1}")
        A(f"v_rsq_f32 v{PT+1}, v{PT+1}")
        A("s_nop 0")
        A(f"v_mul_f32 v{PT}, -v{PT}, v{PT+1}")
        A("s_nop 0")
        for i in range(8):
            A(f"v_mov_b32_dpp v{RQ+i}, v{PT+1} row_newbcast:{i} row_mask:0xf bank_mask:0xf")
        for i in range(8):
            A(f"v_mov_b32_dpp v{RQ+8+i}, v{PT} row_newbcast:{i} row_mask:0xf bank_mask:0xf")
        for i in range(4):
            ac = accof(i, 0)
            for d in range(4):
                A(f"v_pk_fma_f32 {v(ac+2*d,2)}, {v(ac+2*d,2)}, {v(RQ+2*d,2)}, {v(RQ+8+2*d,2)}")
            cvt(ac)
            if i:
                A(f"v_xor_b32 v{22+i}, {i*1024}, v22")
            A(f"buffer_store_dwordx4 {v(ac,4)}, v{22+i}, s[{SWS}:{SWS+3}], s52 offen {st_aux}")
        E(9)
        if ey:
            tick()
        flag_pre()
        A("s_waitcnt vmcnt(0)")
        E(10)
        flag()
        E(11)
        A(f"s_branch {N}_c_p2")
        PE_()

    p1_compute(True)
    p1_compute(False)
    A.label(f"{N}_c_p2")
    if stamp or est:
        st2(A, 13)
        st2_flush(A, range(1, 14), "s19", SWS)
    if "2" not in phases:
        A.label(L_exit)
        A("s_endpgm")
        return dict(name=name, vgpr=256, sgpr=102, grid=256, block=512, lds=LDS_TOTAL)
    PB_("c2")
    G(1)
    A("s_load_dwordx2 s[96:97], s[0:1], 80")
    A(f"v_mov_b32 v8, {LMISC}")
    A("ds_read_b32 v9, v8")
    FR2, AC2, BSP, PK = 16, 112, 240, 176
    WI, WJ, FL2, CN2, PT_, PO_ = "s56", "s57", "s68", "s69", "s54", "s55"
    A(f"s_and_b32 {WI}, s19, 1")
    A(f"s_lshr_b32 {WJ}, s19, 1")
    A("v_bfe_u32 v17, v1, 1, 3")
    A("v_xor_b32 v16, v27, v17")
    A(f"s_lshl_b32 s3, {WJ}, 16")
    A("v_lshlrev_b32 v18, 7, v26")
    A("v_add_u32 v18, s3, v18")
    A("v_lshl_add_u32 v2, v16, 4, v18")
    A("v_xor_b32 v3, 64, v2")
    A(f"s_lshl_b32 s18, {WI}, 11")
    A("s_add_u32 s3, s3, s18")
    A("v_add_u32 v6, s3, v14")
    A(f"s_lshl_b32 s3, {WI}, 12")
    A("v_add_u32 v5, s3, v14")
    A(f"v_add_u32 v4, {PSL[0]}, v5")
    A(f"s_mov_b32 {PT_}, {hex(sum((PSL[i] >> 12) << (8*i) for i in range(4)))}")
    A(f"s_mov_b32 {PO_}, 0x80008")
    A(f"s_lshl_b32 s3, {WJ}, 8")
    A(f"s_add_u32 s3, s3, {LBS}")
    A("v_lshl_add_u32 v7, v26, 1, s3")
    for jt in range(8):
        A(f"ds_read_u16_d16_hi v{BSP+jt}, v7 offset:{jt*32}")
    A("s_waitcnt lgkmcnt(0)")
    A(f"v_readfirstlane_b32 {RANK}, v9")
    srd(A, SO, "s96", "s97", 2048 * 1024)
    A(f"s_and_b32 {RANK}, {RANK}, 255")
    p2_decode()
    A(f"s_cmp_eq_u32 {TY}, 3")
    A(f"s_cbranch_scc1 {N}_csp")
    A(f"s_lshl1_add_u32 s3, {TY}, {KH}")
    A("s_cmp_eq_u32 s3, 4")
    A("s_cselect_b32 s3, 0xffff0000, 0")
    for jt in range(8):
        A(f"v_and_b32 v{AC2+16*jt}, s3, v{BSP+jt}")
        A(f"v_and_b32 v{AC2+16*jt+1}, s3, v{BSP+jt}")
    for jt in range(8):
        for i in range(1, 8):
            A(f"v_pk_mov_b32 {v(AC2+16*jt+2*i,2)}, {v(AC2+16*jt,2)}, {v(AC2+16*jt,2)}")
    if pull2:
        A(f"s_lshl2_add_u32 {FL2}, {JOB}, s19")
        A(f"s_lshl_b32 {FL2}, {FL2}, 7")
        A(f"s_add_u32 {FL2}, {FL2}, {W_F2}")
        A(f"s_lshl1_add_u32 s49, {TY}, {KH}")
        A("s_mov_b32 s67, 1")
    else:
        A(f"s_lshl1_add_u32 {FL2}, {TT}, {WJ}")
        A(f"s_lshl_b32 {FL2}, {FL2}, {f2s+4}")
        A(f"s_lshl1_add_u32 s3, {NT}, {WI}")
        A(f"s_lshl_b32 s18, s3, {f2s}")
        A(f"s_lshl1_add_u32 s49, {TY}, {KH}")
        A("s_lshl2_add_u32 s18, s49, s18")
        A("s_add_u32 s18, s18, 112")
        A(f"s_mul_i32 s48, {KH}, 14")
        A("s_add_u32 s3, s3, s48")
        A("s_lshl_b32 s3, s3, 2")
        A(f"s_cmp_eq_u32 {TY}, 2")
        A("s_cselect_b32 s3, s3, s18")
        A("s_mov_b32 s67, 0x101")
        A("s_cselect_b32 s67, 0xffff, s67")
        A(f"s_add_u32 {FL2}, {FL2}, s3")
        A(f"s_add_u32 {FL2}, {FL2}, {W_F2}")
    A("s_lshl_b32 s49, s49, 21")
    A(f"s_add_u32 s49, s49, {W_Y}")
    A(f"s_lshl_b32 s3, {KH}, 22")
    A(f"s_add_u32 s3, s3, {W_H}")
    A(f"s_cmp_eq_u32 {TY}, 2")
    A("s_cselect_b32 s49, s3, s49")
    A("s_cselect_b32 s18, 28, 16")
    A(f"s_lshl1_add_u32 s48, {TT}, {WJ}")
    A("s_lshl3_add_u32 s48, s48, 7")
    A("s_mul_i32 s48, s48, s18")
    A(f"s_lshl2_add_u32 s48, {NT}, s48")
    A(f"s_lshl1_add_u32 s48, {WI}, s48")
    A("s_lshl_b32 s48, s48, 10")
    A("s_add_u32 s48, s48, s49")
    A("s_lshl_b32 s49, s18, 10")
    A(f"s_mov_b32 {CN2}, 5")
    order = [("P", 0)] + [("Q", i) for i in range(8)] + [("P", 1), ("P", 2), ("P", 3)]
    def read(sl, sub, n):
        f = FR2 + 48 * sub
        k, i = order[n]
        if k == "P":
            A(f"ds_read_b128 {v(f+4*i,4)}, v4 offset:{sub*8192 + i*1024}")
        else:
            A(f"ds_read_b128 {v(f+16+4*i,4)}, v{2+sub} offset:{sl*16384 + i*2048}")
    def mfma(sub, idx):
        f = FR2 + 48 * sub
        it, jt = idx >> 3, idx & 7
        acc = AC2 + (jt * 4 + it) * 4
        A(f"v_mfma_f32_16x16x32_bf16 {v(acc,4)}, {v(f+4*it,4)}, {v(f+16+4*jt,4)}, {v(acc,4)}")
    def z1read(b, dst):
        jt, p_ = b >> 1, b & 1
        A(f"ds_read_b128 {v(dst,4)}, v6 offset:{(1 if jt >= 4 else 2)*16384 + (jt&3)*4096 + p_*1024}")
    def stage_h(sl, last=False):
        rl = [0, 1, 2, 3, 4, 9, 10, 11]
        ml_ = [it * 8 + jt for it in range(4) for jt in range(4)]
        A("s_waitcnt lgkmcnt(0)")
        for i in range(16):
            mfma(0, ml_[i])
            if i < 8:
                read(sl, 1, rl[i])
            if i == 10 and not last:
                A(f"s_bfe_u32 s3, {PT_}, {PO_}")
                A(f"s_add_u32 {PO_}, {PO_}, 8")
                A("v_lshl_add_u32 v4, s3, 12, v5")
        A("s_waitcnt lgkmcnt(0)")
        mfma(1, ml_[0])
        mfma(1, ml_[1])
        A("s_barrier")
        for i in range(2, 16):
            mfma(1, ml_[i])
            if i - 2 < 8 and not last:
                read((sl + 1) % 3, 0, rl[i - 2])
            if last and i - 2 < 8:
                b = 15 - (i - 2)
                z1read(b, FR2 + 4 * (b - 8))
    def stage(sl, last=False):
        if "h" in dbgm:
            return stage_h(sl, last)
        A("s_waitcnt lgkmcnt(0)")
        for i in range(32):
            mfma(0, i)
            if i % 2 == 0 and i // 2 < 12:
                read(sl, 1, i // 2)
            if i == 26 and not last:
                A(f"s_bfe_u32 s3, {PT_}, {PO_}")
                A(f"s_add_u32 {PO_}, {PO_}, 8")
                A("v_lshl_add_u32 v4, s3, 12, v5")
        A("s_waitcnt lgkmcnt(0)")
        mfma(1, 0)
        mfma(1, 1)
        A("s_barrier")
        for i in range(2, 32):
            mfma(1, i)
            if i % 2 == 0 and (i - 2) // 2 < 12 and not last:
                read((sl + 1) % 3, 0, (i - 2) // 2)
            if last and i % 2 == 0 and (i - 2) // 2 < 8:
                b = 15 - (i - 2) // 2
                z1read(b, FR2 + 4 * (b - 8))
    G(2)
    A("s_barrier")
    G(3)
    for n in range(12):
        read(0, 0, n)
    A.label(f"{N}_cloop")
    for sl in range(3):
        stage(sl)
    A(f"s_sub_u32 {CN2}, {CN2}, 1")
    if gst:
        for k, c in ((10, 4), (11, 2), (12, 1)):
            A(f"s_cmp_lg_u32 {CN2}, {c}")
            A(f"s_cbranch_scc1 {N}_gs{k}")
            G(k)
            A("s_waitcnt lgkmcnt(0)")
            A.label(f"{N}_gs{k}")
    A(f"s_cmp_lg_u32 {CN2}, 0")
    A(f"s_cbranch_scc1 {N}_cloop")
    A.label(f"{N}_late")
    stage(0, last=True)
    G(4)
    A(f"s_cmp_eq_u32 {TY}, 2")
    A(f"s_cbranch_scc1 {N}_epg")
    PE_()
    PB_("ey")
    A("s_nop 7")
    def ep_store(b, aux=st2_aux):
        A(f"buffer_store_dwordx4 {v(PK+4*b,4)}, v14, s[{SWS}:{SWS+3}], s48 offen offset:{(b&1)*1024} {aux}")
        if b & 1 == 0 and b:
            A("s_sub_u32 s48, s48, s49")
    for b in range(15, -1, -1):
        acc = AC2 + 8 * b
        for d in range(3, -1, -1):
            A(f"v_cvt_pk_bf16_f32 v{PK+4*b+d}, v{acc+2*d}, v{acc+2*d+1}")
        if "Y" not in dbgm and not ("y" in dbgm and b < 8):
            ep_store(b)
    A(f"s_branch {N}_epx")
    PE_()
    A.label(f"{N}_epg")
    PB_("eg")
    for b in range(7, -1, -1):
        z1read(b, 48 + 4 * b)
    U = 96
    for b in range(15, -1, -1):
        acc = AC2 + 8 * b
        z = FR2 + 4 * (b - 8) if b >= 8 else 48 + 4 * b
        if b == 15:
            A("s_waitcnt lgkmcnt(8)")
        if b == 7:
            A("s_waitcnt lgkmcnt(0)")
        u0_ = U + (b & 1) * 8
        for d in range(4):
            u = u0_ + d * 2
            A(f"v_lshlrev_b32 v{u}, 16, v{z+d}")
            A(f"v_and_b32 v{u+1}, 0xffff0000, v{z+d}")
        for d in range(4):
            u = u0_ + d * 2
            A(f"v_pk_mul_f32 {v(acc+2*d,2)}, {v(acc+2*d,2)}, {v(u,2)}")
        for d in range(3, -1, -1):
            A(f"v_cvt_pk_bf16_f32 v{PK+4*b+d}, v{acc+2*d}, v{acc+2*d+1}")
        if "H" not in dbgm:
            ep_store(b)
    PE_()
    A.label(f"{N}_epx")
    PB_("p3")
    A(f"v_lshlrev_b32 v2, {f2s}, v1")
    A("v_mov_b32 v3, 1")
    A("s_mov_b32 exec_lo, s67")
    A("s_mov_b32 exec_hi, 0")
    G(6)
    A("s_waitcnt vmcnt(8)")
    G(7)
    A("s_waitcnt vmcnt(0)")
    A(f"buffer_store_dword v3, v2, s[{SWS}:{SWS+3}], {FL2} offen {faux3}")
    A("s_mov_b64 exec, -1")
    G(5)
    if wbl == 1:
        A(f"s_cmp_eq_u32 {TY}, 2")
        A(f"s_cbranch_scc0 {N}_p3c")
        A("s_cmp_eq_u32 s19, 0")
        A(f"s_cbranch_scc0 {N}_p3c")
        A("buffer_wbl2 sc1")
    A(f"s_branch {N}_p3c")
    A.label(f"{N}_csp")
    A("s_barrier")

    TB, DB = "s56", "s57"
    def p3_common():
        if p3perm:
            A(f"s_lshr_b32 s3, {RANK}, 5")
            A("s_lshl_b32 s3, s3, 2")
            A(f"s_lshr_b32 s3, {hex(sum(p << (4*i) for i, p in enumerate(p3perm)))}, s3")
            A("s_and_b32 s3, s3, 7")
            A("s_lshl_b32 s3, s3, 5")
            A(f"s_and_b32 {RANK}, {RANK}, 31")
            A(f"s_or_b32 {RANK}, {RANK}, s3")
        A(f"s_lshr_b32 {TB}, {RANK}, 3")
        A(f"s_and_b32 {DB}, {RANK}, 7")
        A("v_and_b32 v4, 7, v0")
        A("v_lshrrev_b32 v5, 3, v0")
        A("v_lshlrev_b32 v6, 10, v5")
        A("v_lshl_add_u32 v6, v4, 4, v6")
        A(f"s_lshl_b32 s60, {TB}, 16")
        A(f"s_lshl_b32 s3, {DB}, 7")
        A("s_add_u32 s60, s60, s3")
        A(f"buffer_load_dwordx4 {v(XR,4)}, v6, s[{SX}:{SX+3}], s60 offen")
        A("v_and_b32 v3, 15, v5")
        A("v_lshlrev_b32 v4, 1, v4")
        A("v_xor_b32 v4, v4, v3")
        A("v_lshlrev_b32 v4, 4, v4")
        A("v_lshl_add_u32 v4, v5, 8, v4")
        A(f"v_add_u32 v2, {RBUF[0]}, v4")
        A("v_xor_b32 v3, 16, v2")
        A(f"v_add_u32 v4, {RBUF[2]}, v4")
        A("v_xor_b32 v5, 16, v4")
        A("v_and_b32 v12, 15, v1")
        A("v_lshrrev_b32 v13, 4, v1")
        A("v_xor_b32 v13, v13, v12")
        A("v_lshlrev_b32 v13, 4, v13")
        A("v_lshl_add_u32 v7, v12, 8, v13")
        if pull2:
            A(f"s_bfe_u32 s61, {TB}, 0x10001")
            A("s_lshl_b32 s61, s61, 8")
        else:
            A(f"s_lshl_b32 s61, {RANK}, {f2s}")
        A(f"s_add_u32 s61, s61, {W_F2}")
        A(f"s_mov_b32 s18, {SPIN}")
    def p3_poll(tag):
        A.label(f"{N}_{tag}p")
        A(f"buffer_load_dword v13, v12, s[{SWS}:{SWS+3}], s61 offen {paux3}")
        A.label(f"{N}_{tag}c")
        A("s_waitcnt vmcnt(0)")
        A("v_cmp_eq_u32 vcc, 0, v13")
        A("s_sub_u32 s18, s18, 1")
        if pull2 and tag == "p3y":
            A("s_bitcmp0_b32 vcc_lo, 8")
        else:
            A("s_cmp_eq_u32 vcc_hi, 0" if tag == "p3y" else "s_cmp_eq_u64 vcc, 0")
        A(f"s_cbranch_scc1 {N}_{tag}w")
        ps = psleep if psleep3 is None else psleep3[tag == "p3l"]
        if ps:
            A(f"s_sleep {ps}")
        A("s_cmp_gt_i32 s18, 0")
        A(f"s_cbranch_scc1 {N}_{tag}p")
        A.label(f"{N}_{tag}w")
    A.label(f"{N}_p3c")
    p3_common()
    G(8)
    A(f"s_branch {N}_p3f")
    A.label(f"{N}_p3l")
    p3_common()
    A(f"s_mul_i32 s62, {W}, 7")
    A("s_lshr_b32 s3, s62, 1")
    A("v_bfe_u32 v12, v1, 2, 1")
    A("v_mul_u32_u24 v12, 14, v12")
    A("v_and_b32 v13, 3, v1")
    A("v_add3_u32 v12, v12, v13, s3")
    if pull2:
        A("v_and_b32 v13, 1, v12")
        A("v_lshrrev_b32 v12, 1, v12")
        A("v_lshl_add_u32 v12, v12, 2, v13")
        A(f"s_lshr_b32 s3, {TB}, 2")
        A("s_lshl_b32 s3, s3, 7")
        A("s_add_u32 s3, s3, 64")
        A("v_add_u32 v12, s3, v12")
        A("v_lshlrev_b32 v12, 7, v12")
    else:
        A("v_lshlrev_b32 v12, 2, v12")
    A(f"s_mul_i32 s48, {TB}, 112")
    A("s_add_u32 s48, s48, s62")
    A("s_lshl_b32 s48, s48, 10")
    A(f"s_add_u32 s48, s48, {W_H}")
    for i in range(1, 8):
        A(f"s_add_u32 s{48+i}, s48, {(i>>2)*4*MB + (i&3)*28*1024}")
    A(f"s_lshl_b32 s3, {W}, 3")
    A(f"s_lshr_b32 s3, {hex(sum((RBUF[i] >> 12) << (8*i) for i in range(4)))}, s3")
    A("s_and_b32 s3, s3, 255")
    A("v_lshl_add_u32 v7, s3, 12, v7")
    A(f"s_lshl_b32 s90, {TB}, 5")
    A(f"s_add_u32 s90, s90, {DB}")
    A("s_lshl_b32 s90, s90, 11")
    A(f"s_lshl_b32 s3, {W}, 21")
    A("s_add_u32 s90, s90, s3")
    A(f"s_add_u32 s90, s90, {W_Y}")
    if pull2:
        A(f"s_lshr_b32 s3, {TB}, 4")
        A(f"s_lshl2_add_u32 s3, s3, {W}")
        A("s_lshl_b32 s3, s3, 3")
        A(f"s_bfe_u32 s91, {TB}, 0x20002")
        A("s_add_u32 s3, s3, s91")
        A("s_lshl_b32 s3, s3, 4")
        A(f"s_and_b32 s91, {DB}, 6")
        A("s_lshl1_add_u32 s3, s91, s3")
        A(f"s_and_b32 s91, {DB}, 1")
        A("s_add_u32 s3, s3, s91")
        A("s_lshl_b32 s3, s3, 7")
    else:
        A(f"s_lshl2_add_u32 s3, {W}, 112")
    A("v_mov_b32 v13, s3")
    A(f"v_cmp_gt_u32 vcc, {8 if pull2 else 32}, v1")
    A("s_nop 1")
    A("v_cndmask_b32 v12, v13, v12, vcc")
    if pull2:
        A("s_mov_b64 exec, 0x1ff")
    p3_poll("p3y")
    if pull2:
        A("s_mov_b64 exec, -1")
    for j in range(4):
        for e in range(2):
            A(f"buffer_load_dwordx4 {v(AC3+32+(j*2+e)*4,4)}, v14, s[{SWS}:{SWS+3}], s90 offen offset:{e*1024}")
        if j < 3:
            A("s_add_u32 s90, s90, 16384")
    G(10)
    A("s_cmp_eq_u32 vcc_lo, 0")
    A(f"s_cbranch_scc1 {N}_p3lw")
    if pull2:
        A("s_mov_b64 exec, 0xff")
    p3_poll("p3l")
    if pull2:
        A("s_mov_b64 exec, -1")
    G(6)
    if wbl == 2:
        A(f"s_and_b32 s3, {RANK}, 31")
        A(f"s_lshl2_add_u32 s3, s3, {W}")
        A("s_cmp_eq_u32 s3, 124")
        A(f"s_cbranch_scc0 {N}_nwb")
        A("buffer_wbl2 sc1")
        A.label(f"{N}_nwb")
    vm = Cnt(A, "vmcnt", 63)
    hl = [(k, p_, j) for k in range(7) for p_ in range(2) for j in range(4)]
    def hload(i):
        k, p_, j = hl[i]
        A(f"buffer_load_dwordx4 {v(HFR[i%16],4)}, {'v14' if k < 4 else 'v15'}, s[{SWS}:{SWS+3}], s{48+4*p_+j} offen offset:{(k&3)*1024} {haux}")
        vm.op(i)
    for i in range(16):
        hload(i)
    for i in range(32):
        if i % 4 == 0:
            A(f"s_waitcnt vmcnt({16 + 7 - i//4})")
        A(f"v_lshlrev_b32 v{AC3+2*i}, 16, v{AC3+32+i}")
        A(f"v_and_b32 v{AC3+2*i+1}, 0xffff0000, v{AC3+32+i}")
    for i in range(56):
        k, p_, j = hl[i]
        vm.need(i)
        if i == 0:
            G(7)
        for it in range(4):
            acc = AC3 + (j * 4 + it) * 4
            A(f"v_mfma_f32_16x16x32_bf16 {v(acc,4)}, {v(WOTR(it,k),4)}, {v(HFR[i%16],4)}, {v(acc,4)}")
        if i + 16 < 56:
            hload(i + 16)
    G(8)
    for it in range(1, 4):
        A(f"v_xor_b32 v{64+it}, {it*64}, v7")
    for j in range(4):
        if j == 3:
            A("s_nop 4")
        for it in range(4):
            acc = AC3 + (j * 4 + it) * 4
            A(f"ds_write_b128 v{64+it if it else 7}, {v(acc,4)} offset:{j*4096}")
    A.label(f"{N}_p3f")
    A("s_waitcnt vmcnt(0)")
    for d in range(4):
        A(f"v_lshlrev_b32 v{16+2*d}, 16, v{XR+d}")
        A(f"v_and_b32 v{16+2*d+1}, 0xffff0000, v{XR+d}")
    A("s_waitcnt lgkmcnt(0)")
    A("s_barrier")
    R = 24
    for w in range(4):
        for c in range(2):
            A(f"ds_read_b128 {v(R + (w*2+c)*4, 4)}, v{(2 if w < 2 else 4) + c} offset:{RBUF[w] - RBUF[0 if w < 2 else 2]}")
    for w in range(4):
        A(f"s_waitcnt lgkmcnt({6-2*w})")
        for d in range(4):
            A(f"v_pk_add_f32 {v(16+2*d,2)}, {v(16+2*d,2)}, {v(R+w*8+2*d,2)}")
    for d in range(4):
        A(f"v_cvt_pk_bf16_f32 v{12+d}, v{16+2*d}, v{16+2*d+1}")
    A(f"buffer_store_dwordx4 v[12:15], v6, s[{SO}:{SO+3}], s60 offen {oaux}")
    PE_()
    if gst:
        A("s_waitcnt vmcnt(0)")
        G(9)
        if amp:
            wg, wv, k1, k2 = amp
            A("s_waitcnt lgkmcnt(0)")
            A(f"s_cmp_eq_u32 s2, {wg}")
            A(f"s_cbranch_scc0 {L_exit}")
            A(f"s_cmp_eq_u32 s19, {wv}")
            A(f"s_cbranch_scc0 {L_exit}")
            A(f"s_sub_u32 s90, s{SREG[k2]}, s{SREG[k1]}")
            A("s_lshl_b32 s90, s90, 4")
            A("s_min_u32 s90, s90, 4000000")
            A("s_memtime s[92:93]")
            A("s_waitcnt lgkmcnt(0)")
            A("s_mov_b32 s91, s92")
            A.label(f"{N}_amp")
            A("s_sleep 4")
            A("s_memtime s[92:93]")
            A("s_waitcnt lgkmcnt(0)")
            A("s_sub_u32 s3, s92, s91")
            A("s_cmp_lt_u32 s3, s90")
            A(f"s_cbranch_scc1 {N}_amp")
        else:
            st2_flush(A, range(1, 13), "s19", SWS)
    A.label(L_exit)
    A("s_endpgm")
    A.label(f"{N}_end")
    return dict(name=name, vgpr=256, sgpr=102, grid=256, block=512, lds=LDS_TOTAL, pf=pf)
```

```python
from mk_m import *
P = (4,5,0,1,6,7,2,3)
P1 = (4,5,6,7,0,1,2,3)
E = dict(D, stamp=0, rot2=(4,8,1,1), rot1="x4", xaux="", waux="", saux="", z1cp=1, ipf=1, ipf2=(1,5,9,13), ipf2b="lgo", pl_at=(3,), oaux="sc1", gmap=4, z1s=(1,3,5,7,9,11,12,13), psleep3=(16,16), f2s=7, relx=1, p3perm=P)
V = dict(
 a=dict(E),
 b=dict(E, spq=1),
 c=dict(E, spq=1, uni=1),
 d=dict(E, spq=1, uni=1, pull1=1, pull2=1, psleep3=(4,4)),
 e=dict(E, spq=1, uni=1, ey=3, eyt=(8,0), gmap=1, p3perm=P1),
 f=dict(E, spq=1, uni=1, pull2=1, pull1=1, psleep3=(4,4), ey=3, eyt=(8,0), gmap=1, p3perm=P1),
)
run(V, single=True)
```

```python
from asmlib import *
from layout import *
import struct

def f32(x):
    return hex(struct.unpack('I', struct.pack('f', x))[0])

C0 = -2.0 * 0.7978845608028654 * 1.4426950408889634
C1 = C0 * 0.044715
EPS = f32(1e-5)
KB = 1024
W_ST = WS_ST
W_BX = WS_ST + 256 * KB
W_F1, W_F2 = W_BX, WS_ST + 800 * KB
W_RS = WS_ST + 512 * KB
W_TB = WS_ST + 768 * KB
W_Y = 32 * MB
W_H = 40 * MB
W_H2 = 48 * MB
WS_TOT2 = 56 * MB
LX, LW, LD = 0, 65536, 131072
LRM = 155648
LCSD = LRM + 1024
LCSW = LCSD + 1024
LMISC = LCSW + 512
LTR = 159744
LDS_TOTAL = 163840
RBUF = [48 * KB, 64 * KB, 112 * KB, 128 * KB]
LBS = 159744
PSL = [48 * KB, 112 * KB, 128 * KB, 144 * KB]
SX, SW, SI, SWS, SDB, SO, SP = 20, 24, 28, 32, 36, 40, 44
SPIN = 0x20000


class Cnt:
    def __init__(self, A, name, mx):
        self.A, self.name, self.mx, self.q = A, name, mx, []
    def op(self, tag=None):
        self.q.append(tag)
    def need(self, tag):
        idx = [i for i, t in enumerate(self.q) if t == tag]
        if not idx:
            return
        n = len(self.q) - 1 - idx[-1]
        self.A(f"s_waitcnt {self.name}({min(n, self.mx)})")
        self.q = self.q[idx[-1] + 1:] if n <= self.mx else self.q[len(self.q) - self.mx:]
    def all(self):
        self.A(f"s_waitcnt {self.name}(0)")
        self.q = []

AUXS = {"pair": ("nt", ""), "nt": ("nt",), "d": ("",), "off": ()}


def gen_f(A, name="f_kernel", phases="123", stamp=False, rot1="x", pub_at=2, tbl_at=5, rank_at=6,
          st_aux="sc1", prio_loader=2, xaux="nt", waux="nt", pauxy="", pauxg="", qaux="nt", zaux="",
          st2_aux="sc1", psleep=2, stg=((4, 1, "pair"), (5, 2, "pair"), (6, 3, "pair")),
          rot2=0, npro=2, ramp=1, dbgm="", pairp=1, wot_at=(9, 10, 11, 12), nofast=0, saux="nt", z1_at=2,
          own_wait=1, hst_aux="", haux="", z1_early=1, q_at=(6, 8, "p"), taux="", gmap=0, pf=1, pfsch=None,
          amp=None, relx=0, p3perm=None, paux3='sc1', faux3='sc1', ipf2b='late', f2s=7, f2o=None, wh=None, wy=None, ylate=0, psleep3=None, tlbw=None, oaux='', wbl=0, ipf=0, ipf2=(), z1cp=2, pl_at=(4,), stgrow=0, qaux2='nt', q2_from=4, qreg=None, thr=8, z1s=(8, 9, 10, 11), pre_at=8, qpf=None, qpre=(), ppf=None, spq=0, uni=0, ipfat=0, pull1=0, pull2=0, tsp=0, ey=0, eyt=(3, 8), eya=5, wsb=0, tw=None, ynb=16, hnb=28, yps=2*MB, hps=4*MB, stir=None, dly=0, dly2=0, dly1=0, warm=None, rblk=None, pst=0):
    kernel_header(A, name)
    N = name
    A.raw(f"; WSB={wsb}")
    def srd_ws():
        if not wsb:
            srd(A, SWS, "s14", "s15", WS_TOT2)
            return
        A(f"s_add_u32 s{SWS}, s14, {wsb}")
        A(f"s_addc_u32 s{SWS+1}, s15, 0")
        A(f"s_and_b32 s{SWS+1}, s{SWS+1}, 0xffff")
        A(f"s_mov_b32 s{SWS+2}, {WS_TOT2}")
        A(f"s_mov_b32 s{SWS+3}, 0x00020000")
    global W_H, W_Y, W_F2
    W_H = 40 * MB if wh is None else wh
    W_Y = 32 * MB if wy is None else wy
    W_F2 = (WS_ST + 800 * KB if f2s == 7 else W_BX + 256) if f2o is None else f2o
    W_Z1 = W_H if z1cp == 2 else WS_Z1
    assert not qreg
    gst = stamp == 2
    est = stamp == 3
    stamp = stamp == 1
    def E(k):
        if est:
            st2(A, k)
    TY, TT, NT, SL, KH = "s84", "s85", "s86", "s87", "s65"
    SQ = SW
    def G(k):
        if gst:
            st2(A, k)
    def PB_(r, L=2):
        A.raw(f";PF_BEGIN {r} {L}")
    def PE_():
        A.raw(";PF_END")

    def pfload(vaddr, srdn, so, aux, vm=None, off=0):
        for ax in AUXS[aux]:
            A(f"buffer_load_dword v6, {vaddr}, s[{srdn}:{srdn+3}], {so} offen offset:{off} {ax}")
            if vm:
                vm.op("pf")

    JOB = "s58"
    def p2_decode():
        if gmap == 0:
            A(f"s_mov_b32 {JOB}, {RANK}")
        elif gmap == 1:
            A(f"s_and_b32 {SL}, {RANK}, 31")
            A(f"s_and_b32 {JOB}, {RANK}, 0xc0")
            A(f"s_cmp_ge_u32 {SL}, 23")
            A("s_cselect_b32 s3, 25, 0")
            A(f"s_add_u32 {JOB}, {JOB}, s3")
            A(f"s_add_u32 {JOB}, {JOB}, {SL}")
            A(f"s_bitcmp1_b32 {RANK}, 5")
            A("s_cselect_b32 s3, 7, 0")
            A(f"s_add_u32 {JOB}, {JOB}, s3")
            A(f"s_bfe_u32 s3, {RANK}, 0x10005")
            A(f"s_and_b32 s18, {RANK}, 1")
            A("s_lshl4_add_u32 s18, s18, 15")
            A("s_lshl1_add_u32 s3, s18, s3")
            A(f"s_and_b32 s18, {RANK}, 0xc0")
            A("s_add_u32 s3, s3, s18")
            A(f"s_cmp_ge_u32 {SL}, 30")
            A(f"s_cselect_b32 {JOB}, s3, {JOB}")
            A(f"s_cmp_lt_u32 {SL}, 16")
            A(f"s_cselect_b32 {JOB}, {RANK}, {JOB}")
        elif gmap >= 2:
            A(f"s_and_b32 {SL}, {RANK}, 31")
            if gmap == 2:
                A(f"s_and_b32 {JOB}, {RANK}, 0x6f")
                A(f"s_lshr_b32 s3, {SL}, 4")
                A("s_lshl_b32 s3, s3, 7")
                A(f"s_or_b32 {JOB}, {JOB}, s3")
            elif gmap == 3:
                A(f"s_and_b32 {JOB}, {RANK}, 15")
                A(f"s_and_b32 s3, {RANK}, 0x70")
                A(f"s_lshl1_add_u32 {JOB}, s3, {JOB}")
            else:
                A(f"s_and_b32 {JOB}, {RANK}, 0x2f")
                if gmap == 4:
                    A(f"s_xor_b32 {JOB}, {JOB}, 0x20")
                A(f"s_and_b32 s3, {RANK}, 0x10")
                A(f"s_lshl2_add_u32 {JOB}, s3, {JOB}")
                A(f"s_and_b32 s3, {RANK}, 0x40")
                A(f"s_lshl1_add_u32 {JOB}, s3, {JOB}")
            A(f"s_cmp_lt_u32 {RANK}, 128")
            L = A.newlabel(N + "_prm")
            A(f"s_cbranch_scc1 {L}")
            A(f"s_mul_i32 s3, {SL}, 37")
            A("s_lshr_b32 s3, s3, 8")
            A("s_mul_i32 s18, s3, 25")
            A(f"s_add_u32 {JOB}, s18, {SL}")
            A(f"s_add_u32 {JOB}, {JOB}, 16")
            A(f"s_bitcmp1_b32 {RANK}, 5")
            A("s_cselect_b32 s3, 0, 7" if gmap == 4 else "s_cselect_b32 s3, 7, 0")
            A(f"s_add_u32 {JOB}, {JOB}, s3")
            A(f"s_bitcmp1_b32 {RANK}, 6")
            A("s_cselect_b32 s3, 128, 0")
            A(f"s_add_u32 {JOB}, {JOB}, s3")
            if spq:
                A(f"s_lshl_b32 s18, {SL}, 5")
                A(f"s_add_u32 s3, s3, s18")
                A(f"s_add_u32 s3, s3, {(30 - 28*32) & 0xffffffff}")
                A(f"s_bitcmp1_b32 {RANK}, 5")
                A("s_cselect_b32 s18, 0, 1" if gmap == 4 else "s_cselect_b32 s18, 1, 0")
                A("s_add_u32 s3, s3, s18")
                A(f"s_cmp_ge_u32 {SL}, 28")
                A(f"s_cselect_b32 {JOB}, s3, {JOB}")
            else:
                A(f"s_cmp_ge_u32 {SL}, 28")
                A(f"s_cselect_b32 {JOB}, 30, {JOB}")
            A.label(L)
        A(f"s_bfe_u32 {KH}, {JOB}, 0x10005")
        A(f"s_and_b32 {SL}, {JOB}, 31")
        A(f"s_bfe_u32 {TY}, {JOB}, 0x10006")
        A(f"s_lshr_b32 {TT}, {JOB}, 7")
        A(f"s_lshr_b32 s3, {SL}, 2")
        A(f"s_lshl2_add_u32 {TT}, {TT}, s3")
        A(f"s_and_b32 {NT}, {SL}, 3")
        A(f"s_cmp_lt_u32 {SL}, 16")
        L = A.newlabel(N + "_dec")
        A(f"s_cbranch_scc1 {L}")
        A(f"s_cmp_ge_u32 {SL}, 23")
        A("s_cselect_b32 s3, 1, 0")
        A("s_cselect_b32 s18, 23, 16")
        A(f"s_lshr_b32 {TT}, {JOB}, 5")
        A(f"s_mov_b32 {KH}, s3")
        A(f"s_sub_u32 {NT}, {SL}, s18")
        A(f"s_and_b32 s3, {JOB}, 1")
        A(f"s_cmp_ge_u32 {SL}, 30")
        A(f"s_cselect_b32 {TY}, 3, 2")
        A(f"s_cselect_b32 {NT}, 7, {NT}")
        A(f"s_cselect_b32 {KH}, s3, {KH}")
        A.label(L)

    ZR1, AC3, XR = 144, 192, 8
    def SLOT(j):
        return 16 + 32 * j
    def WOTR(i, k):
        return SLOT(i) + 4 * k
    HFR = [144 + 4 * i for i in range(12)] + [SLOT(j) + 28 for j in range(4)]
    if qreg is None:
        qreg = {q: (q - 3, [("pre", 0, 8)]) for q in range(3, 10)}
        for i in range(4):
            qreg[10 + i] = (i, [(2 + 2 * i, 0, 4), (3 + 2 * i, 4, 8)])
    WB = "s59"
    FAST = "s63"
    def p3_addr():
        A(f"s_mul_i32 s18, {W}, 7")
        A(f"s_and_b32 s3, {RANK}, 7")
        A(f"s_mul_i32 {WB}, s3, 112")
        A(f"s_add_u32 {WB}, {WB}, s18")
        A(f"s_lshl_b32 {WB}, {WB}, 10")
        A(f"s_add_u32 {WB}, {WB}, {WS_WOT}")
        A("v_add_u32 v15, 4096, v14")
    def wot_loads(i, vm=None):
        A(f"s_add_u32 s3, {WB}, {i*28*1024}")
        for k in range(7):
            A(f"buffer_load_dwordx4 {v(WOTR(i,k),4)}, {'v14' if k < 4 else 'v15'}, s[{SWS}:{SWS+3}], s3 offen offset:{(k&3)*1024}")
            if vm:
                vm.op("wot")
    W = "s67"
    RB, CG, ISB, U0, ABO, KEY, RANK = "s60", "s61", "s62", "s63", "s64", "s65", "s66"
    L_exit = N + "_exit"
    A("s_cmp_ge_u32 s2, 256")
    A(f"s_cbranch_scc1 {L_exit}")
    if stamp or gst or est:
        st2(A, 0)
    for _ in range(dly):
        A("s_sleep 16")
    A("s_load_dwordx2 s[4:5], s[0:1], 0")
    A("s_load_dwordx4 s[8:11], s[0:1], 24")
    A("s_load_dwordx2 s[6:7], s[0:1], 48")
    A("s_load_dwordx4 s[12:15], s[0:1], 88")
    A("v_lshrrev_b32 v2, 6, v0")
    A("v_and_b32 v1, 63, v0")
    A("s_lshr_b32 s3, s2, 5")
    A("v_readfirstlane_b32 s19, v2")
    A(f"s_and_b32 {RB}, s2, 1")
    A(f"s_lshl_b32 {RB}, {RB}, 3")
    A(f"s_add_u32 {RB}, {RB}, s3")
    A(f"s_bfe_u32 {CG}, s2, 0x20001")
    A(f"s_lshl_b32 {CG}, {CG}, 2")
    A("s_bfe_u32 s3, s2, 0x20003")
    A(f"s_add_u32 {CG}, {CG}, s3")
    A(f"s_cmp_ge_u32 {CG}, 14")
    A(f"s_cselect_b32 {ABO}, 1, 0")
    A(f"s_cmp_ge_u32 {CG}, 7")
    A(f"s_cselect_b32 {ISB}, 1, 0")
    A(f"s_cselect_b32 {U0}, 7, 0")
    A(f"s_sub_u32 {U0}, {CG}, {U0}")
    A(f"s_mul_i32 {U0}, {U0}, 3")
    A(f"s_cmp_eq_u32 {CG}, 14")
    A(f"s_cselect_b32 {ISB}, 0, {ISB}")
    A(f"s_cmp_eq_u32 {ABO}, 1")
    A(f"s_cselect_b32 {U0}, 21, {U0}")
    A("v_lshlrev_b32 v14, 4, v1")
    KS = "s52"
    if rot1 == "x":
        A(f"s_getreg_b32 {KS}, hwreg(HW_REG_XCC_ID, 0, 3)")
    elif rot1 == "x4":
        A(f"s_getreg_b32 {KS}, hwreg(HW_REG_XCC_ID, 0, 3)")
        A(f"s_and_b32 s3, {KS}, 1")
        A(f"s_mul_i32 s3, s3, 3")
        A(f"s_add_u32 {KS}, {KS}, s3")
        A(f"s_and_b32 {KS}, {KS}, 7")
    elif rot1 == "w":
        A(f"s_lshl1_add_u32 {KS}, {CG}, {RB}")
        A(f"s_and_b32 {KS}, {KS}, 7")
    elif rot1 == "wx":
        A(f"s_getreg_b32 {KS}, hwreg(HW_REG_XCC_ID, 0, 3)")
        A(f"s_add_u32 {KS}, {KS}, {RB}")
        A(f"s_lshl1_add_u32 {KS}, {CG}, {KS}")
        A(f"s_and_b32 {KS}, {KS}, 7")
    elif rot1 == "r":
        A(f"s_and_b32 {KS}, {RB}, 7")
    else:
        A(f"s_mov_b32 {KS}, 0")
    A("s_cmp_lt_u32 s19, 4")
    A(f"s_cbranch_scc1 {N}_comp")

    XO, DO, IO, LDST = "s48", "s49", "s50", "s51"
    A(f"s_sub_u32 {W}, s19, 4")
    if ipf:
        A(f"s_getpc_b64 s[{SP}:{SP+1}]")
        A.label(f"{N}_pc0")
        A(f"s_and_b32 s{SP+1}, s{SP+1}, 0xffff")
        A(f"s_mov_b32 s{SP+2}, {N}_end-{N}_pc0")
        A(f"s_mov_b32 s{SP+3}, 0x00020000")
        A("s_lshr_b32 s3, s2, 3")
        A("s_lshl_b32 s3, s3, 13")
        A(f"s_cmp_eq_u32 {W}, 3")
        A("s_cselect_b32 s68, s3, 0x100000")
        A("v_lshlrev_b32 v13, 7, v1")
        if not ipfat:
            A(f"buffer_load_dword v15, v13, s[{SP}:{SP+3}], s68 offen")
    A("v_lshrrev_b32 v4, 3, v1")
    A(f"s_lshl_b32 s3, {W}, 3")
    A("v_add_u32 v4, s3, v4")
    A("v_and_b32 v5, 7, v1")
    A("v_lshrrev_b32 v6, 4, v1")
    A(f"s_and_b32 s3, {W}, 1")
    A("s_lshl_b32 s3, s3, 2")
    A(f"s_and_b32 s18, {W}, 2")
    A("s_or_b32 s3, s3, s18")
    A("v_xor_b32 v6, s3, v6")
    A("v_xor_b32 v6, v6, v5")
    A("v_lshlrev_b32 v6, 4, v6")
    A("v_lshl_add_u32 v2, v4, 10, v6")
    A("v_bfe_u32 v6, v1, 4, 1")
    A(f"s_and_b32 s3, {W}, 1")
    A("s_lshl_b32 s3, s3, 1")
    A("v_or_b32 v6, s3, v6")
    A("v_lshlrev_b32 v6, 1, v6")
    A("v_xor_b32 v6, v6, v5")
    A("v_lshlrev_b32 v6, 4, v6")
    A("v_mul_u32_u24 v3, 3584, v4")
    A("v_add_u32 v3, v3, v6")
    A(f"s_lshl_b32 {XO}, {RB}, 17")
    A(f"s_lshl_b32 {DO}, {U0}, 14")
    A(f"s_lshl_b32 {IO}, {CG}, 7")
    A(f"s_lshl_b32 {LDST}, {W}, 10")
    A(f"s_lshl_b32 s3, {KS}, 7")
    A(f"s_add_u32 {XO}, {XO}, s3")
    A(f"s_add_u32 {DO}, {DO}, s3")
    A(f"s_mul_i32 s3, {KS}, {64*3584}")
    A(f"s_add_u32 {IO}, {IO}, s3")
    A("s_mov_b32 s53, 128")
    A(f"s_mov_b32 s54, {64*3584}")
    if uni:
        A("v_bfe_u32 v6, v1, 4, 1")
        A(f"s_lshl_b32 s3, {W}, 1")
        A("v_or_b32 v6, s3, v6")
        A("v_xor_b32 v6, v6, v5")
        A("v_lshlrev_b32 v6, 4, v6")
        A("v_lshrrev_b32 v9, 3, v1")
        A("v_lshl_add_u32 v9, v9, 10, v6")
        A(f"s_lshl_b32 s3, {W}, 12")
        A("v_add_u32 v9, s3, v9")
        A(f"s_lshl_b32 s90, {W}, 9")
        A(f"s_cmp_eq_u32 {ABO}, 1")
        A("s_cselect_b64 vcc, -1, 0")
        A("v_cndmask_b32 v3, v3, v2, vcc")
        A(f"s_cselect_b32 {IO}, {DO}, {IO}")
        A("s_cselect_b32 s54, 128, s54")
        A(f"s_mov_b32 s55, {(-7*64*3584) & 0xffffffff}")
        A(f"s_cselect_b32 s55, {(128-1024) & 0xffffffff}, s55")
        A("s_cselect_b32 s84, 0, 1792")
        A(f"s_mov_b32 s85, {32*3584+1792}")
        A("s_cselect_b32 s85, 32768, s85")
        A("s_cselect_b32 s86, 65536, 0")
        A(f"s_mov_b32 s87, {32*3584}")
        A("s_cselect_b32 s87, 98304, s87")
        A("s_cselect_b32 s3, 131072, 0")
        A(f"s_add_u32 {DO}, {DO}, s3")
    A("s_waitcnt lgkmcnt(0)")
    srd(A, SX, "s4", "s5", 2048 * 1024)
    A(f"s_cmp_eq_u32 {ISB}, 1")
    A("s_cselect_b64 s[16:17], s[10:11], s[8:9]")
    srd(A, SW, "s16", "s17", 512 * 1024)
    if uni:
        A(f"s_cmp_eq_u32 {ABO}, 1")
        A("s_cselect_b64 s[6:7], s[16:17], s[6:7]")
    srd(A, SI, "s6", "s7", 512 * 3584)
    if uni:
        A(f"s_cmp_eq_u32 {ABO}, 1")
        A(f"s_cselect_b32 s{SI+2}, {512*1024}, s{SI+2}")
    srd_ws()
    srd(A, SDB, "s12", "s13", 256)
    A("s_load_dwordx4 s[12:15], s[0:1], 8")
    A("s_load_dwordx4 s[56:59], s[0:1], 56")
    A("s_load_dwordx2 s[94:95], s[0:1], 72", "s_load_dwordx2 s[96:97], s[0:1], 80")
    if not uni:
        A(f"s_lshr_b32 s3, {W}, 1")
        A(f"s_lshl_b32 s18, {ABO}, 1")
        A("s_or_b32 s3, s3, s18")
        for r in (1, 2, 3):
            A(f"s_cmp_eq_u32 s3, {r}")
            A(f"s_cbranch_scc1 {N}_ld{r}")

    PFO, PFR = "s90", "s91"
    QB, PB, KO, CNT = "s48", "s49", "s52", "s54"

    def stg_setup():
        A("s_getreg_b32 s55, hwreg(HW_REG_XCC_ID, 0, 3)")
        A("s_lshr_b32 s3, s2, 3")
        A(f"s_lshl1_add_u32 {PFO}, s3, {W}")
        A("s_lshr_b32 s18, s55, 2")
        A(f"s_lshl_b32 s18, s18, 6")
        A(f"s_add_u32 {PFO}, {PFO}, s18")
        A(f"s_lshr_b32 {PFR}, s3, 3")
        A("s_and_b32 s18, s3, 15")
        A("s_lshl4_add_u32 s18, s55, s18")
        A("s_lshr_b32 s3, s3, 4")
        A(f"s_cmp_lt_u32 {W}, 2")
        A(f"s_cselect_b32 {PFO}, {PFO}, s18")
        A(f"s_cselect_b32 {PFR}, {PFR}, 0")
        A(f"s_cselect_b32 s3, s55, s3")
        A(f"s_lshl_b32 {PFO}, {PFO}, 16")
        A("s_and_b32 s3, s3, 1")
        A("s_lshl_b32 s3, s3, 11")
        A(f"s_add_u32 {PFO}, {PFO}, s3")
        A(f"s_mov_b32 {PFR}, 0")
        A("s_bitcmp1_b32 s55, 1")
        A("s_cselect_b64 s[16:17], s[14:15], s[12:13]")
        A(f"s_cmp_lt_u32 {W}, 2")
        A("s_cselect_b64 s[16:17], s[16:17], s[56:57]")
        srd(A, SP, "s16", "s17", 2048 * 4096)
        A(f"s_cmp_eq_u32 {W}, 3")
        A(f"s_cselect_b32 s{SP+2}, 0, s{SP+2}")
        A(f"v_lshrrev_b32 v11, {4 if stgrow else 2}, v1")
        A(f"v_and_b32 v12, {15 if stgrow else 3}, v1")
        A("v_lshlrev_b32 v12, 7, v12")
        A("v_lshl_add_u32 v11, v11, 12, v12")
    def stg_at(b, vm):
        for bb, c, stgaux in stg:
            if bb != b:
                continue
            A(f"s_add_u32 s3, {PFR}, {c}")
            A("s_and_b32 s3, s3, 3")
            A(f"s_lshl_b32 s3, s3, {14 if stgrow else 9}")
            A(f"s_add_u32 s3, s3, {PFO}")
            pfload("v11", SP, "s3", stgaux, vm)
    curB = [4]
    curL = [None]
    def blk(q):
        if not rblk:
            return q & ~(curB[0] - 1), "s55"
        if curL[0] is None:
            assert q < rblk[0][0] and q < rblk[1][0]
            return 0, "s55"
        b0 = 0
        for B_ in curL[0]:
            if q < b0 + B_:
                return b0, (B_ - 1) * 128
            b0 += B_
    def q_base(q):
        if not rot2:
            return QB, (q % 4 if "Q" in dbgm else q) * 128
        A(f"s_add_u32 s18, {KO}, {q*128}")
        b0, mk = blk(q)
        A(f"s_and_b32 s18, s18, {mk}")
        A(f"s_add_u32 s18, s18, {QB}")
        return "s18", b0 * 128
    def q_issue(q, vm, tag):
        sl = q % 3
        r, c = q_base(q)
        for m in ((0, 1, 4, 5) if "h" in dbgm else range(8)):
            A(f"s_add_u32 m0, {LDST}, {(m>>2)*65536 + sl*16384 + (m&3)*4096}")
            A(f"s_add_u32 s3, {r}, {c + m*131072}")
            A(f"buffer_load_dwordx4 v7, s[{SQ}:{SQ+3}], s3 offen {qaux if q < q2_from else qaux2} lds")
            vm.op(tag)
    def q_touch(q, vm, dst="v10"):
        r, c = q_base(q)
        A(f"s_add_u32 s3, {r}, {c}")
        A(f"buffer_load_dword {dst}, v11, s[{SQ}:{SQ+3}], s3 offen")
        vm.op("pf")
    def q_rload(when, vm, throttle=0):
        for q in sorted(qreg):
            slot, parts = qreg[q]
            for (wh, m0_, m1_) in parts:
                if wh != when:
                    continue
                r, c = q_base(q)
                for m in range(m0_, m1_):
                    if throttle and len(vm.q) >= throttle:
                        A(f"s_waitcnt vmcnt({throttle-1})")
                        vm.q = vm.q[len(vm.q) - (throttle - 1):]
                    A(f"s_add_u32 s3, {r}, {c + m*131072}")
                    A(f"buffer_load_dwordx4 {v(SLOT(slot)+4*m,4)}, v7, s[{SQ}:{SQ+3}], s3 offen {qaux}")
                    vm.op(("r", q))
    def q_write(q, vm):
        slot = qreg[q][0]
        vm.need(("r", q))
        for m in range(8):
            A(f"ds_write_b128 {'v9' if m >= 4 else 'v12'}, {v(SLOT(slot)+4*m,4)} offset:{(q%3)*16384 + (m&3)*4096}")

    def p1_loader(role):
        ztype = role < 2
        hi = role & 1
        vm = Cnt(A, "vmcnt", 63)
        A.label(f"{N}_ld{role}")
        def dma(lds, so_base, so_add, vreg, srdn, tag):
            A(f"s_add_u32 m0, {LDST}, {lds}")
            A(f"s_add_u32 s3, {so_base}, {so_add}")
            A(f"buffer_load_dwordx4 {vreg}, s[{srdn}:{srdn+3}], s3 offen {xaux if srdn == SX else waux} lds")
            vm.op(tag)
        def issue(st):
            sl = st & 3
            for j in range(4):
                dma(LX + sl * 16384 + j * 4096, XO, j * 32768, "v2", SX, st)
                if uni:
                    dma(LW + sl * 16384 + j * 4096, IO, f"s{84+j}", "v3", SI, st)
                elif ztype:
                    pan, jj = j >> 1, j & 1
                    dma(LW + sl * 16384 + pan * 8192 + jj * 4096, IO, jj * 32 * 3584 + (1792 if pan == 0 else 0), "v3", SI, st)
                else:
                    dma(LW + sl * 16384 + j * 4096, DO, j * 32768, "v2", SW, st)
            j0 = 0 if ztype else 4
            dma(LD + sl * 6144, DO, j0 * 32768, "v2", SW, st)
            if uni:
                A(f"s_add_u32 m0, s90, {LD + sl * 6144 + 4096}")
                A(f"s_add_u32 s3, {DO}, 32768")
                A("s_mov_b32 exec_hi, 0")
                A(f"buffer_load_dwordx4 v9, s[{SW}:{SW+3}], s3 offen {waux} lds")
                A("s_mov_b32 exec_hi, -1")
                vm.op(st)
            elif not hi:
                dma(LD + sl * 6144 + 4096, DO, (j0 + 1) * 32768, "v2", SW, st)
            if ipf and ipfat == st + 1:
                A(f"buffer_load_dword v15, v13, s[{SP}:{SP+3}], s68 offen")
                vm.op("ipf")
            if st < 7:
                A(f"s_add_u32 {KS}, {KS}, 1")
                A(f"s_cmp_eq_u32 {KS}, 8")
                A(f"s_cselect_b32 {KS}, 0, {KS}")
                A(f"s_cselect_b32 s3, {(128-1024) & 0xffffffff}, s53")
                A(f"s_cselect_b32 s18, {'s55' if uni else (-7*64*3584) & 0xffffffff}, s54")
                A(f"s_add_u32 {XO}, {XO}, s3")
                A(f"s_add_u32 {DO}, {DO}, s3")
                A(f"s_add_u32 {IO}, {IO}, s18")
        if stamp:
            st2(A, 1)
        for st in range(npro):
            issue(st)
        nxt_st = [npro]
        A("v_lshlrev_b32 v8, 2, v1")
        if uni:
            A(f"s_lshl_b32 s69, {ISB}, 5")
            A(f"s_add_u32 s69, s69, {U0}")
            A("s_lshl_b32 s69, s69, 6")
            A("s_add_u32 s69, s69, s90")
            A(f"s_add_u32 s69, s69, {16384 - 1024}")
            A(f"s_lshl_b32 s18, {RB}, 9")
            A(f"s_lshl_b32 s3, {W}, 13")
            A("s_add_u32 s18, s18, s3")
            A(f"s_cmp_ge_u32 {W}, 2")
            A("s_cselect_b32 s69, s69, s18")
            A(f"s_add_u32 s69, s69, {W_RS}")
        elif hi:
            A(f"s_lshl_b32 s69, {ISB}, 5")
            A(f"s_add_u32 s69, s69, {U0}")
            A("s_lshl_b32 s69, s69, 6")
            A(f"s_lshl_b32 s3, {W}, 9")
            A("s_add_u32 s69, s69, s3")
            A(f"s_add_u32 s69, s69, {W_RS + 16384 - 1024}")
        else:
            A(f"s_lshl_b32 s69, {RB}, 9")
            A(f"s_lshl_b32 s3, {W}, 13")
            A("s_add_u32 s69, s69, s3")
            A(f"s_add_u32 s69, s69, {W_RS}")
        A("v_lshrrev_b32 v6, 4, v1")
        A(f"s_and_b32 s3, {W}, 1")
        A("s_lshl_b32 s3, s3, 2")
        A("v_or_b32 v7, s3, v6")
        A("v_xor_b32 v7, v7, v5")
        A("v_lshlrev_b32 v7, 4, v7")
        A("v_lshl_add_u32 v7, v4, 12, v7")
        A("s_waitcnt lgkmcnt(0)")
        if stg:
            assert not ipf
            stg_setup()
            stg_at(-1, vm)
        def pfc(t):
            for ch in (pfsch or {}).get(("z" if ztype else "a", t), ()):
                A.raw(f";PF_CALL {ch[2*hi]} {ch[2*hi+1]} {W}")
        pfc(-1)
        for b in range(9):
            vm.need(b if b < 8 else "st")
            if stamp and b < 8:
                st2(A, 2 + b)
            A("s_barrier")
            for _ in range(ramp):
                if nxt_st[0] <= min(7, b + 3):
                    issue(nxt_st[0]); nxt_st[0] += 1
            if b == rank_at:
                A(f"s_lshl_b32 s3, {W}, 9")
                for j in range(2):
                    A(f"s_add_u32 m0, s3, {LRM + j*256}")
                    A(f"buffer_load_dword v8, s[{SWS}:{SWS+3}], s69 offen sc1 lds")
                    A("s_add_u32 s69, s69, 256")
                    vm.op("st")
            if b == rank_at and "2" in phases:
                A(f"v_mov_b32 v12, {LMISC}")
                A("ds_read_b32 v13, v12")
                A("s_waitcnt lgkmcnt(0)")
                A(f"v_readfirstlane_b32 {RANK}, v13")
                A("s_nop 0")
                A(f"s_and_b32 {RANK}, {RANK}, 255")
                srd(A, SDB, "s58", "s59", 4096)
                p2_decode()
                A(f"s_lshl_b32 s3, {W}, 8")
                A(f"s_add_u32 m0, s3, {LBS}")
                A(f"s_lshl_b32 s18, {TT}, 9")
                A("s_add_u32 s3, s3, s18")
                A(f"buffer_load_dword v8, s[{SDB}:{SDB+3}], s3 offen lds")
                vm.op("st")
                A(f"s_cmp_eq_u32 {TY}, 0")
                A("s_cselect_b64 s[12:13], s[12:13], s[14:15]")
                A(f"s_cmp_ge_u32 {TY}, 2")
                A("s_cselect_b64 s[12:13], s[56:57], s[12:13]")
                srd(A, SQ, "s12", "s13", 2048 * 4096)
                A(f"s_lshl_b32 {QB}, {TT}, 20")
                A(f"s_lshl_b32 s3, {KH}, 11")
                A(f"s_add_u32 {QB}, {QB}, s3")
                if rot2:
                    By, Bg, my, mg = rot2
                    if rblk:
                        assert sum(rblk[0]) == 16 and sum(rblk[1]) == 16 and not (qpre or ppf)
                        By, Bg = rblk[0][0], rblk[1][0]
                    A(f"s_add_u32 {KO}, {TT}, {NT}")
                    A(f"s_mul_i32 {KO}, {KO}, {my*128}")
                    A(f"s_mul_i32 s3, {NT}, {mg*128}")
                    A(f"s_cmp_ge_u32 {TY}, 2")
                    A(f"s_cselect_b32 {KO}, s3, {KO}")
                    A(f"s_mov_b32 s55, {(By-1)*128}")
                    A(f"s_cselect_b32 s55, {(Bg-1)*128}, s55")
            if "2" in phases:
                for s_ in range(3):
                    if b == q_at[s_]:
                        assert b >= max(5 + s_, rank_at)
                        q_issue(s_, vm, "q")
                q_rload(f"b{b}", vm)
            stg_at(b, vm)
            pfc(b)
        if not uni:
            A(f"s_branch {N}_ld_p2")

    assert rank_at >= 4
    for role in range(1 if uni else 4):
        p1_loader(role)
        if role == 1:
            A.raw(";PF_RET")
    A.label(f"{N}_ld_p2")
    PB_("l2")
    if stamp or est:
        st2(A, 10)
        st2_flush(A, range(1, 11) if stamp else [10], "s19", SWS)
    if "2" not in phases:
        A("s_endpgm")
    else:
        G(1)
        srd(A, SO, "s96", "s97", 2048 * 1024)
        p3_addr()
        if prio_loader:
            A(f"s_setprio {prio_loader}")
        A(f"s_mov_b32 {PB}, {WS_A}")
        A(f"s_cmp_eq_u32 {TY}, 1")
        A(f"s_cselect_b32 {PB}, {WS_B}, {PB}")
        A(f"s_cmp_eq_u32 {TY}, 2")
        A(f"s_cselect_b32 {PB}, {WS_Z2}, {PB}")
        A(f"s_lshl1_add_u32 s3, {NT}, {KH}")
        A("s_lshl_b32 s3, s3, 18")
        A(f"s_add_u32 {PB}, {PB}, s3")
        A(f"s_add_u32 {PB}, {PB}, {LDST}")
        ZB, ZD = "s50", "s53"
        A(f"s_mul_i32 {ZB}, {TT}, {16*28}")
        A(f"s_lshl2_add_u32 {ZB}, {NT}, {ZB}")
        A(f"s_lshl_b32 {ZB}, {ZB}, 10")
        A(f"s_add_u32 {ZB}, {ZB}, {LDST}")
        if z1cp == 2:
            A(f"s_lshl_b32 s3, {KH}, 22")
            A(f"s_add_u32 {ZB}, {ZB}, s3")
        A(f"s_add_u32 {ZB}, {ZB}, {W_Z1}")
        def z1_loads(ts=range(16), vm=None):
            for t in ts:
                A(f"s_add_u32 s3, {ZB}, {t*28*1024}")
                A(f"buffer_load_dwordx4 {v(ZR1+4*t,4)}, v14, s[{SWS}:{SWS+3}], s3 offen {zaux}")
                if vm:
                    vm.op("z1")
        A(f"v_mov_b32 v8, {LMISC + 4}")
        A("v_add_u32 v12, 4, v8")
        A(f"s_cmp_eq_u32 {TY}, 3")
        A(f"s_cbranch_scc1 {N}_spare")
        vm0 = Cnt(A, "vmcnt", 63)
        if qpf or qpre or ppf:
            A(f"s_lshl_b32 s3, {W}, 18")
            A("v_lshl_add_u32 v11, v1, 12, s3")
            A(f"v_lshlrev_b32 v13, 7, v1")
        if qpre:
            A(f"s_cmp_eq_u32 {TY}, 2")
            A(f"s_cbranch_scc1 {N}_qpg")
            curB[0] = rot2[0]
            for q in qpre:
                q_touch(q, vm0, 'v3')
            A(f"s_branch {N}_qpx")
            A.label(f"{N}_qpg")
            curB[0] = rot2[1]
            for q in qpre:
                q_touch(q, vm0, 'v3')
            A.label(f"{N}_qpx")
        if q_at[2] == "e":
            q_issue(2, vm0, "q")
        q_rload("pre", vm0, thr)
        G(5)
        A(f"s_mov_b32 s18, {SPIN << 4}")
        A(f"s_cmp_eq_u32 {W}, 0")
        A(f"s_cbranch_scc0 {N}_lw1")
        if pull1:
            A("v_and_b32 v9, 7, v1")
            A(f"s_lshl_b32 s3, {KH}, 3")
            A("v_add_u32 v9, s3, v9")
            A("v_lshrrev_b32 v10, 3, v1")
            A(f"s_mov_b32 s57, {W_F1}")
            A(f"s_cmp_eq_u32 {TY}, 2")
            A(f"s_cbranch_scc1 {N}_f1g")
            A(f"s_lshl_b32 s3, {NT}, 2")
            A("s_lshr_b32 s91, 0x7520, s3")
            A("s_and_b32 s91, s91, 15")
            A("v_add_u32 v10, s91, v10")
            A("s_lshr_b32 s91, 0x1343, s3")
            A("s_and_b32 s91, s91, 15")
            A("s_lshl_b32 s91, s91, 3")
            A("s_bfm_b64 s[92:93], s91, 0")
            A("s_mov_b32 s91, s92")
            A(f"s_mul_i32 s3, {TY}, 7")
            A("v_cmp_eq_u32 vcc, 7, v10")
            A("v_add_u32 v10, s3, v10")
            A(f"s_add_u32 s3, {TY}, 14")
            A("v_mov_b32 v13, s3")
            A("v_cndmask_b32 v10, v10, v13, vcc")
            A(f"s_branch {N}_f1x")
            A.label(f"{N}_f1g")
            A("v_bfe_u32 v13, v1, 1, 1")
            A("v_cmp_gt_u32 vcc, 16, v1")
            A("s_mov_b32 s91, 0xfffff")
            A("v_cndmask_b32 v10, v13, v10, vcc")
            A(f"s_lshl_b32 s3, {NT}, 1")
            A("v_add_u32 v10, s3, v10")
            A("v_and_b32 v13, 1, v1")
            A(f"s_lshl_b32 s3, {TT}, 1")
            A("v_add_u32 v13, s3, v13")
            A("v_cndmask_b32 v9, v13, v9, vcc")
            A.label(f"{N}_f1x")
            A("v_lshl_add_u32 v9, v9, 4, v10")
            A(f"v_lshlrev_b32 v9, {8 if ey else 7}, v9")
        if ey:
            A(f"s_cmp_eq_u32 {TY}, 2")
            A(f"s_cbranch_scc1 {N}_lo0")
            def lwait(tag, n):
                A.label(f"{N}_{tag}0")
                A("ds_read_b32 v10, v12 offset:4")
                A("s_sub_u32 s18, s18, 1")
                A("s_waitcnt lgkmcnt(0)")
                A("v_readfirstlane_b32 s3, v10")
                A(f"s_cmp_ge_u32 s3, {n}")
                A(f"s_cbranch_scc1 {N}_{tag}1")
                A("s_sleep 1")
                A("s_cmp_gt_i32 s18, 0")
                A(f"s_cbranch_scc1 {N}_{tag}0")
                A.label(f"{N}_{tag}1")
            lwait("ya", eyt[0])
            A(f"s_mov_b32 s18, {SPIN}")
            A(f"s_mov_b32 exec_lo, s91")
            A(f"s_mov_b32 exec_hi, 0")
            A.label(f"{N}_yp0")
            A(f"buffer_load_dwordx4 v[16:19], v9, s[{SWS}:{SWS+3}], s57 offen offset:128 sc1")
            A("s_waitcnt vmcnt(0)")
            A("v_min_u32 v10, v16, v17")
            A("v_min3_u32 v10, v10, v18, v19")
            A("v_cmp_eq_u32 vcc, 0, v10")
            A("s_sub_u32 s18, s18, 1")
            A("s_cmp_eq_u64 vcc, 0")
            A(f"s_cbranch_scc1 {N}_yp1")
            A(f"s_sleep {psleep}")
            A("s_cmp_gt_i32 s18, 0")
            A(f"s_cbranch_scc1 {N}_yp0")
            A.label(f"{N}_yp1")
            A("s_mov_b64 exec, -1")
            G(11)
            A(f"s_mov_b32 s18, {SPIN << 4}")
            if eyt[1]:
                lwait("yb", eyt[1])
            A(f"s_branch {N}_lp1")
        if own_wait:
            A.label(f"{N}_lo0")
            A("ds_read_b32 v10, v12")
            A("s_sub_u32 s18, s18, 1")
            A("s_waitcnt lgkmcnt(0)")
            A("v_readfirstlane_b32 s3, v10")
            A("s_cmp_eq_u32 s3, 4")
            A(f"s_cbranch_scc1 {N}_lo1")
            A("s_sleep 1")
            A("s_cmp_gt_i32 s18, 0")
            A(f"s_cbranch_scc1 {N}_lo0")
            A.label(f"{N}_lo1")
        A(f"s_mov_b32 s18, {SPIN}")
        if pull1:
            A(f"s_mov_b32 exec_lo, s91")
            A(f"s_mov_b32 exec_hi, 0")
        else:
            A(f"s_lshl_b32 s3, {NT}, 2")
            A("s_lshr_b32 s57, 0x1343, s3")
            A("s_and_b32 s57, s57, 15")
            A("s_lshl_b32 s57, s57, 3")
            A(f"s_cmp_eq_u32 {TY}, 2")
            A("s_cselect_b32 s57, 20, s57")
            A("s_sub_u32 s57, s57, 1")
            A("v_min_u32 v9, s57, v1")
            A("v_lshlrev_b32 v9, 2, v9")
            A(f"s_lshl_b32 s57, {JOB}, 10")
            A(f"s_add_u32 s57, s57, {W_F1}")
        A.label(f"{N}_lp0")
        A(f"buffer_load_dword v10, v9, s[{SWS}:{SWS+3}], s57 offen sc1")
        A("s_waitcnt vmcnt(0)")
        A("v_cmp_eq_u32 vcc, 0, v10")
        A("s_sub_u32 s18, s18, 1")
        A("s_cmp_eq_u64 vcc, 0")
        A(f"s_cbranch_scc1 {N}_lp1")
        if psleep:
            A(f"s_sleep {psleep}")
        A("s_cmp_gt_i32 s18, 0")
        A(f"s_cbranch_scc1 {N}_lp0")
        A.label(f"{N}_lp1")
        if pull1:
            A("s_mov_b64 exec, -1")
        for _ in range(dly1):
            A("s_sleep 16")
        A("v_mov_b32 v10, 2")
        A("ds_write_b32 v8, v10")
        A(f"s_branch {N}_lgo")
        A.label(f"{N}_lw1")
        A("ds_read_b32 v10, v8")
        A("s_sub_u32 s18, s18, 1")
        A("s_waitcnt lgkmcnt(0)")
        A("v_readfirstlane_b32 s3, v10")
        A("s_cmp_eq_u32 s3, 2")
        A(f"s_cbranch_scc1 {N}_lgo")
        A("s_sleep 1")
        A("s_cmp_gt_i32 s18, 0")
        A(f"s_cbranch_scc1 {N}_lw1")
        A.label(f"{N}_lgo")
        G(2)
        A("v_and_b32 v12, 0x330, v14")
        A("v_bfe_u32 v9, v1, 2, 1")
        A("v_lshl_add_u32 v12, v9, 7, v12")
        A("v_bfe_u32 v9, v1, 3, 1")
        A("v_lshl_add_u32 v12, v9, 12, v12")
        A(f"v_add_u32 v12, {LDST}, v12")
        A(f"v_add_u32 v9, 65536, v12")
        A(f"s_cmp_eq_u32 {TY}, 2")
        A(f"s_cbranch_scc1 {N}_lg")
        KP = "s55"
        def p2_loader(isg):
            vm = Cnt(A, "vmcnt", 63)
            paux = pauxg if isg else pauxy
            if rot2:
                curB[0] = rot2[1] if isg else rot2[0]
                if rblk:
                    curL[0] = rblk[1 if isg else 0]
            if ylate and not isg:
                A(f"s_sleep {ylate}")
            def p_issue(st):
                if rot2:
                    A(f"s_add_u32 s18, {KO}, {st*128}")
                    A(f"s_and_b32 s18, s18, {blk(st)[1]}")
                    A(f"s_lshl_b32 s18, s18, 7")
                    A(f"s_add_u32 s18, s18, {PB}")
                for m in range(4):
                    A(f"s_add_u32 m0, {LDST}, {PSL[st & 3] + m*4096}")
                    if rot2:
                        A(f"s_add_u32 s3, s18, {blk(st)[0]*16384 + m*4096}")
                    else:
                        A(f"s_add_u32 s3, {PB}, {(st % 4 if 'P' in dbgm else st)*16384 + m*4096}")
                    A(f"buffer_load_dwordx4 v14, s[{SWS}:{SWS+3}], s3 offen {paux} lds")
                    vm.op(st)
            def z1_write(h):
                for wj in range(2):
                    for m in range(4):
                        A(f"ds_write_b128 {'v9' if wj else 'v12'}, {v(ZR1 + 4*(wj*8 + 4*h + m), 4)} offset:{(2-h)*16384 + (m&2)*4096 + (m&1)*64}")
            for s_ in range(3):
                if q_at[s_] == "p":
                    q_issue(s_, vm, s_)
                p_issue(s_)
            q_rload("p", vm)
            wrote = False
            for n in range(17):
                if wrote:
                    A("s_waitcnt lgkmcnt(0)")
                    wrote = False
                vm.need(n)
                if n == 0:
                    G(3)
                if n == 16:
                    G(4)
                A("s_barrier")
                if 1 <= n <= 13:
                    if n + 2 in qreg:
                        q_write(n + 2, vm)
                        wrote = True
                    else:
                        q_issue(n + 2, vm, n + 2)
                if pairp:
                    if n == 0:
                        p_issue(3)
                    elif n % 2 == 0 and n <= 12:
                        p_issue(n + 2)
                        p_issue(n + 3)
                elif n <= 12:
                    p_issue(n + 3)
                q_rload(n, vm)
                if qpf:
                    for q in ([n + qpf] if n else range(3, qpf + 1)):
                        if q <= 15 and q not in qpre:
                            q_touch(q, vm)
                if ppf and n % 2 == 0 and n + ppf + 1 <= 15:
                    st = n + ppf
                    assert (st & ~(curB[0]-1)) == ((st + 1) & ~(curB[0]-1))
                    A(f"s_lshr_b32 s3, {W}, 1")
                    A(f"s_lshl_b32 s3, s3, 7")
                    A(f"s_add_u32 s18, {KO}, s3")
                    A(f"s_add_u32 s18, s18, {st*128}")
                    A("s_and_b32 s18, s18, s55")
                    A(f"s_lshl_b32 s18, s18, 7")
                    A(f"s_add_u32 s18, s18, {PB}")
                    A(f"s_sub_u32 s18, s18, {LDST}")
                    A(f"s_and_b32 s3, {W}, 1")
                    A(f"s_lshl_b32 s3, s3, 13")
                    A(f"s_add_u32 s3, s3, s18")
                    A(f"s_add_u32 s3, s3, {(st & ~(curB[0]-1))*16384}")
                    A(f"buffer_load_dword v10, v13, s[{SWS}:{SWS+3}], s3 offen")
                    vm.op("pf")
                if isg:
                    per = 16 // len(z1s)
                    for i, at in enumerate(z1s):
                        if at == n:
                            z1_loads(range(per*i, per*i+per), vm)
                for i, at in enumerate(wot_at):
                    if at == n:
                        wot_loads(i, vm)
                if tlbw is not None and n == tlbw[0]:
                    md = tlbw[2] if len(tlbw) > 2 else "yo"
                    ls = tlbw[3] if len(tlbw) > 3 else 18
                    if "y" in md:
                        A(f"v_lshlrev_b32 v2, {ls}, v1")
                        A(f"s_mov_b32 s3, {tlbw[4] if len(tlbw) > 4 else W_Y}")
                        if "w" in md:
                            A(f"s_cmp_eq_u32 {W}, 0")
                            A(f"s_cselect_b32 s3, s3, {WS_TOT2}")
                        if "q" in md:
                            A(f"s_lshl_b32 s18, {W}, {ls+6}")
                            A("s_add_u32 s3, s3, s18")
                        A(f"buffer_load_dword v3, v2, s[{SWS}:{SWS+3}], s3 offen {tlbw[1]}")
                        vm.op("ipf")
                    if "o" in md:
                        A("v_lshlrev_b32 v5, 15, v1")
                        A("s_mov_b32 s3, 0")
                        if "w" in md:
                            A(f"s_cmp_eq_u32 {W}, 0")
                            A(f"s_cselect_b32 s3, s3, {2048*1024}")
                        sr_ = SX if "x" in md else SO
                        if "1" in md:
                            A("s_mov_b64 exec, 1")
                        A(f"buffer_load_dword v4, v5, s[{sr_}:{sr_+3}], s3 offen {tlbw[1]}")
                        if "1" in md:
                            A("s_mov_b64 exec, -1")
                        vm.op("ipf")
                if ipf and n in ipf2:
                    A("v_lshlrev_b32 v2, 7, v1")
                    A(f"s_add_u32 s3, s68, {N}_{ipf2b}-{N}_pc0")
                    A(f"buffer_load_dword v10, v2, s[{SP}:{SP+3}], s3 offen")
                    vm.op("ipf")
                if isg and n in (14, 15):
                    vm.need("z1")
                    z1_write(15 - n)
                    wrote = True
            A(f"s_branch {N}_p3l")
        PE_()
        PB_("ly")
        p2_loader(False)
        PE_()
        A.label(f"{N}_lg")
        PB_("lg")
        p2_loader(True)
        PE_()
        A.label(f"{N}_spare")
        A("s_waitcnt vmcnt(0)")
        A("s_barrier")
        A("v_lshlrev_b32 v9, 7, v1")
        A(f"s_and_b32 s3, {RANK}, 1")
        A(f"s_lshl2_add_u32 s3, s3, {W}")
        A("s_lshl_b32 s3, s3, 13")
        A(f"s_add_u32 s3, s3, {WS_WOT}")
        for i in range(14):
            A(f"buffer_load_dword v8, v9, s[{SWS}:{SWS+3}], s3 offen")
            A("s_add_u32 s3, s3, 65536")
        for i in range(4):
            wot_loads(i)
        if stir:
            R_, SL_, KD_ = stir[:3]
            A("s_waitcnt vmcnt(0)")
            A(f"s_bfe_u32 s3, {RANK}, 0x20005")
            A(f"s_and_b32 s18, {RANK}, 3")
            A("s_lshl2_add_u32 s3, s3, s18")
            A(f"s_lshl2_add_u32 s3, s3, {W}")
            A("s_lshl_b32 s3, s3, 17")
            A(f"s_add_u32 s3, s3, {W_H2}")
            A(f"s_mov_b32 s18, {R_}")
            if len(stir) > 3:
                for _ in range(stir[3] // 127):
                    A("s_sleep 127")
                A(f"s_sleep {stir[3] % 127}")
            A.label(f"{N}_stir")
            if KD_ == "w":
                A(f"buffer_store_dwordx4 v[2:5], v14, s[{SWS}:{SWS+3}], s3 offen sc1")
            else:
                A(f"buffer_load_dwordx4 v[2:5], v14, s[{SWS}:{SWS+3}], s3 offen {KD_[1:]}")
            A("s_add_u32 s3, s3, 1024")
            A(f"s_sleep {SL_}")
            A("s_sub_u32 s18, s18, 1")
            A("s_cmp_lg_u32 s18, 0")
            A(f"s_cbranch_scc1 {N}_stir")
            A("s_waitcnt vmcnt(0)")
            assert R_ <= 128
        A(f"s_branch {N}_p3l")

    FR, FS, ACC, CSA, ONE = 32, 52, 136, 224, 16
    A.label(f"{N}_comp")
    if tw:
        assert tw[0] != "s" or all(tw[1:4])
        A("s_load_dwordx2 s[96:97], s[0:1], 80")
    def tlb_touch(tag):
        for wv, sr, ls in ((0, SWS, tw[1]), (1, SO, tw[2]), (2, SX, tw[3])):
            if not ls:
                continue
            A(f"s_cmp_eq_u32 s19, {wv}")
            A(f"s_cbranch_scc0 {N}_{tag}_tw{wv}")
            if len(tw) > 4:
                A(f"s_mov_b32 s3, {tw[4] if wv == 0 else 0}")
            else:
                A("s_lshr_b32 s3, s2, 3")
                A(f"s_lshl_b32 s3, s3, {6 + ls}")
                A(f"s_min_u32 s3, s3, s{sr+2}")
            A(f"v_lshlrev_b32 v240, {ls}, v1")
            A(f"buffer_load_dword v241, v240, s[{sr}:{sr+3}], s3 offen")
            A.label(f"{N}_{tag}_tw{wv}")
    A("v_and_b32 v26, 15, v1")
    A("v_lshrrev_b32 v27, 4, v1")
    STO = "s69"
    A(f"s_lshl_b32 s3, {RB}, 4")
    A(f"s_add_u32 s3, s3, {CG}")
    A(f"s_lshl_b32 {STO}, s3, 10")
    A(f"s_add_u32 {STO}, {STO}, {W_ST}")
    A("s_getreg_b32 s18, hwreg(HW_REG_XCC_ID, 0, 3)")
    A("s_add_u32 s18, s18, 1")
    A(f"s_lshl_b32 {KEY}, s18, 8")
    A("s_and_b32 s3, s2, 7")
    A("s_lshl_b32 s3, s3, 5")
    A(f"s_or_b32 {KEY}, {KEY}, s3")
    A("s_lshr_b32 s3, s2, 3")
    A(f"s_or_b32 {KEY}, {KEY}, s3")
    A("v_mov_b32 v24, s18")
    TV = "v15" if tsp else "v14"
    if tsp:
        A(f"v_lshlrev_b32 v15, {tsp}, v1")
    for i in range(4):
        A(f"v_mov_b32 v{ACC+i}, 0")
    A(f"s_and_b32 s57, {RB}, 7")
    JD, JS = 32, 48
    A("s_cmp_eq_u32 s19, 3")
    A(f"s_cbranch_scc1 {N}_j3")
    A("s_lshl1_add_u32 s48, s2, s19")
    A("s_and_b32 s3, s2, 127")
    A("s_cmp_eq_u32 s19, 2")
    A("s_cselect_b32 s48, s3, s48")
    A("s_lshl_b32 s48, s48, 12")
    A("s_waitcnt lgkmcnt(0)")
    A("s_bitcmp1_b32 s2, 7")
    A("s_cselect_b64 s[16:17], s[10:11], s[8:9]")
    A("s_cmp_eq_u32 s19, 2")
    A("s_cselect_b64 s[16:17], s[16:17], s[4:5]")
    srd(A, SW, "s16", "s17", 2048 * 1024)
    A("s_cmp_eq_u32 s19, 2")
    A(f"s_cselect_b32 s{SW+2}, {512*1024}, s{SW+2}")
    for j in range(4):
        A(f"buffer_load_dwordx4 {v(JD+4*j,4)}, v14, s[{SW}:{SW+3}], s48 offen offset:{j*1024} {saux}")
    A(f"s_branch {N}_tx")
    A.label(f"{N}_j3")
    A("s_load_dwordx2 s[16:17], s[0:1], 72")
    A(f"s_lshl_b32 s49, s2, {(8 if ey else 7) if pull1 else 10}")
    A(f"s_add_u32 s49, s49, {W_BX}")
    A("v_lshrrev_b32 v20, 3, v1")
    A("v_and_b32 v21, 7, v1")
    A("v_lshrrev_b32 v22, 5, v1")
    A("v_lshlrev_b32 v22, 1, v22")
    A("v_xor_b32 v21, v21, v22")
    A("v_xor_b32 v22, 4, v21")
    A("v_lshlrev_b32 v21, 4, v21")
    A("v_lshlrev_b32 v22, 4, v22")
    A("v_lshl_add_u32 v21, v20, 10, v21")
    A("v_lshl_add_u32 v22, v20, 10, v22")
    A("s_lshr_b32 s50, s2, 3")
    A("s_and_b32 s51, s2, 7")
    A("s_lshl_b32 s48, s50, 15")
    A("s_lshl_b32 s3, s51, 7")
    A("s_add_u32 s48, s48, s3")
    A("s_waitcnt lgkmcnt(0)")
    srd(A, SI, "s16", "s17", 896 * 1024)
    srd_ws()
    A("s_cmp_eq_u32 s2, 0")
    A(f"s_cbranch_scc0 {N}_nan")
    A(f"s_mov_b32 s3, {W_TB}")
    A(f"buffer_store_dwordx4 {v(ACC,4)}, {TV}, s[{SWS}:{SWS+3}], s3 offen sc1")
    srd(A, SDB, "s12", "s13", 256)
    A("s_mov_b64 exec, 1")
    A("s_waitcnt vmcnt(0)")
    A(f"buffer_store_dword v24, v14, s[{SDB}:{SDB+3}], 0 offen sc1")
    A("s_mov_b64 exec, -1")
    A.label(f"{N}_nan")
    for m in range(4):
        A(f"s_mov_b32 m0, {LTR + m*1024}")
        A(f"s_add_u32 s3, s48, {m*8192}")
        A(f"buffer_load_dwordx4 v{21+(m&1)}, s[{SI}:{SI+3}], s3 offen {saux} lds")
    A(f"buffer_store_dwordx4 {v(ACC,4)}, v14, s[{SWS}:{SWS+3}], {STO} offen sc1")
    A(f"s_mov_b64 exec, {'0xffff' if ey else '0xff'}")
    A(f"buffer_store_dwordx4 {v(ACC,4)}, v14, s[{SWS}:{SWS+3}], s49 offen sc1")
    if ey and not pull2:
        A("s_mov_b64 exec, 0xff")
    A(f"s_lshl_b32 s49, s2, {9 if pull2 else f2s}")
    A(f"s_add_u32 s49, s49, {W_F2}")
    if pull2:
        A("s_mov_b32 exec_lo, -1")
    A(f"buffer_store_dwordx4 {v(ACC,4)}, v14, s[{SWS}:{SWS+3}], s49 offen sc1")
    A("s_mov_b64 exec, -1")
    A("s_mul_i32 s51, s51, 112")
    A("s_add_u32 s51, s51, s50")
    A("s_lshl_b32 s51, s51, 10")
    A(f"s_add_u32 s51, s51, {WS_WOT}")
    A("s_cmp_ge_u32 s2, 224")
    A(f"s_cselect_b32 s51, {WS_TOT2}, s51")
    A.label(f"{N}_tx")
    srd(A, SX, "s4", "s5", 2048 * 1024)
    srd_ws()
    srd(A, SDB, "s12", "s13", 256)
    if tw:
        srd(A, SO, "s96", "s97", 2048 * 1024)
        if tw[0] == "s":
            tlb_touch("st")
    A("v_lshrrev_b32 v28, 2, v26")
    A("v_and_b32 v29, 3, v26")
    A("v_lshl_add_u32 v28, v28, 3, v29")
    A("s_lshl_b32 s3, s19, 5")
    A("v_add_u32 v28, s3, v28")
    A("v_lshlrev_b32 v28, 7, v28")
    A("v_bfe_u32 v29, v26, 1, 1")
    A("v_bfe_u32 v25, v26, 3, 1")
    A("v_lshl_or_b32 v29, v25, 1, v29")
    A("v_bfe_u32 v25, v26, 2, 1")
    A("v_lshl_or_b32 v29, v25, 2, v29")
    A("v_xor_b32 v29, v29, v27")
    A("v_lshl_add_u32 v2, v29, 4, v28")
    A("v_xor_b32 v3, 32, v2")
    A("v_add_u32 v3, 512, v3")
    A("v_xor_b32 v4, 64, v2")
    A("v_xor_b32 v5, 64, v3")
    A("v_bfe_u32 v29, v26, 1, 3")
    A("v_xor_b32 v29, v29, v27")
    A("v_lshlrev_b32 v28, 7, v26")
    A("v_lshl_add_u32 v6, v29, 4, v28")
    A(f"v_add_u32 v10, {LW}, v6")
    A(f"v_add_u32 v6, {LD}, v6")
    A("v_xor_b32 v7, 32, v6")
    A("v_xor_b32 v8, 64, v6")
    A("v_xor_b32 v9, 64, v7")
    A("v_xor_b32 v11, 32, v10")
    A("v_xor_b32 v12, 64, v10")
    A("v_xor_b32 v13, 64, v11")
    A(f"s_cmp_eq_u32 {ABO}, 1")
    A(f"s_cbranch_scc1 {N}_natr")
    A("v_lshrrev_b32 v28, 2, v26")
    A("v_lshl_add_u32 v28, v27, 3, v28")
    A("v_lshlrev_b32 v28, 7, v28")
    A("v_and_b32 v29, 3, v26")
    A("v_lshl_add_u32 v28, v29, 3, v28")
    A("v_bfe_u32 v29, v26, 3, 1")
    A("v_and_b32 v25, 1, v27")
    A("v_lshl_or_b32 v29, v25, 1, v29")
    A("v_xor_b32 v29, s19, v29")
    A("v_lshl_add_u32 v10, v29, 5, v28")
    A(f"v_add_u32 v10, {LW}, v10")
    for tt in range(1, 4):
        A(f"v_xor_b32 v{10+tt}, {tt*32}, v10")
    A.label(f"{N}_natr")
    for i in range(4, 96):
        A(f"v_mov_b32 v{ACC+i}, 0")
    for i in range(4):
        A(f"v_mov_b32 v{ONE+i}, 0x3f803f80")
    A("v_lshlrev_b32 v28, 2, v1")
    if pull1:
        A(f"s_lshl4_add_u32 s3, {RB}, {CG}")
        A(f"s_lshl_b32 s3, s3, {8 if ey else 7}")
        A(f"s_add_u32 s3, s3, {W_F1}")
        A("v_mov_b32 v252, s3")
        if ey:
            A("s_lshl2_add_u32 s3, s19, s3")
            A("v_mov_b32 v253, s3")
    else:
        A(f"s_mul_i32 s3, {U0}, 11")
        A("s_lshr_b32 s3, s3, 5")
        A("s_lshl_b32 s3, s3, 2")
        A("s_lshr_b32 s18, 0xA9765210, s3")
        A("s_lshr_b32 s3, 0xC9865410, s3")
        for r in ("s18", "s3"):
            A(f"s_bfe_u32 s48, {r}, 0x20002")
            A("s_lshl_b32 s48, s48, 10")
            A(f"s_and_b32 {r}, {r}, 3")
            A(f"s_lshl_b32 {r}, {r}, 5")
            A(f"s_add_u32 {r}, {r}, s48")
        A("v_mov_b32 v22, s18")
        A("v_mov_b32 v23, s3")
        A("v_cmp_gt_u32 vcc, 8, v1")
        A("v_bfe_u32 v21, v1, 2, 1")
        A("v_lshlrev_b32 v21, 17, v21")
        A("v_cndmask_b32 v22, v23, v22, vcc")
        A("v_and_b32 v23, 3, v1")
        A("v_lshl_add_u32 v21, v23, 12, v21")
        A("v_add_u32 v21, v21, v22")
        A(f"s_lshr_b32 s48, {RB}, 3")
        A(f"s_lshl1_add_u32 s3, {ISB}, s48")
        A("s_lshl_b32 s3, s3, 15")
        A("s_lshl2_add_u32 s3, s57, s3")
        A(f"s_add_u32 s3, s3, {W_F1}")
        A("v_add_u32 v252, s3, v21")
        A(f"s_lshr_b32 s49, {CG}, 1")
        A("s_lshl_b32 s49, s49, 10")
        A(f"s_add_u32 s49, s49, {W_F1 + 16384}")
        A(f"s_lshr_b32 s3, {RB}, 1")
        A("s_lshl_b32 s3, s3, 15")
        A("s_add_u32 s3, s3, s49")
        A(f"s_and_b32 s18, {CG}, 1")
        A("s_lshl3_add_u32 s3, s18, s3")
        A(f"s_and_b32 s50, {RB}, 1")
        A("s_lshl2_add_u32 s3, s50, s3")
        A("s_add_u32 s3, s3, 64")
        A("v_and_b32 v21, 1, v1")
        A("v_mul_u32_u24 v21, 7168, v21")
        A("v_cmp_gt_u32 vcc, 16, v1")
        A("v_add_u32 v21, s3, v21")
        A("v_lshlrev_b32 v22, 15, v1")
        A("v_cndmask_b32 v252, v21, v252, vcc")
        A("s_mul_i32 s3, s48, 7168")
        A("s_add_u32 s3, s3, s49")
        A("s_lshl_b32 s18, s18, 5")
        A("s_add_u32 s3, s3, s18")
        A("s_lshl2_add_u32 s3, s57, s3")
        A(f"s_sub_u32 s3, s3, {18 << 15}")
        A("v_cmp_gt_u32 vcc, 18, v1")
        A("v_add_u32 v253, s3, v22")
        A("v_cndmask_b32 v252, v253, v252, vcc")
    A("s_cmp_eq_u32 s19, 3")
    A(f"s_cbranch_scc1 {N}_k3")
    for i in range(8):
        A(f"v_mov_b32 v{JS+i}, 0")
    A("s_lshl1_add_u32 s48, s2, s19")
    A("s_lshl_b32 s48, s48, 4")
    A(f"s_add_u32 s48, s48, {W_RS}")
    A("s_lshl_b32 s49, s2, 4")
    A(f"s_add_u32 s49, s49, {W_RS + 16384}")
    A("v_mov_b32 v20, 0")
    for j in range(4):
        A(f"s_waitcnt vmcnt({3-j+(1 if tw and tw[0] == 's' else 0)})")
        for d in range(4):
            A(f"v_dot2c_f32_bf16 v{JS+j}, v{JD+4*j+d}, v{ONE}")
            A(f"v_dot2c_f32_bf16 v{JS+4+j}, v{JD+4*j+d}, v{JD+4*j+d}")
    A("s_nop 2")
    for dpp in ("quad_perm:[1,0,3,2] row_mask:0xf", "quad_perm:[2,3,0,1] row_mask:0xf", "row_half_mirror row_mask:0xf", "row_mirror row_mask:0xf",
                "row_bcast:15 row_mask:0xa", "row_bcast:31 row_mask:0xc"):
        for i in range(8):
            A(f"v_add_f32_dpp v{JS+i}, v{JS+i}, v{JS+i} {dpp} bank_mask:0xf")
    A("s_mov_b32 exec_lo, 0")
    A("s_mov_b32 exec_hi, 0x80000000")
    A("s_cmp_eq_u32 s19, 2")
    A(f"s_cbranch_scc0 {N}_k0")
    A(f"buffer_store_dwordx4 {v(JS,4)}, v20, s[{SWS}:{SWS+3}], s49 offen sc1")
    A(f"s_branch {N}_kx")
    A.label(f"{N}_k0")
    for i in range(8):
        A(f"v_mul_f32 v{JS+i}, 0x3b000000, v{JS+i}")
    for j in range(4):
        A(f"v_fma_f32 v{JS+4+j}, -v{JS+j}, v{JS+j}, v{JS+4+j}")
    for j in range(4):
        A(f"v_add_f32 v{JS+4+j}, {EPS}, v{JS+4+j}")
    for j in range(4):
        A(f"v_rsq_f32 v{JS+4+j}, v{JS+4+j}")
    A("s_add_u32 s49, s48, 8192")
    A(f"buffer_store_dwordx4 {v(JS,4)}, v20, s[{SWS}:{SWS+3}], s49 offen sc1")
    A(f"buffer_store_dwordx4 {v(JS+4,4)}, v20, s[{SWS}:{SWS+3}], s48 offen sc1")
    A(f"s_branch {N}_kx")
    A.label(f"{N}_k3")
    A("v_bfe_u32 v20, v1, 2, 2")
    A("v_lshl_add_u32 v20, v27, 2, v20")
    A("v_lshlrev_b32 v20, 7, v20")
    A(f"v_add_u32 v20, {LTR}, v20")
    A("v_and_b32 v21, 1, v1")
    A("v_lshl_add_u32 v20, v21, 3, v20")
    A("v_bfe_u32 v21, v1, 1, 1")
    A("v_lshlrev_b32 v22, 1, v27")
    for db in range(4):
        A(f"v_xor_b32 v23, {2*db}, v22")
        A("v_or_b32 v23, v23, v21")
        A(f"v_lshl_add_u32 v{JS+db}, v23, 4, v20")
    A("s_waitcnt vmcnt(3)")
    for db in range(4):
        A(f"ds_read_b64_tr_b16 {v(JD+4*db,2)}, v{JS+db}")
        A(f"ds_read_b64_tr_b16 {v(JD+2+4*db,2)}, v{JS+db} offset:2048")
    A("s_waitcnt lgkmcnt(0)")
    for db in range(4):
        A(f"s_add_u32 s3, s51, {db*28*1024}")
        A(f"buffer_store_dwordx4 {v(JD+4*db,4)}, v14, s[{SWS}:{SWS+3}], s3 offen sc1")
    A.label(f"{N}_kx")
    A("s_mov_b64 exec, -1")
    A(f"s_cmp_eq_u32 {ABO}, 1")
    A(f"s_cbranch_scc1 {N}_cab")

    def special(b, tag):
        if b == pub_at:
            A("s_waitcnt vmcnt(0)")
            A("s_cmp_eq_u32 s19, 3")
            A(f"s_cbranch_scc0 {N}_{tag}_nan")
            A(f"s_mov_b32 s18, {SPIN}")
            A.label(f"{N}_{tag}_an0")
            A("v_readfirstlane_b32 s3, v20")
            A("s_sub_u32 s18, s18, 1")
            A("s_cmp_lg_u32 s3, 0")
            A(f"s_cbranch_scc1 {N}_{tag}_nan")
            A("s_cmp_le_i32 s18, 0")
            A(f"s_cbranch_scc1 {N}_{tag}_nan")
            A(f"buffer_load_dword v20, off, s[{SDB}:{SDB+3}], 0 sc1")
            A("s_waitcnt vmcnt(0)")
            A(f"s_branch {N}_{tag}_an0")
            A.label(f"{N}_{tag}_nan")
        if b == tbl_at:
            A("s_cmp_eq_u32 s19, 3")
            A(f"s_cbranch_scc0 {N}_{tag}_ntl")
            A(f"s_mov_b32 s3, {W_TB}")
            A(f"buffer_load_dwordx4 v[20:23], {TV}, s[{SWS}:{SWS+3}], s3 offen {taux}")
            A.label(f"{N}_{tag}_ntl")
        if b == rank_at:
            A("s_cmp_eq_u32 s19, 3")
            A(f"s_cbranch_scc0 {N}_{tag}_nrk")
            A(f"s_mov_b32 s18, {SPIN}")
            A.label(f"{N}_{tag}_rk0")
            A("s_waitcnt vmcnt(0)")
            A("v_min_u32 v24, v20, v21")
            A("v_min3_u32 v24, v24, v22, v23")
            A("v_cmp_eq_u32 vcc, 0, v24")
            A("s_sub_u32 s18, s18, 1")
            A("s_cmp_eq_u64 vcc, 0")
            A(f"s_cbranch_scc1 {N}_{tag}_rk1")
            A("s_cmp_le_i32 s18, 0")
            A(f"s_cbranch_scc1 {N}_{tag}_rk1")
            A("s_sleep 2")
            A(f"s_mov_b32 s3, {W_TB}")
            A(f"buffer_load_dwordx4 v[20:23], {TV}, s[{SWS}:{SWS+3}], s3 offen sc1")
            A(f"s_branch {N}_{tag}_rk0")
            A.label(f"{N}_{tag}_rk1")
            A(f"s_mov_b32 {RANK}, 0")
            A("s_mov_b32 s48, 0")
            A("s_mov_b32 s49, 0")
            A(f"s_lshr_b32 s18, {KEY}, 8")
            for j in range(4):
                A(f"v_lshl_add_u32 v24, v{20+j}, 8, v28")
                A(f"v_cmp_gt_u32 s[50:51], s18, v{20+j}")
                A(f"v_add_u32 v24, {j}, v24")
                A(f"v_cmp_eq_u32 s[52:53], s18, v{20+j}")
                A(f"v_cmp_gt_u32 vcc, {KEY}, v24")
                A("s_bcnt1_i32_b64 s3, s[50:51]")
                A("s_add_u32 s48, s48, s3")
                A("s_bcnt1_i32_b64 s3, s[52:53]")
                A("s_add_u32 s49, s49, s3")
                A("s_bcnt1_i32_b64 s3, vcc")
                A(f"s_add_u32 {RANK}, {RANK}, s3")
            A("s_and_b32 s48, s48, 31")
            A("s_xor_b32 s49, s49, 32")
            A("s_or_b32 s48, s48, s49")
            A("s_cmp_eq_u32 s48, 0")
            A(f"s_cselect_b32 s3, {0 if (nofast or gmap) else 256}, 0")
            A(f"s_or_b32 {RANK}, {RANK}, s3")
            A(f"v_mov_b32 v20, {RANK}")
            for j in range(3):
                A(f"v_mov_b32 v{21+j}, 0")
            A(f"v_mov_b32 v24, {LMISC}")
            A("ds_write_b128 v24, v[20:23]")
            A("s_waitcnt lgkmcnt(0)")
            A.label(f"{N}_{tag}_nrk")

    def after(b, tag):
        if tw and b == tw[0]:
            tlb_touch(tag)
        if b == pub_at - 1:
            A("s_cmp_eq_u32 s19, 3")
            A(f"s_cbranch_scc0 {N}_{tag}_nal")
            A(f"buffer_load_dword v20, off, s[{SDB}:{SDB+3}], 0 sc1")
            A.label(f"{N}_{tag}_nal")
        if b == pub_at:
            A("s_cmp_eq_u32 s19, 3")
            A(f"s_cbranch_scc0 {N}_{tag}_npb")
            if relx:
                A("v_readfirstlane_b32 s18, v20")
                A(f"s_lshr_b32 s3, {KEY}, 8")
                A("s_sub_u32 s3, s3, s18")
                A("s_and_b32 s3, s3, 7")
                A("s_add_u32 s3, s3, 1")
                A("v_mov_b32 v24, s3")
                A("s_lshl_b32 s3, s3, 8")
                A(f"s_and_b32 {KEY}, {KEY}, 255")
                A(f"s_or_b32 {KEY}, {KEY}, s3")
            if tsp:
                A(f"s_bfe_u32 s3, {KEY}, 0x60002")
                A(f"s_lshl_b32 s3, s3, {tsp}")
                A(f"s_and_b32 s18, {KEY}, 3")
                A("s_lshl2_add_u32 s3, s18, s3")
            else:
                A(f"s_and_b32 s3, {KEY}, 255")
                A("s_lshl_b32 s3, s3, 2")
            A(f"s_add_u32 s3, s3, {W_TB}")
            A("s_mov_b64 exec, 1")
            A(f"buffer_store_dword v24, off, s[{SWS}:{SWS+3}], s3 sc1")
            A("s_mov_b64 exec, -1")
            A.label(f"{N}_{tag}_npb")

    def p1_compute(ztype):
        tag = "cz" if ztype else "cab"
        A.label(f"{N}_{tag}")
        lg = Cnt(A, "lgkmcnt", 15)
        if ztype:
            tiles = [("z2", i) for i in range(4)] + [("z1", i) for i in range(4)] + [("ab", i) for i in range(3)]
        else:
            tiles = [("ab", i) for i in range(11)]
        def reads(ss):
            st, sub = ss >> 1, ss & 1
            sl = st & 3
            f = FR + FS * (ss & 1)
            r = []
            def mk(s_, t_):
                r.append((s_, t_))
            def wr(w):
                k, i = tiles[w]
                fw = f + 8 + 4 * w
                if k == "ab":
                    if ztype:
                        mk(f"ds_read_b128 {v(fw,4)}, v{6+2*sub+(i&1)} offset:{sl*6144 + i*2048}", (ss, "w", w))
                    elif i < 8:
                        mk(f"ds_read_b128 {v(fw,4)}, v{10+2*sub+(i&1)} offset:{sl*16384 + i*2048}", (ss, "w", w))
                    else:
                        mk(f"ds_read_b128 {v(fw,4)}, v{6+2*sub+(i&1)} offset:{sl*6144 + (i-8)*2048}", (ss, "w", w))
                else:
                    o = sl * 16384 + (8192 if k == "z1" else 0) + sub * 4096
                    mk(f"ds_read_b64_tr_b16 {v(fw,2)}, v{10+i} offset:{o}", (ss, "w", w))
                    mk(f"ds_read_b64_tr_b16 {v(fw+2,2)}, v{10+i} offset:{o+512}", (ss, "w", w))
            mk(f"ds_read_b128 {v(f,4)}, v{2+2*sub} offset:{sl*16384}", (ss, "x", 0))
            wr(0)
            mk(f"ds_read_b128 {v(f+4,4)}, v{3+2*sub} offset:{sl*16384}", (ss, "x", 1))
            for w in range(1, len(tiles)):
                wr(w)
            return r
        def accof(w, T):
            k, i = tiles[w]
            if k == "z1":
                return ACC + 32 + (T * 4 + i) * 4
            return ACC + (w * 2 + T) * 4
        ml = []
        for w in range(len(tiles)):
            ml += [(w, 0), (w, 1)]
            if ztype and w in (0, 4):
                ml.append((w, "c"))
        def mf(ss, idx):
            f = FR + FS * (ss & 1)
            w, T = ml[idx]
            wa = v(f + 8 + 4 * w, 4)
            lg.need((ss, "w", w))
            if T == "c":
                c = CSA + (4 if w else 0)
                A(f"v_mfma_f32_16x16x32_bf16 {v(c,4)}, {v(ONE,4)}, {wa}, {v(c,4)}")
                return
            lg.need((ss, "x", T))
            ac = accof(w, T)
            xa = v(f + 4 * T, 4)
            if tiles[w][0] == "z1":
                A(f"v_mfma_f32_16x16x32_bf16 {v(ac,4)}, {wa}, {xa}, {v(ac,4)}")
            else:
                A(f"v_mfma_f32_16x16x32_bf16 {v(ac,4)}, {xa}, {wa}, {v(ac,4)}")
        nm = len(ml)
        PB_(tag, 4)
        special(0, tag)
        if stamp:
            st2(A, 1)
        A("s_barrier")
        after(0, tag)
        if stamp:
            st2(A, 2)
            lg.all()
        for s_, t_ in reads(0):
            A(s_); lg.op(t_)
        for ss in range(16):
            nxt = reads(ss + 1) if ss < 15 else []
            first = 0
            if ss & 1:
                first = 4
            ri = 0
            for i in range(nm):
                mf(ss, i)
                if (ss & 1) and i == 3 and ss < 15:
                    lg.all()
                    special((ss >> 1) + 1, tag)
                    A("s_barrier")
                    after((ss >> 1) + 1, tag)
                    if stamp:
                        st2(A, 2 + (ss >> 1) + 1)
                        lg.all()
                if i >= first - 1:
                    slots = nm - 1 - i
                    rem = len(nxt) - ri
                    k = 1 if rem <= slots else rem - slots
                    k = min(max(k, 1), 2) if slots > 0 else rem
                    for _ in range(min(k, rem)):
                        A(nxt[ri][0]); lg.op(nxt[ri][1]); ri += 1
            assert ri == len(nxt)
        if stamp:
            st2(A, 10)
        E(1)
        PE_()
        PB_("e" + tag)
        RQ = FR
        CZ = 48
        AC = 56
        ZR = 80
        ZC = 84
        TT = 100
        SS = 116
        nab = 3 if ztype else 11
        w0 = 8 if ztype else 0
        A("s_lshl_b32 s3, s19, 7")
        A(f"s_add_u32 s3, s3, {LRM}")
        A("v_lshl_add_u32 v28, v27, 5, s3")
        A(f"v_lshlrev_b32 v25, 2, v26")
        if ztype:
            A("s_lshl_b32 s18, s19, 6")
            A(f"s_add_u32 s18, s18, {LCSW}")
            A("v_add_u32 v24, s18, v25")
            A("v_lshl_add_u32 v23, v27, 4, s18")
            A("v_lshrrev_b32 v22, 2, v26")
            A("v_and_b32 v21, 3, v26")
            A("v_lshl_add_u32 v22, v22, 3, v21")
            A("v_lshl_add_u32 v22, v22, 2, s3")
            A(f"v_mov_b32 v30, {f32(C1)}")
            A(f"v_mov_b32 v31, {f32(C0)}")
            A(f"ds_write_b32 v24, v{CSA}")
            A(f"ds_write_b32 v24, v{CSA+4} offset:256")
        A(f"s_lshl_b32 s48, {RB}, 2")
        A("s_add_u32 s48, s48, s19")
        A("s_lshl_b32 s49, s48, 13")
        A(f"s_mul_i32 s50, {ISB}, {WS_B - WS_A}")
        A("s_add_u32 s50, s50, s49")
        A(f"s_add_u32 s50, s50, {WS_A}")
        A("s_waitcnt lgkmcnt(0)")
        A("s_barrier")
        E(2)
        if est:
            A("s_waitcnt lgkmcnt(0)")
        for h in range(2):
            A(f"ds_read_b128 {v(RQ+4*h,4)}, v28 offset:{h*16}")
            A(f"ds_read_b128 {v(RQ+8+4*h,4)}, v28 offset:{512+h*16}")
        def czr():
            for i in range(4):
                A(f"v_xor_b32 v21, {i*64}, v24")
                A(f"ds_read_b32 v{CZ+2*i}, v21")
        if ztype and not ey:
            czr()
        A(f"v_add_u32 v25, {LCSD}, v25")
        for i in range(nab):
            A(f"ds_read_b32 v{AC+2*i}, v25 offset:{i*64}")
        if ztype and ey:
            czr()
        if ztype:
            for T in range(2):
                A(f"ds_read2_b32 {v(ZR+2*T,2)}, v22 offset0:{4*T} offset1:{128+4*T}")
            for i in range(4):
                A(f"v_xor_b32 v21, {i*64}, v23")
                A(f"ds_read_b128 {v(ZC+4*i,4)}, v21 offset:256")

        def fold(ac, cs, RR=RQ):
            for d in range(4):
                A(f"v_pk_fma_f32 {v(ac+2*d,2)}, {v(RQ+8+2*d,2)}, {v(cs,2)}, {v(ac+2*d,2)} op_sel_hi:[1,0,1] neg_lo:[0,1,0] neg_hi:[0,1,0]")
            for d in range(4):
                A(f"v_pk_mul_f32 {v(ac+2*d,2)}, {v(ac+2*d,2)}, {v(RR+2*d,2)}")
        def gelu(ac, tm):
            pr = [ac, ac + 2, ac + 4, ac + 6]
            for i, r in enumerate(pr):
                A(f"v_pk_mul_f32 {v(tm+2*i,2)}, {v(r,2)}, {v(r,2)}")
            for i, r in enumerate(pr):
                A(f"v_pk_fma_f32 {v(tm+2*i,2)}, {v(tm+2*i,2)}, v[30:31], v[30:31] op_sel:[0,0,1] op_sel_hi:[1,0,1]")
            for i, r in enumerate(pr):
                A(f"v_pk_mul_f32 {v(tm+2*i,2)}, {v(tm+2*i,2)}, {v(r,2)}")
            for i in range(8):
                A(f"v_exp_f32 v{tm+i}, v{tm+i}")
            for i, r in enumerate(pr):
                A(f"v_pk_add_f32 {v(tm+2*i,2)}, {v(tm+2*i,2)}, 1.0 op_sel_hi:[1,0]")
            for i in range(8):
                A(f"v_rcp_f32 v{tm+i}, v{tm+i}")
            for i, r in enumerate(pr):
                A(f"v_pk_mul_f32 {v(r,2)}, {v(tm+2*i,2)}, {v(r,2)}")
        def cvt(ac):
            for d in range(4):
                A(f"v_cvt_pk_bf16_f32 v{ac+d}, v{ac+2*d}, v{ac+2*d+1}")
        RA = SS if ey else RQ
        def aflag():
            A("s_mov_b64 exec, 1")
            A(f"buffer_store_dword v{ONE}, v253, s[{SWS}:{SWS+3}], 0 offen offset:128 sc1")
            A("s_mov_b64 exec, -1")
        def tick(n=1):
            A(f"v_mov_b32 v21, {LMISC + 12}")
            A(f"v_mov_b32 v20, {n}")
            A("s_mov_b64 exec, 1")
            A("ds_add_u32 v21, v20")
            A("s_mov_b64 exec, -1")
        def ab_epi():
            A(f"s_lshl_b32 s3, {ISB}, 31")
            for i in range(8):
                A(f"v_xor_b32 v{RA+i}, s3, v{RQ+i}")
            for i in range(nab):
                ac = accof(w0 + i, 0)
                A(f"s_add_u32 s3, {U0}, {i}")
                A("s_lshr_b32 s18, s3, 3")
                A("s_lshl_b32 s18, s18, 19")
                A("s_and_b32 s3, s3, 7")
                A("s_lshl_b32 s3, s3, 10")
                A("s_add_u32 s3, s3, s18")
                A("s_add_u32 s3, s3, s50")
                fold(ac, AC + 2 * i, RA)
                cvt(ac)
                if "A" not in dbgm:
                    A(f"buffer_store_dwordx4 {v(ac,4)}, v14, s[{SWS}:{SWS+3}], s3 offen {st_aux}")
        def flag():
            L = f"{N}_{tag}_fl"
            A("ds_add_rtn_u32 v20, v21, v20")
            A("s_waitcnt lgkmcnt(0)")
            A("v_readfirstlane_b32 s3, v20")
            if not pull1:
                A(f"s_mov_b32 exec_lo, {'0x3ffffff' if ztype else '0xffff'}")
            A("s_cmp_eq_u32 s3, 3")
            A(f"s_cbranch_scc0 {L}")
            A(f"buffer_store_dword v{ONE}, v252, s[{SWS}:{SWS+3}], 0 offen sc1")
            A.label(L)
            A("s_mov_b64 exec, -1")
        def flag_pre():
            A(f"v_mov_b32 v21, {LMISC + 8}")
            A("v_mov_b32 v20, 1")
            A("s_mov_b64 exec, 1")
        if not ztype:
            A("s_waitcnt lgkmcnt(0)")
            A("s_nop 4")
            ab_epi()
            if ey:
                tick(2)
            flag_pre()
            A("s_waitcnt vmcnt(0)")
            flag()
            if ey:
                aflag()
            PE_()
            return
        A("s_mov_b32 s94, 0xaaaaaaaa")
        A("s_mov_b32 s95, 0xaaaaaaaa")
        A("s_mov_b32 s96, 0xcccccccc")
        A("s_mov_b32 s97, 0xcccccccc")
        if ey:
            A("s_waitcnt lgkmcnt(10)")
            ab_epi()
        A(f"s_waitcnt lgkmcnt({6 if ey else nab + 6})")
        for i in range(4):
            if ey and i == eya:
                A("s_waitcnt vmcnt(0)")
                aflag()
            ac = accof(i, 0)
            fold(ac, CZ + 2 * i)
            gelu(ac, TT + (i & 1) * 8)
            for d in range(4):
                if i == 0:
                    A(f"v_pk_mul_f32 {v(SS+8+2*d,2)}, {v(ac+2*d,2)}, {v(ac+2*d,2)}")
                else:
                    A(f"v_pk_fma_f32 {v(SS+8+2*d,2)}, {v(ac+2*d,2)}, {v(ac+2*d,2)}, {v(SS+8+2*d,2)}")
                if i == 1:
                    A(f"v_pk_add_f32 {v(SS+2*d,2)}, {v(accof(0,0)+2*d,2)}, {v(ac+2*d,2)}")
                elif i > 1:
                    A(f"v_pk_add_f32 {v(SS+2*d,2)}, {v(SS+2*d,2)}, {v(ac+2*d,2)}")
        A("s_nop 1")
        for i in range(8):
            A(f"v_add_f32_dpp v{SS+i}, v{SS+i}, v{SS+i} row_ror:8 row_mask:0xf bank_mask:0x3")
        for i in range(8):
            A(f"v_add_f32_dpp v{SS+i}, v{SS+8+i}, v{SS+8+i} row_ror:8 row_mask:0xf bank_mask:0xc")
        for i in range(4):
            A(f"v_add_f32_dpp v{SS+i}, v{SS+i}, v{SS+i} row_half_mirror row_mask:0xf bank_mask:0x5")
        for i in range(4):
            A(f"v_add_f32_dpp v{SS+i}, v{SS+4+i}, v{SS+4+i} row_half_mirror row_mask:0xf bank_mask:0xa")
        for dpp in ("quad_perm:[1,0,3,2]", "quad_perm:[2,3,0,1]"):
            for i in range(4):
                A(f"v_add_f32_dpp v{SS+i}, v{SS+i}, v{SS+i} {dpp} row_mask:0xf bank_mask:0xf")
        A(f"v_cndmask_b32 v{SS}, v{SS}, v{SS+1}, s[94:95]")
        A(f"v_cndmask_b32 v{SS+2}, v{SS+2}, v{SS+3}, s[94:95]")
        A(f"v_cndmask_b32 v{SS}, v{SS}, v{SS+2}, s[96:97]")
        A("v_lshlrev_b32 v28, 2, v1")
        A("s_lshl_b32 s3, s19, 8")
        A(f"v_or_b32 v{SS}, 1, v{SS}")
        A("v_add_u32 v28, s3, v28")
        A(f"buffer_store_dword v{SS}, v28, s[{SWS}:{SWS+3}], {STO} offen sc1")
        if stamp:
            st2(A, 11)
        E(3)
        A("s_waitcnt lgkmcnt(0)")
        if not ey:
            ab_epi()
        elif eya > 3:
            A("s_waitcnt vmcnt(1)")
            aflag()
        E(4)
        A("s_mul_i32 s52, s48, 56")
        A(f"s_lshl_b32 s3, {CG}, 1")
        A("s_add_u32 s52, s52, s3")
        A("s_lshr_b32 s3, s19, 1")
        A("s_add_u32 s53, s52, s3")
        A("s_xor_b32 s3, s3, 1")
        A("s_add_u32 s54, s52, s3")
        A("s_lshl_b32 s53, s53, 10")
        A("s_lshl_b32 s54, s54, 10")
        A(f"s_add_u32 s53, s53, {W_Z1}")
        A(f"s_add_u32 s54, s54, {W_Z1}")
        A(f"v_add_u32 v22, 28672, v14")
        if z1cp == 2:
            A(f"v_add_u32 v23, {4*MB}, v14")
            A(f"v_add_u32 v24, {4*MB}, v22")
        A(f"s_lshl_b32 s56, {RB}, 14")
        A(f"s_add_u32 s56, s56, {W_ST}")
        for i in range(1, 4):
            A(f"s_add_u32 s{56+i}, s56, {4096*i}")
        PT, PT2 = 232, 116
        vm = Cnt(A, "vmcnt", 63)
        def polls(pt=PT):
            for c in range(14):
                A(f"buffer_load_dword v{pt+c}, v28, s[{SWS}:{SWS+3}], s{56+c//4} offen offset:{(c%4)*1024} sc1")
                vm.op(pt)
        for c in range(14):
            A(f"v_mov_b32 v{PT+c}, 0")
        A(f"s_lshr_b32 s52, {CG}, 1")
        A("s_lshl_b32 s52, s52, 19")
        A(f"s_and_b32 s3, {CG}, 1")
        A("s_lshl_b32 s3, s3, 12")
        A("s_add_u32 s52, s52, s3")
        A("s_add_u32 s52, s52, s49")
        A(f"s_add_u32 s52, s52, {WS_Z2}")
        A(f"s_mov_b32 s18, {SPIN}")
        A("s_and_b32 s3, s19, 1")
        A("s_cmp_eq_u32 s3, 0")
        for g in range(5):
            if g == pl_at[0]:
                E(5)
                polls()
            if ey and g == ey:
                tick()
            if len(pl_at) > 1 and g == pl_at[1]:
                polls(PT2)
            if g == 4:
                break
            T, e = g >> 1, g & 1
            ac = ACC + 32 + g * 8
            rm = v(ZR + 2 * T, 2)
            for i in range(4):
                r = ac + 2 * i
                cs = ZC + 4 * (2 * e + (i >> 1)) + 2 * (i & 1)
                A(f"v_pk_fma_f32 {v(r,2)}, {v(cs,2)}, {rm}, {v(r,2)} op_sel:[0,1,0] op_sel_hi:[1,1,1] neg_lo:[0,1,0] neg_hi:[0,1,0]")
            for i in range(4):
                r = ac + 2 * i
                A(f"v_pk_mul_f32 {v(r,2)}, {v(r,2)}, {rm} op_sel_hi:[1,0]")
            gelu(ac, TT + (g & 1) * 8)
            cvt(ac)
            A(f"s_cbranch_scc1 {N}_nsw{g}")
            A(f"v_swap_b32 v{ac}, v{ac+2}")
            A(f"v_swap_b32 v{ac+1}, v{ac+3}")
            A.label(f"{N}_nsw{g}")
            if "Z" in dbgm:
                continue
            A(f"buffer_store_dwordx4 {v(ac,4)}, {'v22' if T else 'v14'}, s[{SWS}:{SWS+3}], s{53+e} offen {st_aux if 'z' not in dbgm else ''}")
            vm.op("z1")
            if z1cp == 2:
                A(f"buffer_store_dwordx4 {v(ac,4)}, {'v24' if T else 'v23'}, s[{SWS}:{SWS+3}], s{53+e} offen {st_aux}")
                vm.op("z1")
        A("s_lshl_b32 s3, s19, 10")
        A("v_xor_b32 v22, s3, v14")
        E(6)
        vm.need(PT)
        E(7)
        def pcheck(lab_ok):
            A(f"v_and_b32 v21, v{PT}, v{PT+1}")
            for c in range(2, 14, 2):
                A(f"v_bitop3_b32 v21, v21, v{PT+c}, v{PT+c+1} bitop3:0x80")
            A("v_and_b32 v21, 1, v21")
            A("v_cmp_eq_u32 vcc, 0, v21")
            A("s_sub_u32 s18, s18, 1")
            A("s_cmp_eq_u64 vcc, 0")
            A(f"s_cbranch_scc1 {lab_ok}")
        if len(pl_at) > 1:
            pcheck(f"{N}_pok")
            A("s_waitcnt vmcnt(0)")
            for c in range(0, 14, 2):
                A(f"v_pk_mov_b32 {v(PT+c,2)}, {v(PT2+c,2)}, {v(PT2+c,2)} op_sel:[0,1]")
        A(f"s_branch {N}_pchk")
        A.label(f"{N}_poll")
        A("s_waitcnt vmcnt(0)")
        polls()
        A("s_waitcnt vmcnt(0)")
        A.label(f"{N}_pchk")
        pcheck(f"{N}_pok")
        A("s_cmp_gt_i32 s18, 0")
        A(f"s_cbranch_scc1 {N}_poll")
        A.label(f"{N}_pok")
        if stamp:
            st2(A, 12)
        E(8)
        if est:
            A(f"s_sub_u32 s{SREG[12]}, {SPIN}, s18")
            A(f"s_mul_i32 s{SREG[12]}, s{SREG[12]}, 100")
            A(f"s_add_u32 s{SREG[12]}, s{SREG[12]}, s{SREG[0]}")
        for c in range(3):
            A(f"v_pk_add_f32 {v(PT+2*c,2)}, {v(PT+2*c,2)}, {v(PT+6+2*c,2)}")
        A(f"v_pk_add_f32 {v(PT,2)}, {v(PT,2)}, {v(PT+12,2)}")
        A(f"v_pk_add_f32 {v(PT+2,2)}, {v(PT+2,2)}, {v(PT+4,2)}")
        A(f"v_pk_add_f32 {v(PT,2)}, {v(PT,2)}, {v(PT+2,2)}")
        inv = f32(1.0 / 896)
        A(f"v_add_f32 v{PT}, v{PT}, v{PT+1}")
        A(f"v_mul_f32 v{PT}, {inv}, v{PT}")
        A("s_nop 1")
        A(f"v_mov_b32_dpp v{PT+1}, v{PT} row_ror:8 row_mask:0xf bank_mask:0xf")
        A(f"v_fma_f32 v{PT+1}, -v{PT}, v{PT}, v{PT+1}")
        A(f"v_add_f32 v{PT+1}, {EPS}, v{PT+1}")
        A(f"v_rsq_f32 v{PT+1}, v{PT+1}")
        A("s_nop 0")
        A(f"v_mul_f32 v{PT}, -v{PT}, v{PT+1}")
        A("s_nop 0")
        for i in range(8):
            A(f"v_mov_b32_dpp v{RQ+i}, v{PT+1} row_newbcast:{i} row_mask:0xf bank_mask:0xf")
        for i in range(8):
            A(f"v_mov_b32_dpp v{RQ+8+i}, v{PT} row_newbcast:{i} row_mask:0xf bank_mask:0xf")
        for i in range(4):
            ac = accof(i, 0)
            for d in range(4):
                A(f"v_pk_fma_f32 {v(ac+2*d,2)}, {v(ac+2*d,2)}, {v(RQ+2*d,2)}, {v(RQ+8+2*d,2)}")
            cvt(ac)
            if i:
                A(f"v_xor_b32 v{22+i}, {i*1024}, v22")
            A(f"buffer_store_dwordx4 {v(ac,4)}, v{22+i}, s[{SWS}:{SWS+3}], s52 offen {st_aux}")
        E(9)
        if ey:
            tick()
        flag_pre()
        A("s_waitcnt vmcnt(0)")
        E(10)
        flag()
        E(11)
        A(f"s_branch {N}_c_p2")
        PE_()

    p1_compute(True)
    p1_compute(False)
    A.label(f"{N}_c_p2")
    if stamp or est:
        st2(A, 13)
        st2_flush(A, range(1, 14), "s19", SWS)
    if "2" not in phases:
        A.label(L_exit)
        A("s_endpgm")
        return dict(name=name, vgpr=256, sgpr=102, grid=256, block=512, lds=LDS_TOTAL)
    PB_("c2")
    G(1)
    A("s_load_dwordx2 s[96:97], s[0:1], 80")
    A(f"v_mov_b32 v8, {LMISC}")
    A("ds_read_b32 v9, v8")
    FR2, AC2, BSP, PK = 16, 112, 240, 176
    WI, WJ, FL2, CN2, PT_, PO_ = "s56", "s57", "s68", "s69", "s54", "s55"
    A(f"s_and_b32 {WI}, s19, 1")
    A(f"s_lshr_b32 {WJ}, s19, 1")
    A("v_bfe_u32 v17, v1, 1, 3")
    A("v_xor_b32 v16, v27, v17")
    A(f"s_lshl_b32 s3, {WJ}, 16")
    A("v_lshlrev_b32 v18, 7, v26")
    A("v_add_u32 v18, s3, v18")
    A("v_lshl_add_u32 v2, v16, 4, v18")
    A("v_xor_b32 v3, 64, v2")
    A(f"s_lshl_b32 s18, {WI}, 11")
    A("s_add_u32 s3, s3, s18")
    A("v_add_u32 v6, s3, v14")
    A(f"s_lshl_b32 s3, {WI}, 12")
    A("v_add_u32 v5, s3, v14")
    A(f"v_add_u32 v4, {PSL[0]}, v5")
    A(f"s_mov_b32 {PT_}, {hex(sum((PSL[i] >> 12) << (8*i) for i in range(4)))}")
    A(f"s_mov_b32 {PO_}, 0x80008")
    A(f"s_lshl_b32 s3, {WJ}, 8")
    A(f"s_add_u32 s3, s3, {LBS}")
    A("v_lshl_add_u32 v7, v26, 1, s3")
    for jt in range(8):
        A(f"ds_read_u16_d16_hi v{BSP+jt}, v7 offset:{jt*32}")
    A("s_waitcnt lgkmcnt(0)")
    A(f"v_readfirstlane_b32 {RANK}, v9")
    srd(A, SO, "s96", "s97", 2048 * 1024)
    A(f"s_and_b32 {RANK}, {RANK}, 255")
    p2_decode()
    A(f"s_cmp_eq_u32 {TY}, 3")
    A(f"s_cbranch_scc1 {N}_csp")
    A(f"s_lshl1_add_u32 s3, {TY}, {KH}")
    A("s_cmp_eq_u32 s3, 4")
    A("s_cselect_b32 s3, 0xffff0000, 0")
    for jt in range(8):
        A(f"v_and_b32 v{AC2+16*jt}, s3, v{BSP+jt}")
        A(f"v_and_b32 v{AC2+16*jt+1}, s3, v{BSP+jt}")
    for jt in range(8):
        for i in range(1, 8):
            A(f"v_pk_mov_b32 {v(AC2+16*jt+2*i,2)}, {v(AC2+16*jt,2)}, {v(AC2+16*jt,2)}")
    if pull2:
        A(f"s_lshl2_add_u32 {FL2}, {JOB}, s19")
        A(f"s_lshl_b32 {FL2}, {FL2}, 7")
        A(f"s_add_u32 {FL2}, {FL2}, {W_F2}")
        A(f"s_lshl1_add_u32 s49, {TY}, {KH}")
        A("s_mov_b32 s67, 1")
    else:
        A(f"s_lshl1_add_u32 {FL2}, {TT}, {WJ}")
        A(f"s_lshl_b32 {FL2}, {FL2}, {f2s+4}")
        A(f"s_lshl1_add_u32 s3, {NT}, {WI}")
        A(f"s_lshl_b32 s18, s3, {f2s}")
        A(f"s_lshl1_add_u32 s49, {TY}, {KH}")
        A("s_lshl2_add_u32 s18, s49, s18")
        A("s_add_u32 s18, s18, 112")
        A(f"s_mul_i32 s48, {KH}, 14")
        A("s_add_u32 s3, s3, s48")
        A("s_lshl_b32 s3, s3, 2")
        A(f"s_cmp_eq_u32 {TY}, 2")
        A("s_cselect_b32 s3, s3, s18")
        A("s_mov_b32 s67, 0x101")
        A("s_cselect_b32 s67, 0xffff, s67")
        A(f"s_add_u32 {FL2}, {FL2}, s3")
        A(f"s_add_u32 {FL2}, {FL2}, {W_F2}")
    assert yps >= 128 * ynb * KB and hps >= 128 * hnb * KB and W_Y + 4 * yps <= W_H and W_H + 2 * hps <= WS_TOT2 and z1cp != 2
    A(f"s_mul_i32 s49, s49, {yps}")
    A(f"s_add_u32 s49, s49, {W_Y}")
    A(f"s_mul_i32 s3, {KH}, {hps}")
    A(f"s_add_u32 s3, s3, {W_H}")
    A(f"s_cmp_eq_u32 {TY}, 2")
    A("s_cselect_b32 s49, s3, s49")
    A(f"s_cselect_b32 s18, {hnb}, {ynb}")
    A(f"s_lshl1_add_u32 s48, {TT}, {WJ}")
    A("s_lshl3_add_u32 s48, s48, 7")
    A("s_mul_i32 s48, s48, s18")
    A(f"s_lshl2_add_u32 s48, {NT}, s48")
    A(f"s_lshl1_add_u32 s48, {WI}, s48")
    A("s_lshl_b32 s48, s48, 10")
    A("s_add_u32 s48, s48, s49")
    A("s_lshl_b32 s49, s18, 10")
    A(f"s_mov_b32 {CN2}, 5")
    if pst:
        if pst == 1:
            A("s_mov_b64 exec, 0xff")
        A("s_mov_b32 s3, s48")
        for jt in range(8):
            if pst < 3 or jt in (0, 7):
                A(f"buffer_store_dwordx4 {v(AC2,4)}, v14, s[{SWS}:{SWS+3}], s3 offen sc1")
            A("s_sub_u32 s3, s3, s49")
        A("s_mov_b64 exec, -1")
    order = [("P", 0)] + [("Q", i) for i in range(8)] + [("P", 1), ("P", 2), ("P", 3)]
    def read(sl, sub, n):
        f = FR2 + 48 * sub
        k, i = order[n]
        if k == "P":
            A(f"ds_read_b128 {v(f+4*i,4)}, v4 offset:{sub*8192 + i*1024}")
        else:
            A(f"ds_read_b128 {v(f+16+4*i,4)}, v{2+sub} offset:{sl*16384 + i*2048}")
    def mfma(sub, idx):
        f = FR2 + 48 * sub
        it, jt = idx >> 3, idx & 7
        acc = AC2 + (jt * 4 + it) * 4
        A(f"v_mfma_f32_16x16x32_bf16 {v(acc,4)}, {v(f+4*it,4)}, {v(f+16+4*jt,4)}, {v(acc,4)}")
    def z1read(b, dst):
        jt, p_ = b >> 1, b & 1
        A(f"ds_read_b128 {v(dst,4)}, v6 offset:{(1 if jt >= 4 else 2)*16384 + (jt&3)*4096 + p_*1024}")
    def stage_h(sl, last=False):
        rl = [0, 1, 2, 3, 4, 9, 10, 11]
        ml_ = [it * 8 + jt for it in range(4) for jt in range(4)]
        A("s_waitcnt lgkmcnt(0)")
        for i in range(16):
            mfma(0, ml_[i])
            if i < 8:
                read(sl, 1, rl[i])
            if i == 10 and not last:
                A(f"s_bfe_u32 s3, {PT_}, {PO_}")
                A(f"s_add_u32 {PO_}, {PO_}, 8")
                A("v_lshl_add_u32 v4, s3, 12, v5")
        A("s_waitcnt lgkmcnt(0)")
        mfma(1, ml_[0])
        mfma(1, ml_[1])
        A("s_barrier")
        for i in range(2, 16):
            mfma(1, ml_[i])
            if i - 2 < 8 and not last:
                read((sl + 1) % 3, 0, rl[i - 2])
            if last and i - 2 < 8:
                b = 15 - (i - 2)
                z1read(b, FR2 + 4 * (b - 8))
    def stage(sl, last=False):
        if "h" in dbgm:
            return stage_h(sl, last)
        A("s_waitcnt lgkmcnt(0)")
        for i in range(32):
            mfma(0, i)
            if i % 2 == 0 and i // 2 < 12:
                read(sl, 1, i // 2)
            if i == 26 and not last:
                A(f"s_bfe_u32 s3, {PT_}, {PO_}")
                A(f"s_add_u32 {PO_}, {PO_}, 8")
                A("v_lshl_add_u32 v4, s3, 12, v5")
        A("s_waitcnt lgkmcnt(0)")
        mfma(1, 0)
        mfma(1, 1)
        A("s_barrier")
        for i in range(2, 32):
            mfma(1, i)
            if i % 2 == 0 and (i - 2) // 2 < 12 and not last:
                read((sl + 1) % 3, 0, (i - 2) // 2)
            if last and i % 2 == 0 and (i - 2) // 2 < 8:
                b = 15 - (i - 2) // 2
                z1read(b, FR2 + 4 * (b - 8))
    G(2)
    if warm:
        k_, slp, ext = warm
        def dm(n_):
            for i in range(n_):
                A(f"v_mfma_f32_16x16x32_bf16 {v(16+4*(i%8),4)}, {v(48+4*(i%4),4)}, {v(64+4*(i%8),4)}, {v(16+4*(i%8),4)}")
        A("s_mov_b32 s18, 200")
        A.label(f"{N}_wm0")
        A("ds_read_b32 v10, v8 offset:4")
        dm(k_)
        if slp:
            A(f"s_sleep {slp}")
        A("s_sub_u32 s18, s18, 1")
        A("s_waitcnt lgkmcnt(0)")
        A("v_readfirstlane_b32 s3, v10")
        A("s_cmp_eq_u32 s3, 2")
        A(f"s_cbranch_scc1 {N}_wm1")
        A("s_cmp_gt_i32 s18, 0")
        A(f"s_cbranch_scc1 {N}_wm0")
        A.label(f"{N}_wm1")
        dm(ext)
        A("s_nop 7")
        A("s_nop 7")
    A("s_barrier")
    G(3)
    for n in range(12):
        read(0, 0, n)
    A.label(f"{N}_cloop")
    for sl in range(3):
        stage(sl)
    A(f"s_sub_u32 {CN2}, {CN2}, 1")
    if gst:
        for k, c in ((10, 4), (11, 2), (12, 1)):
            A(f"s_cmp_lg_u32 {CN2}, {c}")
            A(f"s_cbranch_scc1 {N}_gs{k}")
            G(k)
            A("s_waitcnt lgkmcnt(0)")
            A.label(f"{N}_gs{k}")
    A(f"s_cmp_lg_u32 {CN2}, 0")
    A(f"s_cbranch_scc1 {N}_cloop")
    A.label(f"{N}_late")
    stage(0, last=True)
    G(4)
    for _ in range(dly2):
        A("s_sleep 16")
    A(f"s_cmp_eq_u32 {TY}, 2")
    A(f"s_cbranch_scc1 {N}_epg")
    PE_()
    PB_("ey")
    A("s_nop 7")
    def ep_store(b, aux=st2_aux):
        A(f"buffer_store_dwordx4 {v(PK+4*b,4)}, v14, s[{SWS}:{SWS+3}], s48 offen offset:{(b&1)*1024} {aux}")
        if b & 1 == 0 and b:
            A("s_sub_u32 s48, s48, s49")
    for b in range(15, -1, -1):
        acc = AC2 + 8 * b
        for d in range(3, -1, -1):
            A(f"v_cvt_pk_bf16_f32 v{PK+4*b+d}, v{acc+2*d}, v{acc+2*d+1}")
        if "Y" not in dbgm and not ("y" in dbgm and b < 8):
            ep_store(b)
    A(f"s_branch {N}_epx")
    PE_()
    A.label(f"{N}_epg")
    PB_("eg")
    for b in range(7, -1, -1):
        z1read(b, 48 + 4 * b)
    U = 96
    for b in range(15, -1, -1):
        acc = AC2 + 8 * b
        z = FR2 + 4 * (b - 8) if b >= 8 else 48 + 4 * b
        if b == 15:
            A("s_waitcnt lgkmcnt(8)")
        if b == 7:
            A("s_waitcnt lgkmcnt(0)")
        u0_ = U + (b & 1) * 8
        for d in range(4):
            u = u0_ + d * 2
            A(f"v_lshlrev_b32 v{u}, 16, v{z+d}")
            A(f"v_and_b32 v{u+1}, 0xffff0000, v{z+d}")
        for d in range(4):
            u = u0_ + d * 2
            A(f"v_pk_mul_f32 {v(acc+2*d,2)}, {v(acc+2*d,2)}, {v(u,2)}")
        for d in range(3, -1, -1):
            A(f"v_cvt_pk_bf16_f32 v{PK+4*b+d}, v{acc+2*d}, v{acc+2*d+1}")
        if "H" not in dbgm:
            ep_store(b)
    PE_()
    A.label(f"{N}_epx")
    PB_("p3")
    A(f"v_lshlrev_b32 v2, {f2s}, v1")
    A("v_mov_b32 v3, 1")
    A("s_mov_b32 exec_lo, s67")
    A("s_mov_b32 exec_hi, 0")
    G(6)
    A("s_waitcnt vmcnt(8)")
    G(7)
    A("s_waitcnt vmcnt(0)")
    A(f"buffer_store_dword v3, v2, s[{SWS}:{SWS+3}], {FL2} offen {faux3}")
    A("s_mov_b64 exec, -1")
    G(5)
    if wbl == 1:
        A(f"s_cmp_eq_u32 {TY}, 2")
        A(f"s_cbranch_scc0 {N}_p3c")
        A("s_cmp_eq_u32 s19, 0")
        A(f"s_cbranch_scc0 {N}_p3c")
        A("buffer_wbl2 sc1")
    A(f"s_branch {N}_p3c")
    A.label(f"{N}_csp")
    A("s_barrier")

    TB, DB = "s56", "s57"
    def p3_common():
        if p3perm:
            A(f"s_lshr_b32 s3, {RANK}, 5")
            A("s_lshl_b32 s3, s3, 2")
            A(f"s_lshr_b32 s3, {hex(sum(p << (4*i) for i, p in enumerate(p3perm)))}, s3")
            A("s_and_b32 s3, s3, 7")
            A("s_lshl_b32 s3, s3, 5")
            A(f"s_and_b32 {RANK}, {RANK}, 31")
            A(f"s_or_b32 {RANK}, {RANK}, s3")
        A(f"s_lshr_b32 {TB}, {RANK}, 3")
        A(f"s_and_b32 {DB}, {RANK}, 7")
        A("v_and_b32 v4, 7, v0")
        A("v_lshrrev_b32 v5, 3, v0")
        A("v_lshlrev_b32 v6, 10, v5")
        A("v_lshl_add_u32 v6, v4, 4, v6")
        A(f"s_lshl_b32 s60, {TB}, 16")
        A(f"s_lshl_b32 s3, {DB}, 7")
        A("s_add_u32 s60, s60, s3")
        A(f"buffer_load_dwordx4 {v(XR,4)}, v6, s[{SX}:{SX+3}], s60 offen")
        A("v_and_b32 v3, 15, v5")
        A("v_lshlrev_b32 v4, 1, v4")
        A("v_xor_b32 v4, v4, v3")
        A("v_lshlrev_b32 v4, 4, v4")
        A("v_lshl_add_u32 v4, v5, 8, v4")
        A(f"v_add_u32 v2, {RBUF[0]}, v4")
        A("v_xor_b32 v3, 16, v2")
        A(f"v_add_u32 v4, {RBUF[2]}, v4")
        A("v_xor_b32 v5, 16, v4")
        A("v_and_b32 v12, 15, v1")
        A("v_lshrrev_b32 v13, 4, v1")
        A("v_xor_b32 v13, v13, v12")
        A("v_lshlrev_b32 v13, 4, v13")
        A("v_lshl_add_u32 v7, v12, 8, v13")
        if pull2:
            A(f"s_bfe_u32 s61, {TB}, 0x10001")
            A("s_lshl_b32 s61, s61, 8")
        else:
            A(f"s_lshl_b32 s61, {RANK}, {f2s}")
        A(f"s_add_u32 s61, s61, {W_F2}")
        A(f"s_mov_b32 s18, {SPIN}")
    def p3_poll(tag):
        A.label(f"{N}_{tag}p")
        A(f"buffer_load_dword v13, v12, s[{SWS}:{SWS+3}], s61 offen {paux3}")
        A.label(f"{N}_{tag}c")
        A("s_waitcnt vmcnt(0)")
        A("v_cmp_eq_u32 vcc, 0, v13")
        A("s_sub_u32 s18, s18, 1")
        if pull2 and tag == "p3y":
            A("s_bitcmp0_b32 vcc_lo, 8")
        else:
            A("s_cmp_eq_u32 vcc_hi, 0" if tag == "p3y" else "s_cmp_eq_u64 vcc, 0")
        A(f"s_cbranch_scc1 {N}_{tag}w")
        ps = psleep if psleep3 is None else psleep3[tag == "p3l"]
        if ps:
            A(f"s_sleep {ps}")
        A("s_cmp_gt_i32 s18, 0")
        A(f"s_cbranch_scc1 {N}_{tag}p")
        A.label(f"{N}_{tag}w")
    A.label(f"{N}_p3c")
    p3_common()
    G(8)
    A(f"s_branch {N}_p3f")
    A.label(f"{N}_p3l")
    p3_common()
    A(f"s_mul_i32 s62, {W}, 7")
    A("s_lshr_b32 s3, s62, 1")
    A("v_bfe_u32 v12, v1, 2, 1")
    A("v_mul_u32_u24 v12, 14, v12")
    A("v_and_b32 v13, 3, v1")
    A("v_add3_u32 v12, v12, v13, s3")
    if pull2:
        A("v_and_b32 v13, 1, v12")
        A("v_lshrrev_b32 v12, 1, v12")
        A("v_lshl_add_u32 v12, v12, 2, v13")
        A(f"s_lshr_b32 s3, {TB}, 2")
        A("s_lshl_b32 s3, s3, 7")
        A("s_add_u32 s3, s3, 64")
        A("v_add_u32 v12, s3, v12")
        A("v_lshlrev_b32 v12, 7, v12")
    else:
        A("v_lshlrev_b32 v12, 2, v12")
    A(f"s_mul_i32 s48, {TB}, {4*hnb}")
    A("s_add_u32 s48, s48, s62")
    A("s_lshl_b32 s48, s48, 10")
    A(f"s_add_u32 s48, s48, {W_H}")
    for i in range(1, 8):
        A(f"s_add_u32 s{48+i}, s48, {(i>>2)*hps + (i&3)*hnb*1024}")
    A(f"s_lshl_b32 s3, {W}, 3")
    A(f"s_lshr_b32 s3, {hex(sum((RBUF[i] >> 12) << (8*i) for i in range(4)))}, s3")
    A("s_and_b32 s3, s3, 255")
    A("v_lshl_add_u32 v7, s3, 12, v7")
    A(f"s_mul_i32 s90, {TB}, {2*ynb}")
    A(f"s_add_u32 s90, s90, {DB}")
    A("s_lshl_b32 s90, s90, 11")
    A(f"s_mul_i32 s3, {W}, {yps}")
    A("s_add_u32 s90, s90, s3")
    A(f"s_add_u32 s90, s90, {W_Y}")
    if pull2:
        A(f"s_lshr_b32 s3, {TB}, 4")
        A(f"s_lshl2_add_u32 s3, s3, {W}")
        A("s_lshl_b32 s3, s3, 3")
        A(f"s_bfe_u32 s91, {TB}, 0x20002")
        A("s_add_u32 s3, s3, s91")
        A("s_lshl_b32 s3, s3, 4")
        A(f"s_and_b32 s91, {DB}, 6")
        A("s_lshl1_add_u32 s3, s91, s3")
        A(f"s_and_b32 s91, {DB}, 1")
        A("s_add_u32 s3, s3, s91")
        A("s_lshl_b32 s3, s3, 7")
    else:
        A(f"s_lshl2_add_u32 s3, {W}, 112")
    A("v_mov_b32 v13, s3")
    A(f"v_cmp_gt_u32 vcc, {8 if pull2 else 32}, v1")
    A("s_nop 1")
    A("v_cndmask_b32 v12, v13, v12, vcc")
    if pull2:
        A("s_mov_b64 exec, 0x1ff")
    p3_poll("p3y")
    if pull2:
        A("s_mov_b64 exec, -1")
    for j in range(4):
        for e in range(2):
            A(f"buffer_load_dwordx4 {v(AC3+32+(j*2+e)*4,4)}, v14, s[{SWS}:{SWS+3}], s90 offen offset:{e*1024}")
        if j < 3:
            A(f"s_add_u32 s90, s90, {ynb*1024}")
    G(10)
    A("s_cmp_eq_u32 vcc_lo, 0")
    A(f"s_cbranch_scc1 {N}_p3lw")
    if pull2:
        A("s_mov_b64 exec, 0xff")
    p3_poll("p3l")
    if pull2:
        A("s_mov_b64 exec, -1")
    G(6)
    if wbl == 2:
        A(f"s_and_b32 s3, {RANK}, 31")
        A(f"s_lshl2_add_u32 s3, s3, {W}")
        A("s_cmp_eq_u32 s3, 124")
        A(f"s_cbranch_scc0 {N}_nwb")
        A("buffer_wbl2 sc1")
        A.label(f"{N}_nwb")
    vm = Cnt(A, "vmcnt", 63)
    hl = [(k, p_, j) for k in range(7) for p_ in range(2) for j in range(4)]
    def hload(i):
        k, p_, j = hl[i]
        A(f"buffer_load_dwordx4 {v(HFR[i%16],4)}, {'v14' if k < 4 else 'v15'}, s[{SWS}:{SWS+3}], s{48+4*p_+j} offen offset:{(k&3)*1024} {haux}")
        vm.op(i)
    for i in range(16):
        hload(i)
    for i in range(32):
        if i % 4 == 0:
            A(f"s_waitcnt vmcnt({16 + 7 - i//4})")
        A(f"v_lshlrev_b32 v{AC3+2*i}, 16, v{AC3+32+i}")
        A(f"v_and_b32 v{AC3+2*i+1}, 0xffff0000, v{AC3+32+i}")
    for i in range(56):
        k, p_, j = hl[i]
        vm.need(i)
        if i == 0:
            G(7)
        for it in range(4):
            acc = AC3 + (j * 4 + it) * 4
            A(f"v_mfma_f32_16x16x32_bf16 {v(acc,4)}, {v(WOTR(it,k),4)}, {v(HFR[i%16],4)}, {v(acc,4)}")
        if i + 16 < 56:
            hload(i + 16)
    G(8)
    for it in range(1, 4):
        A(f"v_xor_b32 v{64+it}, {it*64}, v7")
    for j in range(4):
        if j == 3:
            A("s_nop 4")
        for it in range(4):
            acc = AC3 + (j * 4 + it) * 4
            A(f"ds_write_b128 v{64+it if it else 7}, {v(acc,4)} offset:{j*4096}")
    A.label(f"{N}_p3f")
    A("s_waitcnt vmcnt(0)")
    for d in range(4):
        A(f"v_lshlrev_b32 v{16+2*d}, 16, v{XR+d}")
        A(f"v_and_b32 v{16+2*d+1}, 0xffff0000, v{XR+d}")
    A("s_waitcnt lgkmcnt(0)")
    A("s_barrier")
    R = 24
    for w in range(4):
        for c in range(2):
            A(f"ds_read_b128 {v(R + (w*2+c)*4, 4)}, v{(2 if w < 2 else 4) + c} offset:{RBUF[w] - RBUF[0 if w < 2 else 2]}")
    for w in range(4):
        A(f"s_waitcnt lgkmcnt({6-2*w})")
        for d in range(4):
            A(f"v_pk_add_f32 {v(16+2*d,2)}, {v(16+2*d,2)}, {v(R+w*8+2*d,2)}")
    for d in range(4):
        A(f"v_cvt_pk_bf16_f32 v{12+d}, v{16+2*d}, v{16+2*d+1}")
    A(f"buffer_store_dwordx4 v[12:15], v6, s[{SO}:{SO+3}], s60 offen {oaux}")
    PE_()
    if gst:
        A("s_waitcnt vmcnt(0)")
        G(9)
        if amp:
            wg, wv, k1, k2 = amp
            A("s_waitcnt lgkmcnt(0)")
            A(f"s_cmp_eq_u32 s2, {wg}")
            A(f"s_cbranch_scc0 {L_exit}")
            A(f"s_cmp_eq_u32 s19, {wv}")
            A(f"s_cbranch_scc0 {L_exit}")
            A(f"s_sub_u32 s90, s{SREG[k2]}, s{SREG[k1]}")
            A("s_lshl_b32 s90, s90, 4")
            A("s_min_u32 s90, s90, 4000000")
            A("s_memtime s[92:93]")
            A("s_waitcnt lgkmcnt(0)")
            A("s_mov_b32 s91, s92")
            A.label(f"{N}_amp")
            A("s_sleep 4")
            A("s_memtime s[92:93]")
            A("s_waitcnt lgkmcnt(0)")
            A("s_sub_u32 s3, s92, s91")
            A("s_cmp_lt_u32 s3, s90")
            A(f"s_cbranch_scc1 {N}_amp")
        else:
            st2_flush(A, range(1, 13), "s19", SWS)
    A.label(L_exit)
    A("s_endpgm")
    A.label(f"{N}_end")
    return dict(name=name, vgpr=256, sgpr=102, grid=256, block=512, lds=LDS_TOTAL, pf=pf)
```

```python
from mk_m import *
MB = 1 << 20
KB = 1024
P = (4,5,0,1,6,7,2,3)
P1 = (4,5,6,7,0,1,2,3)
E = dict(D, stamp=2, rot2=(4,8,1,1), rot1="x4", xaux="", waux="", saux="", z1cp=1, ipf=1, ipf2=(1,5,9,13), ipf2b="lgo", pl_at=(3,), oaux="sc1", gmap=4, z1s=(1,3,5,7,9,11,12,13), psleep3=(16,16), f2s=7, relx=1, p3perm=P, spq=1, uni=1)
F = dict(E, pull1=1, pull2=1)
X = dict(F, ey=3, eyt=(8,0))
Y4 = (4,4,4,4); Y2 = (2,4,4,4,2)
V = dict(
 a=dict(E),
 b=dict(E, rblk=(Y4,(2,8,4,2))),
 c=dict(E, pst=1),
 d=dict(E, pst=3),
 e=dict(E, rblk=(Y4,(2,8,4,2)), pst=1),
 f=dict(E, st2_aux="sc1 nt"),
 g=dict(E, st2_aux="sc0 sc1"),
 h=dict(X),
)
run(V)
```

```python
from asmlib import *
from layout import *
import struct

def f32(x):
    return hex(struct.unpack('I', struct.pack('f', x))[0])

C0 = -2.0 * 0.7978845608028654 * 1.4426950408889634
C1 = C0 * 0.044715
EPS = f32(1e-5)
KB = 1024
W_ST = WS_ST
W_BX = WS_ST + 256 * KB
W_F1, W_F2 = W_BX, WS_ST + 800 * KB
W_RS = WS_ST + 512 * KB
W_TB = WS_ST + 768 * KB
W_Y = 32 * MB
W_H = 40 * MB
W_H2 = 48 * MB
WS_TOT2 = 56 * MB
LX, LW, LD = 0, 65536, 131072
LRM = 155648
LCSD = LRM + 1024
LCSW = LCSD + 1024
LMISC = LCSW + 512
LTR = 159744
LDS_TOTAL = 163840
RBUF = [48 * KB, 64 * KB, 112 * KB, 128 * KB]
LBS = 159744
PSL = [48 * KB, 112 * KB, 128 * KB, 144 * KB]
SX, SW, SI, SWS, SDB, SO, SP = 20, 24, 28, 32, 36, 40, 44
SPIN = 0x20000


class Cnt:
    def __init__(self, A, name, mx):
        self.A, self.name, self.mx, self.q = A, name, mx, []
    def op(self, tag=None):
        self.q.append(tag)
    def need(self, tag):
        idx = [i for i, t in enumerate(self.q) if t == tag]
        if not idx:
            return
        n = len(self.q) - 1 - idx[-1]
        self.A(f"s_waitcnt {self.name}({min(n, self.mx)})")
        self.q = self.q[idx[-1] + 1:] if n <= self.mx else self.q[len(self.q) - self.mx:]
    def all(self):
        self.A(f"s_waitcnt {self.name}(0)")
        self.q = []

AUXS = {"pair": ("nt", ""), "nt": ("nt",), "d": ("",), "off": ()}


def gen_f(A, name="f_kernel", phases="123", stamp=False, rot1="x", pub_at=2, tbl_at=5, rank_at=6,
          st_aux="sc1", prio_loader=2, xaux="nt", waux="nt", pauxy="", pauxg="", qaux="nt", zaux="",
          st2_aux="sc1", psleep=2, stg=((4, 1, "pair"), (5, 2, "pair"), (6, 3, "pair")),
          rot2=0, npro=2, ramp=1, dbgm="", pairp=1, wot_at=(9, 10, 11, 12), nofast=0, saux="nt", z1_at=2,
          own_wait=1, hst_aux="", haux="", z1_early=1, q_at=(6, 8, "p"), taux="", gmap=0, pf=1, pfsch=None,
          amp=None, relx=0, p3perm=None, paux3='sc1', faux3='sc1', ipf2b='late', f2s=7, f2o=None, wh=None, wy=None, ylate=0, psleep3=None, tlbw=None, oaux='', wbl=0, ipf=0, ipf2=(), z1cp=2, pl_at=(4,), stgrow=0, qaux2='nt', q2_from=4, qreg=None, thr=8, z1s=(8, 9, 10, 11), pre_at=8, qpf=None, qpre=(), ppf=None, spq=0, uni=0, ipfat=0, pull1=0, pull2=0, tsp=0, ey=0, eyt=(3, 8), eya=5, wsb=0, tw=None, ynb=16, hnb=28, yps=2*MB, hps=4*MB, stir=None, dly=0, dly2=0, dly1=0, warm=None, rblk=None, pst=0, p3n=0, p3t=0, wtch=-1, p3s=0, lsl=1, ctch=0, hf16=0, cwm=24, cw0=16, csl=4, cpo=24, ly=0, cprio=0, pe=0, peb=32, pea=4, wst=0, g2p=None, y2p=None):
    kernel_header(A, name)
    N = name
    A.raw(f"; WSB={wsb}")
    def srd_ws():
        if not wsb:
            srd(A, SWS, "s14", "s15", WS_TOT2)
            return
        A(f"s_add_u32 s{SWS}, s14, {wsb}")
        A(f"s_addc_u32 s{SWS+1}, s15, 0")
        A(f"s_and_b32 s{SWS+1}, s{SWS+1}, 0xffff")
        A(f"s_mov_b32 s{SWS+2}, {WS_TOT2}")
        A(f"s_mov_b32 s{SWS+3}, 0x00020000")
    global W_H, W_Y, W_F2
    W_H = 40 * MB if wh is None else wh
    W_Y = 32 * MB if wy is None else wy
    W_F2 = (WS_ST + 800 * KB if f2s == 7 else W_BX + 256) if f2o is None else f2o
    W_Z1 = W_H if z1cp == 2 else WS_Z1
    assert not qreg
    gst = stamp == 2
    est = stamp == 3
    stamp = stamp == 1
    def E(k):
        if est:
            st2(A, k)
    TY, TT, NT, SL, KH = "s84", "s85", "s86", "s87", "s65"
    SQ = SW
    def G(k):
        if gst:
            st2(A, k)
    def PB_(r, L=2):
        A.raw(f";PF_BEGIN {r} {L}")
    def PE_():
        A.raw(";PF_END")

    def pfload(vaddr, srdn, so, aux, vm=None, off=0):
        for ax in AUXS[aux]:
            A(f"buffer_load_dword v6, {vaddr}, s[{srdn}:{srdn+3}], {so} offen offset:{off} {ax}")
            if vm:
                vm.op("pf")

    JOB = "s58"
    def p2_decode():
        if gmap == 0:
            A(f"s_mov_b32 {JOB}, {RANK}")
        elif gmap == 1:
            A(f"s_and_b32 {SL}, {RANK}, 31")
            A(f"s_and_b32 {JOB}, {RANK}, 0xc0")
            A(f"s_cmp_ge_u32 {SL}, 23")
            A("s_cselect_b32 s3, 25, 0")
            A(f"s_add_u32 {JOB}, {JOB}, s3")
            A(f"s_add_u32 {JOB}, {JOB}, {SL}")
            A(f"s_bitcmp1_b32 {RANK}, 5")
            A("s_cselect_b32 s3, 7, 0")
            A(f"s_add_u32 {JOB}, {JOB}, s3")
            A(f"s_bfe_u32 s3, {RANK}, 0x10005")
            A(f"s_and_b32 s18, {RANK}, 1")
            A("s_lshl4_add_u32 s18, s18, 15")
            A("s_lshl1_add_u32 s3, s18, s3")
            A(f"s_and_b32 s18, {RANK}, 0xc0")
            A("s_add_u32 s3, s3, s18")
            A(f"s_cmp_ge_u32 {SL}, 30")
            A(f"s_cselect_b32 {JOB}, s3, {JOB}")
            A(f"s_cmp_lt_u32 {SL}, 16")
            A(f"s_cselect_b32 {JOB}, {RANK}, {JOB}")
        elif gmap >= 2:
            A(f"s_and_b32 {SL}, {RANK}, 31")
            if gmap == 2:
                A(f"s_and_b32 {JOB}, {RANK}, 0x6f")
                A(f"s_lshr_b32 s3, {SL}, 4")
                A("s_lshl_b32 s3, s3, 7")
                A(f"s_or_b32 {JOB}, {JOB}, s3")
            elif gmap == 3:
                A(f"s_and_b32 {JOB}, {RANK}, 15")
                A(f"s_and_b32 s3, {RANK}, 0x70")
                A(f"s_lshl1_add_u32 {JOB}, s3, {JOB}")
            else:
                A(f"s_and_b32 {JOB}, {RANK}, 0x2f")
                if gmap == 4:
                    A(f"s_xor_b32 {JOB}, {JOB}, 0x20")
                A(f"s_and_b32 s3, {RANK}, 0x10")
                A(f"s_lshl2_add_u32 {JOB}, s3, {JOB}")
                A(f"s_and_b32 s3, {RANK}, 0x40")
                A(f"s_lshl1_add_u32 {JOB}, s3, {JOB}")
            A(f"s_cmp_lt_u32 {RANK}, 128")
            L = A.newlabel(N + "_prm")
            A(f"s_cbranch_scc1 {L}")
            A(f"s_mul_i32 s3, {SL}, 37")
            A("s_lshr_b32 s3, s3, 8")
            A("s_mul_i32 s18, s3, 25")
            A(f"s_add_u32 {JOB}, s18, {SL}")
            A(f"s_add_u32 {JOB}, {JOB}, 16")
            A(f"s_bitcmp1_b32 {RANK}, 5")
            A("s_cselect_b32 s3, 0, 7" if gmap == 4 else "s_cselect_b32 s3, 7, 0")
            A(f"s_add_u32 {JOB}, {JOB}, s3")
            A(f"s_bitcmp1_b32 {RANK}, 6")
            A("s_cselect_b32 s3, 128, 0")
            A(f"s_add_u32 {JOB}, {JOB}, s3")
            if spq:
                A(f"s_lshl_b32 s18, {SL}, 5")
                A(f"s_add_u32 s3, s3, s18")
                A(f"s_add_u32 s3, s3, {(30 - 28*32) & 0xffffffff}")
                A(f"s_bitcmp1_b32 {RANK}, 5")
                A("s_cselect_b32 s18, 0, 1" if gmap == 4 else "s_cselect_b32 s18, 1, 0")
                A("s_add_u32 s3, s3, s18")
                A(f"s_cmp_ge_u32 {SL}, 28")
                A(f"s_cselect_b32 {JOB}, s3, {JOB}")
            else:
                A(f"s_cmp_ge_u32 {SL}, 28")
                A(f"s_cselect_b32 {JOB}, 30, {JOB}")
            A.label(L)
        A(f"s_bfe_u32 {KH}, {JOB}, 0x10005")
        A(f"s_and_b32 {SL}, {JOB}, 31")
        A(f"s_bfe_u32 {TY}, {JOB}, 0x10006")
        A(f"s_lshr_b32 {TT}, {JOB}, 7")
        A(f"s_lshr_b32 s3, {SL}, 2")
        A(f"s_lshl2_add_u32 {TT}, {TT}, s3")
        A(f"s_and_b32 {NT}, {SL}, 3")
        A(f"s_cmp_lt_u32 {SL}, 16")
        L = A.newlabel(N + "_dec")
        A(f"s_cbranch_scc1 {L}")
        A(f"s_cmp_ge_u32 {SL}, 23")
        A("s_cselect_b32 s3, 1, 0")
        A("s_cselect_b32 s18, 23, 16")
        A(f"s_lshr_b32 {TT}, {JOB}, 5")
        A(f"s_mov_b32 {KH}, s3")
        A(f"s_sub_u32 {NT}, {SL}, s18")
        A(f"s_and_b32 s3, {JOB}, 1")
        A(f"s_cmp_ge_u32 {SL}, 30")
        A(f"s_cselect_b32 {TY}, 3, 2")
        A(f"s_cselect_b32 {NT}, 7, {NT}")
        A(f"s_cselect_b32 {KH}, s3, {KH}")
        A.label(L)

    ZR1, AC3, XR = 144, 192, 8
    def SLOT(j):
        return 16 + 32 * j
    def WOTR(i, k):
        return SLOT(i) + 4 * k
    HFR = [144 + 4 * i for i in range(12)] + [SLOT(j) + 28 for j in range(4)]
    if qreg is None:
        qreg = {q: (q - 3, [("pre", 0, 8)]) for q in range(3, 10)}
        for i in range(4):
            qreg[10 + i] = (i, [(2 + 2 * i, 0, 4), (3 + 2 * i, 4, 8)])
    WB = "s59"
    FAST = "s63"
    def p3_addr():
        A(f"s_mul_i32 s18, {W}, 7")
        A(f"s_and_b32 s3, {RANK}, {3 if p3n else 7}")
        A(f"s_mul_i32 {WB}, s3, {224 if p3n else 112}")
        A(f"s_add_u32 {WB}, {WB}, s18")
        A(f"s_lshl_b32 {WB}, {WB}, 10")
        A(f"s_add_u32 {WB}, {WB}, {WS_WOT}")
        A("v_add_u32 v15, 4096, v14")
    def WL(it, k):
        return 16 + 16 * it + 4 * k
    CWQ = [(80 + 4 * i, 16) for i in range(4)] + [(16 + 4 * (b - 8), b) for b in range(15, 7, -1)]
    CWQ += [(48 + 4 * b, b) for b in range(7, 3, -1)] + [(60, 3), (136, 3), (140, 3), (56, 2), (128, 2), (132, 2), (52, 1), (120, 1)]
    def WC(it, k):
        if p3n == 4:
            return CWQ[k * 8 + it][0]
        return 16 + 12 * it + 4 * k
    def cw_base():
        A("s_mul_i32 s18, s19, 7")
        A(f"s_and_b32 s3, {RANK}, 3")
        A("s_mul_i32 s3, s3, 224")
        A("s_add_u32 s3, s3, s18")
        A("s_lshl_b32 s3, s3, 10")
        A(f"s_add_u32 s59, s3, {WS_WOT + 4096}")
    def cw_one(i):
        k, it = i >> 3, i & 7
        A(f"s_add_u32 s3, s59, {it*28*1024}")
        A(f"buffer_load_dwordx4 {v(WC(it,k),4)}, v14, s[{SWS}:{SWS+3}], s3 offen offset:{k*1024}")
    def cw_at(b):
        n_ = 0
        if p3n == 4:
            for i in range(cwm):
                if min(CWQ[i][1], cw0) == b:
                    cw_one(i)
                    n_ += 1
        return n_
    def wot_loads(i, vm=None):
        if p3n:
            for it in (2 * i, 2 * i + 1):
                A(f"s_add_u32 s3, {WB}, {it*28*1024}")
                for k in range(4):
                    A(f"buffer_load_dwordx4 {v(WL(it,k),4)}, v14, s[{SWS}:{SWS+3}], s3 offen offset:{k*1024}")
                    if vm:
                        vm.op("wot")
            return
        A(f"s_add_u32 s3, {WB}, {i*28*1024}")
        for k in range(7):
            A(f"buffer_load_dwordx4 {v(WOTR(i,k),4)}, {'v14' if k < 4 else 'v15'}, s[{SWS}:{SWS+3}], s3 offen offset:{(k&3)*1024}")
            if vm:
                vm.op("wot")
    LFG = 112 * KB
    def lflag(val):
        A(f"s_lshl_b32 s3, {W}, 8")
        A(f"s_add_u32 s3, s3, {LFG}")
        A("v_lshl_add_u32 v2, v1, 2, s3")
        A(f"v_mov_b32 v3, {val}")
        A("ds_write_b32 v2, v3")
    def cw_loads():
        A("s_mul_i32 s18, s19, 7")
        A(f"s_and_b32 s3, {RANK}, 3")
        A("s_mul_i32 s3, s3, 224")
        A("s_add_u32 s3, s3, s18")
        A("s_lshl_b32 s3, s3, 10")
        A(f"s_add_u32 s3, s3, {WS_WOT + 4096}")
        A("s_waitcnt lgkmcnt(0)")
        for it in range(8):
            for k in range(3):
                A(f"buffer_load_dwordx4 {v(WC(it,k),4)}, v14, s[{SWS}:{SWS+3}], s3 offen offset:{k*1024}")
            if it < 7:
                A(f"s_add_u32 s3, s3, {28*1024}")
    W = "s67"
    RB, CG, ISB, U0, ABO, KEY, RANK = "s60", "s61", "s62", "s63", "s64", "s65", "s66"
    L_exit = N + "_exit"
    A("s_cmp_ge_u32 s2, 256")
    A(f"s_cbranch_scc1 {L_exit}")
    if stamp or gst or est:
        st2(A, 0)
    for _ in range(dly):
        A("s_sleep 16")
    A("s_load_dwordx2 s[4:5], s[0:1], 0")
    A("s_load_dwordx4 s[8:11], s[0:1], 24")
    A("s_load_dwordx2 s[6:7], s[0:1], 48")
    A("s_load_dwordx4 s[12:15], s[0:1], 88")
    A("v_lshrrev_b32 v2, 6, v0")
    A("v_and_b32 v1, 63, v0")
    A("s_lshr_b32 s3, s2, 5")
    A("v_readfirstlane_b32 s19, v2")
    A(f"s_and_b32 {RB}, s2, 1")
    A(f"s_lshl_b32 {RB}, {RB}, 3")
    A(f"s_add_u32 {RB}, {RB}, s3")
    A(f"s_bfe_u32 {CG}, s2, 0x20001")
    A(f"s_lshl_b32 {CG}, {CG}, 2")
    A("s_bfe_u32 s3, s2, 0x20003")
    A(f"s_add_u32 {CG}, {CG}, s3")
    A(f"s_cmp_ge_u32 {CG}, 14")
    A(f"s_cselect_b32 {ABO}, 1, 0")
    A(f"s_cmp_ge_u32 {CG}, 7")
    A(f"s_cselect_b32 {ISB}, 1, 0")
    A(f"s_cselect_b32 {U0}, 7, 0")
    A(f"s_sub_u32 {U0}, {CG}, {U0}")
    A(f"s_mul_i32 {U0}, {U0}, 3")
    A(f"s_cmp_eq_u32 {CG}, 14")
    A(f"s_cselect_b32 {ISB}, 0, {ISB}")
    A(f"s_cmp_eq_u32 {ABO}, 1")
    A(f"s_cselect_b32 {U0}, 21, {U0}")
    A("v_lshlrev_b32 v14, 4, v1")
    KS = "s52"
    if rot1 == "x":
        A(f"s_getreg_b32 {KS}, hwreg(HW_REG_XCC_ID, 0, 3)")
    elif rot1 == "x4":
        A(f"s_getreg_b32 {KS}, hwreg(HW_REG_XCC_ID, 0, 3)")
        A(f"s_and_b32 s3, {KS}, 1")
        A(f"s_mul_i32 s3, s3, 3")
        A(f"s_add_u32 {KS}, {KS}, s3")
        A(f"s_and_b32 {KS}, {KS}, 7")
    elif rot1 == "w":
        A(f"s_lshl1_add_u32 {KS}, {CG}, {RB}")
        A(f"s_and_b32 {KS}, {KS}, 7")
    elif rot1 == "wx":
        A(f"s_getreg_b32 {KS}, hwreg(HW_REG_XCC_ID, 0, 3)")
        A(f"s_add_u32 {KS}, {KS}, {RB}")
        A(f"s_lshl1_add_u32 {KS}, {CG}, {KS}")
        A(f"s_and_b32 {KS}, {KS}, 7")
    elif rot1 == "r":
        A(f"s_and_b32 {KS}, {RB}, 7")
    else:
        A(f"s_mov_b32 {KS}, 0")
    A("s_cmp_lt_u32 s19, 4")
    A(f"s_cbranch_scc1 {N}_comp")

    XO, DO, IO, LDST = "s48", "s49", "s50", "s51"
    A(f"s_sub_u32 {W}, s19, 4")
    if ipf:
        A(f"s_getpc_b64 s[{SP}:{SP+1}]")
        A.label(f"{N}_pc0")
        A(f"s_and_b32 s{SP+1}, s{SP+1}, 0xffff")
        A(f"s_mov_b32 s{SP+2}, {N}_end-{N}_pc0")
        A(f"s_mov_b32 s{SP+3}, 0x00020000")
        A("s_lshr_b32 s3, s2, 3")
        A("s_lshl_b32 s3, s3, 13")
        A(f"s_cmp_eq_u32 {W}, 3")
        A("s_cselect_b32 s68, s3, 0x100000")
        A("v_lshlrev_b32 v13, 7, v1")
        if not ipfat:
            A(f"buffer_load_dword v15, v13, s[{SP}:{SP+3}], s68 offen")
    A("v_lshrrev_b32 v4, 3, v1")
    A(f"s_lshl_b32 s3, {W}, 3")
    A("v_add_u32 v4, s3, v4")
    A("v_and_b32 v5, 7, v1")
    A("v_lshrrev_b32 v6, 4, v1")
    A(f"s_and_b32 s3, {W}, 1")
    A("s_lshl_b32 s3, s3, 2")
    A(f"s_and_b32 s18, {W}, 2")
    A("s_or_b32 s3, s3, s18")
    A("v_xor_b32 v6, s3, v6")
    A("v_xor_b32 v6, v6, v5")
    A("v_lshlrev_b32 v6, 4, v6")
    A("v_lshl_add_u32 v2, v4, 10, v6")
    A("v_bfe_u32 v6, v1, 4, 1")
    A(f"s_and_b32 s3, {W}, 1")
    A("s_lshl_b32 s3, s3, 1")
    A("v_or_b32 v6, s3, v6")
    A("v_lshlrev_b32 v6, 1, v6")
    A("v_xor_b32 v6, v6, v5")
    A("v_lshlrev_b32 v6, 4, v6")
    A("v_mul_u32_u24 v3, 3584, v4")
    A("v_add_u32 v3, v3, v6")
    A(f"s_lshl_b32 {XO}, {RB}, 17")
    A(f"s_lshl_b32 {DO}, {U0}, 14")
    A(f"s_lshl_b32 {IO}, {CG}, 7")
    A(f"s_lshl_b32 {LDST}, {W}, 10")
    A(f"s_lshl_b32 s3, {KS}, 7")
    A(f"s_add_u32 {XO}, {XO}, s3")
    A(f"s_add_u32 {DO}, {DO}, s3")
    A(f"s_mul_i32 s3, {KS}, {64*3584}")
    A(f"s_add_u32 {IO}, {IO}, s3")
    A("s_mov_b32 s53, 128")
    A(f"s_mov_b32 s54, {64*3584}")
    if uni:
        A("v_bfe_u32 v6, v1, 4, 1")
        A(f"s_lshl_b32 s3, {W}, 1")
        A("v_or_b32 v6, s3, v6")
        A("v_xor_b32 v6, v6, v5")
        A("v_lshlrev_b32 v6, 4, v6")
        A("v_lshrrev_b32 v9, 3, v1")
        A("v_lshl_add_u32 v9, v9, 10, v6")
        A(f"s_lshl_b32 s3, {W}, 12")
        A("v_add_u32 v9, s3, v9")
        A(f"s_lshl_b32 s90, {W}, 9")
        A(f"s_cmp_eq_u32 {ABO}, 1")
        A("s_cselect_b64 vcc, -1, 0")
        A("v_cndmask_b32 v3, v3, v2, vcc")
        A(f"s_cselect_b32 {IO}, {DO}, {IO}")
        A("s_cselect_b32 s54, 128, s54")
        A(f"s_mov_b32 s55, {(-7*64*3584) & 0xffffffff}")
        A(f"s_cselect_b32 s55, {(128-1024) & 0xffffffff}, s55")
        A("s_cselect_b32 s84, 0, 1792")
        A(f"s_mov_b32 s85, {32*3584+1792}")
        A("s_cselect_b32 s85, 32768, s85")
        A("s_cselect_b32 s86, 65536, 0")
        A(f"s_mov_b32 s87, {32*3584}")
        A("s_cselect_b32 s87, 98304, s87")
        A("s_cselect_b32 s3, 131072, 0")
        A(f"s_add_u32 {DO}, {DO}, s3")
    A("s_waitcnt lgkmcnt(0)")
    srd(A, SX, "s4", "s5", 2048 * 1024)
    A(f"s_cmp_eq_u32 {ISB}, 1")
    A("s_cselect_b64 s[16:17], s[10:11], s[8:9]")
    srd(A, SW, "s16", "s17", 512 * 1024)
    if uni:
        A(f"s_cmp_eq_u32 {ABO}, 1")
        A("s_cselect_b64 s[6:7], s[16:17], s[6:7]")
    srd(A, SI, "s6", "s7", 512 * 3584)
    if uni:
        A(f"s_cmp_eq_u32 {ABO}, 1")
        A(f"s_cselect_b32 s{SI+2}, {512*1024}, s{SI+2}")
    srd_ws()
    srd(A, SDB, "s12", "s13", 256)
    A("s_load_dwordx4 s[12:15], s[0:1], 8")
    A("s_load_dwordx4 s[56:59], s[0:1], 56")
    A("s_load_dwordx2 s[94:95], s[0:1], 72", "s_load_dwordx2 s[96:97], s[0:1], 80")
    if not uni:
        A(f"s_lshr_b32 s3, {W}, 1")
        A(f"s_lshl_b32 s18, {ABO}, 1")
        A("s_or_b32 s3, s3, s18")
        for r in (1, 2, 3):
            A(f"s_cmp_eq_u32 s3, {r}")
            A(f"s_cbranch_scc1 {N}_ld{r}")

    PFO, PFR = "s90", "s91"
    QB, PB, KO, CNT = "s48", "s49", "s52", "s54"

    def stg_setup():
        A("s_getreg_b32 s55, hwreg(HW_REG_XCC_ID, 0, 3)")
        A("s_lshr_b32 s3, s2, 3")
        A(f"s_lshl1_add_u32 {PFO}, s3, {W}")
        A("s_lshr_b32 s18, s55, 2")
        A(f"s_lshl_b32 s18, s18, 6")
        A(f"s_add_u32 {PFO}, {PFO}, s18")
        A(f"s_lshr_b32 {PFR}, s3, 3")
        A("s_and_b32 s18, s3, 15")
        A("s_lshl4_add_u32 s18, s55, s18")
        A("s_lshr_b32 s3, s3, 4")
        A(f"s_cmp_lt_u32 {W}, 2")
        A(f"s_cselect_b32 {PFO}, {PFO}, s18")
        A(f"s_cselect_b32 {PFR}, {PFR}, 0")
        A(f"s_cselect_b32 s3, s55, s3")
        A(f"s_lshl_b32 {PFO}, {PFO}, 16")
        A("s_and_b32 s3, s3, 1")
        A("s_lshl_b32 s3, s3, 11")
        A(f"s_add_u32 {PFO}, {PFO}, s3")
        A(f"s_mov_b32 {PFR}, 0")
        A("s_bitcmp1_b32 s55, 1")
        A("s_cselect_b64 s[16:17], s[14:15], s[12:13]")
        A(f"s_cmp_lt_u32 {W}, 2")
        A("s_cselect_b64 s[16:17], s[16:17], s[56:57]")
        srd(A, SP, "s16", "s17", 2048 * 4096)
        A(f"s_cmp_eq_u32 {W}, 3")
        A(f"s_cselect_b32 s{SP+2}, 0, s{SP+2}")
        A(f"v_lshrrev_b32 v11, {4 if stgrow else 2}, v1")
        A(f"v_and_b32 v12, {15 if stgrow else 3}, v1")
        A("v_lshlrev_b32 v12, 7, v12")
        A("v_lshl_add_u32 v11, v11, 12, v12")
    def stg_at(b, vm):
        for bb, c, stgaux in stg:
            if bb != b:
                continue
            A(f"s_add_u32 s3, {PFR}, {c}")
            A("s_and_b32 s3, s3, 3")
            A(f"s_lshl_b32 s3, s3, {14 if stgrow else 9}")
            A(f"s_add_u32 s3, s3, {PFO}")
            pfload("v11", SP, "s3", stgaux, vm)
    curB = [4]
    curL = [None]
    def blk(q):
        if not rblk:
            return q & ~(curB[0] - 1), "s55"
        if curL[0] is None:
            assert q < rblk[0][0] and q < rblk[1][0]
            return 0, "s55"
        b0 = 0
        for B_ in curL[0]:
            if q < b0 + B_:
                return b0, (B_ - 1) * 128
            b0 += B_
    def q_base(q):
        if not rot2:
            return QB, (q % 4 if "Q" in dbgm else q) * 128
        A(f"s_add_u32 s18, {KO}, {q*128}")
        b0, mk = blk(q)
        A(f"s_and_b32 s18, s18, {mk}")
        A(f"s_add_u32 s18, s18, {QB}")
        return "s18", b0 * 128
    def q_issue(q, vm, tag):
        sl = q % 3
        r, c = q_base(q)
        for m in ((0, 1, 4, 5) if "h" in dbgm else range(8)):
            A(f"s_add_u32 m0, {LDST}, {(m>>2)*65536 + sl*16384 + (m&3)*4096}")
            A(f"s_add_u32 s3, {r}, {c + m*131072}")
            A(f"buffer_load_dwordx4 v7, s[{SQ}:{SQ+3}], s3 offen {qaux if q < q2_from else qaux2} lds")
            vm.op(tag)
    def q_touch(q, vm, dst="v10"):
        r, c = q_base(q)
        A(f"s_add_u32 s3, {r}, {c}")
        A(f"buffer_load_dword {dst}, v11, s[{SQ}:{SQ+3}], s3 offen")
        vm.op("pf")
    def q_rload(when, vm, throttle=0):
        for q in sorted(qreg):
            slot, parts = qreg[q]
            for (wh, m0_, m1_) in parts:
                if wh != when:
                    continue
                r, c = q_base(q)
                for m in range(m0_, m1_):
                    if throttle and len(vm.q) >= throttle:
                        A(f"s_waitcnt vmcnt({throttle-1})")
                        vm.q = vm.q[len(vm.q) - (throttle - 1):]
                    A(f"s_add_u32 s3, {r}, {c + m*131072}")
                    A(f"buffer_load_dwordx4 {v(SLOT(slot)+4*m,4)}, v7, s[{SQ}:{SQ+3}], s3 offen {qaux}")
                    vm.op(("r", q))
    def q_write(q, vm):
        slot = qreg[q][0]
        vm.need(("r", q))
        for m in range(8):
            A(f"ds_write_b128 {'v9' if m >= 4 else 'v12'}, {v(SLOT(slot)+4*m,4)} offset:{(q%3)*16384 + (m&3)*4096}")

    def p1_loader(role):
        ztype = role < 2
        hi = role & 1
        vm = Cnt(A, "vmcnt", 63)
        A.label(f"{N}_ld{role}")
        def dma(lds, so_base, so_add, vreg, srdn, tag):
            A(f"s_add_u32 m0, {LDST}, {lds}")
            A(f"s_add_u32 s3, {so_base}, {so_add}")
            A(f"buffer_load_dwordx4 {vreg}, s[{srdn}:{srdn+3}], s3 offen {xaux if srdn == SX else waux} lds")
            vm.op(tag)
        def issue(st):
            sl = st & 3
            for j in range(4):
                dma(LX + sl * 16384 + j * 4096, XO, j * 32768, "v2", SX, st)
                if uni:
                    dma(LW + sl * 16384 + j * 4096, IO, f"s{84+j}", "v3", SI, st)
                elif ztype:
                    pan, jj = j >> 1, j & 1
                    dma(LW + sl * 16384 + pan * 8192 + jj * 4096, IO, jj * 32 * 3584 + (1792 if pan == 0 else 0), "v3", SI, st)
                else:
                    dma(LW + sl * 16384 + j * 4096, DO, j * 32768, "v2", SW, st)
            j0 = 0 if ztype else 4
            dma(LD + sl * 6144, DO, j0 * 32768, "v2", SW, st)
            if uni:
                A(f"s_add_u32 m0, s90, {LD + sl * 6144 + 4096}")
                A(f"s_add_u32 s3, {DO}, 32768")
                A("s_mov_b32 exec_hi, 0")
                A(f"buffer_load_dwordx4 v9, s[{SW}:{SW+3}], s3 offen {waux} lds")
                A("s_mov_b32 exec_hi, -1")
                vm.op(st)
            elif not hi:
                dma(LD + sl * 6144 + 4096, DO, (j0 + 1) * 32768, "v2", SW, st)
            if ipf and ipfat == st + 1:
                A(f"buffer_load_dword v15, v13, s[{SP}:{SP+3}], s68 offen")
                vm.op("ipf")
            if st < 7:
                A(f"s_add_u32 {KS}, {KS}, 1")
                A(f"s_cmp_eq_u32 {KS}, 8")
                A(f"s_cselect_b32 {KS}, 0, {KS}")
                A(f"s_cselect_b32 s3, {(128-1024) & 0xffffffff}, s53")
                A(f"s_cselect_b32 s18, {'s55' if uni else (-7*64*3584) & 0xffffffff}, s54")
                A(f"s_add_u32 {XO}, {XO}, s3")
                A(f"s_add_u32 {DO}, {DO}, s3")
                A(f"s_add_u32 {IO}, {IO}, s18")
        if stamp:
            st2(A, 1)
        for st in range(npro):
            issue(st)
        nxt_st = [npro]
        A("v_lshlrev_b32 v8, 2, v1")
        if uni:
            A(f"s_lshl_b32 s69, {ISB}, 5")
            A(f"s_add_u32 s69, s69, {U0}")
            A("s_lshl_b32 s69, s69, 6")
            A("s_add_u32 s69, s69, s90")
            A(f"s_add_u32 s69, s69, {16384 - 1024}")
            A(f"s_lshl_b32 s18, {RB}, 9")
            A(f"s_lshl_b32 s3, {W}, 13")
            A("s_add_u32 s18, s18, s3")
            A(f"s_cmp_ge_u32 {W}, 2")
            A("s_cselect_b32 s69, s69, s18")
            A(f"s_add_u32 s69, s69, {W_RS}")
        elif hi:
            A(f"s_lshl_b32 s69, {ISB}, 5")
            A(f"s_add_u32 s69, s69, {U0}")
            A("s_lshl_b32 s69, s69, 6")
            A(f"s_lshl_b32 s3, {W}, 9")
            A("s_add_u32 s69, s69, s3")
            A(f"s_add_u32 s69, s69, {W_RS + 16384 - 1024}")
        else:
            A(f"s_lshl_b32 s69, {RB}, 9")
            A(f"s_lshl_b32 s3, {W}, 13")
            A("s_add_u32 s69, s69, s3")
            A(f"s_add_u32 s69, s69, {W_RS}")
        A("v_lshrrev_b32 v6, 4, v1")
        A(f"s_and_b32 s3, {W}, 1")
        A("s_lshl_b32 s3, s3, 2")
        A("v_or_b32 v7, s3, v6")
        A("v_xor_b32 v7, v7, v5")
        A("v_lshlrev_b32 v7, 4, v7")
        A("v_lshl_add_u32 v7, v4, 12, v7")
        A("s_waitcnt lgkmcnt(0)")
        if stg:
            assert not ipf
            stg_setup()
            stg_at(-1, vm)
        def pfc(t):
            for ch in (pfsch or {}).get(("z" if ztype else "a", t), ()):
                A.raw(f";PF_CALL {ch[2*hi]} {ch[2*hi+1]} {W}")
        pfc(-1)
        for b in range(9):
            vm.need(b if b < 8 else "st")
            if stamp and b < 8:
                st2(A, 2 + b)
            A("s_barrier")
            for _ in range(ramp):
                if nxt_st[0] <= min(7, b + 3):
                    issue(nxt_st[0]); nxt_st[0] += 1
            if b == rank_at:
                A(f"s_lshl_b32 s3, {W}, 9")
                for j in range(2):
                    A(f"s_add_u32 m0, s3, {LRM + j*256}")
                    A(f"buffer_load_dword v8, s[{SWS}:{SWS+3}], s69 offen sc1 lds")
                    A("s_add_u32 s69, s69, 256")
                    vm.op("st")
            if b == rank_at and "2" in phases:
                A(f"v_mov_b32 v12, {LMISC}")
                A("ds_read_b32 v13, v12")
                A("s_waitcnt lgkmcnt(0)")
                A(f"v_readfirstlane_b32 {RANK}, v13")
                A("s_nop 0")
                A(f"s_and_b32 {RANK}, {RANK}, 255")
                srd(A, SDB, "s58", "s59", 4096)
                p2_decode()
                A(f"s_lshl_b32 s3, {W}, 8")
                A(f"s_add_u32 m0, s3, {LBS}")
                A(f"s_lshl_b32 s18, {TT}, 9")
                A("s_add_u32 s3, s3, s18")
                A(f"buffer_load_dword v8, s[{SDB}:{SDB+3}], s3 offen lds")
                vm.op("st")
                A(f"s_cmp_eq_u32 {TY}, 0")
                A("s_cselect_b64 s[12:13], s[12:13], s[14:15]")
                A(f"s_cmp_ge_u32 {TY}, 2")
                A("s_cselect_b64 s[12:13], s[56:57], s[12:13]")
                srd(A, SQ, "s12", "s13", 2048 * 4096)
                A(f"s_lshl_b32 {QB}, {TT}, 20")
                A(f"s_lshl_b32 s3, {KH}, 11")
                A(f"s_add_u32 {QB}, {QB}, s3")
                if rot2:
                    By, Bg, my, mg = rot2
                    if rblk:
                        assert sum(rblk[0]) == 16 and sum(rblk[1]) == 16 and not (qpre or ppf)
                        By, Bg = rblk[0][0], rblk[1][0]
                    A(f"s_add_u32 {KO}, {TT}, {NT}")
                    A(f"s_mul_i32 {KO}, {KO}, {my*128}")
                    A(f"s_mul_i32 s3, {NT}, {mg*128}")
                    A(f"s_cmp_ge_u32 {TY}, 2")
                    A(f"s_cselect_b32 {KO}, s3, {KO}")
                    A(f"s_mov_b32 s55, {(By-1)*128}")
                    A(f"s_cselect_b32 s55, {(Bg-1)*128}, s55")
            if "2" in phases:
                for s_ in range(3):
                    if b == q_at[s_]:
                        assert b >= max(5 + s_, rank_at)
                        q_issue(s_, vm, "q")
                q_rload(f"b{b}", vm)
            stg_at(b, vm)
            pfc(b)
        if not uni:
            A(f"s_branch {N}_ld_p2")

    assert rank_at >= 4
    for role in range(1 if uni else 4):
        p1_loader(role)
        if role == 1:
            A.raw(";PF_RET")
    A.label(f"{N}_ld_p2")
    PB_("l2")
    if stamp or est:
        st2(A, 10)
        st2_flush(A, range(1, 11) if stamp else [10], "s19", SWS)
    if "2" not in phases:
        A("s_endpgm")
    else:
        G(1)
        srd(A, SO, "s96", "s97", 2048 * 1024)
        p3_addr()
        if prio_loader:
            A(f"s_setprio {prio_loader}")
        A(f"s_mov_b32 {PB}, {WS_A}")
        A(f"s_cmp_eq_u32 {TY}, 1")
        A(f"s_cselect_b32 {PB}, {WS_B}, {PB}")
        A(f"s_cmp_eq_u32 {TY}, 2")
        A(f"s_cselect_b32 {PB}, {WS_Z2}, {PB}")
        A(f"s_lshl1_add_u32 s3, {NT}, {KH}")
        A("s_lshl_b32 s3, s3, 18")
        A(f"s_add_u32 {PB}, {PB}, s3")
        A(f"s_add_u32 {PB}, {PB}, {LDST}")
        ZB, ZD = "s50", "s53"
        A(f"s_mul_i32 {ZB}, {TT}, {16*28}")
        A(f"s_lshl2_add_u32 {ZB}, {NT}, {ZB}")
        A(f"s_lshl_b32 {ZB}, {ZB}, 10")
        A(f"s_add_u32 {ZB}, {ZB}, {LDST}")
        if z1cp == 2:
            A(f"s_lshl_b32 s3, {KH}, 22")
            A(f"s_add_u32 {ZB}, {ZB}, s3")
        A(f"s_add_u32 {ZB}, {ZB}, {W_Z1}")
        def z1_loads(ts=range(16), vm=None):
            for t in ts:
                A(f"s_add_u32 s3, {ZB}, {t*28*1024}")
                A(f"buffer_load_dwordx4 {v(ZR1+4*t,4)}, v14, s[{SWS}:{SWS+3}], s3 offen {zaux}")
                if vm:
                    vm.op("z1")
        A(f"v_mov_b32 v8, {LMISC + 4}")
        A("v_add_u32 v12, 4, v8")
        A(f"s_cmp_eq_u32 {TY}, 3")
        A(f"s_cbranch_scc1 {N}_spare")
        vm0 = Cnt(A, "vmcnt", 63)
        if qpf or qpre or ppf:
            A(f"s_lshl_b32 s3, {W}, 18")
            A("v_lshl_add_u32 v11, v1, 12, s3")
            A(f"v_lshlrev_b32 v13, 7, v1")
        if qpre:
            A(f"s_cmp_eq_u32 {TY}, 2")
            A(f"s_cbranch_scc1 {N}_qpg")
            curB[0] = rot2[0]
            for q in qpre:
                q_touch(q, vm0, 'v3')
            A(f"s_branch {N}_qpx")
            A.label(f"{N}_qpg")
            curB[0] = rot2[1]
            for q in qpre:
                q_touch(q, vm0, 'v3')
            A.label(f"{N}_qpx")
        if q_at[2] == "e":
            q_issue(2, vm0, "q")
        q_rload("pre", vm0, thr)
        G(5)
        A(f"s_mov_b32 s18, {SPIN << 4}")
        if not g2p:
            A(f"s_cmp_eq_u32 {W}, 0")
            A(f"s_cbranch_scc0 {N}_lw1")
        if pull1:
            A("v_and_b32 v9, 7, v1")
            A(f"s_lshl_b32 s3, {KH}, 3")
            A("v_add_u32 v9, s3, v9")
            A("v_lshrrev_b32 v10, 3, v1")
            A(f"s_mov_b32 s57, {W_F1}")
            A(f"s_cmp_eq_u32 {TY}, 2")
            A(f"s_cbranch_scc1 {N}_f1g")
            A(f"s_lshl_b32 s3, {NT}, 2")
            A("s_lshr_b32 s91, 0x7520, s3")
            A("s_and_b32 s91, s91, 15")
            A("v_add_u32 v10, s91, v10")
            A("s_lshr_b32 s91, 0x1343, s3")
            A("s_and_b32 s91, s91, 15")
            A("s_lshl_b32 s91, s91, 3")
            A("s_bfm_b64 s[92:93], s91, 0")
            A("s_mov_b32 s91, s92")
            A(f"s_mul_i32 s3, {TY}, 7")
            A("v_cmp_eq_u32 vcc, 7, v10")
            A("v_add_u32 v10, s3, v10")
            A(f"s_add_u32 s3, {TY}, 14")
            A("v_mov_b32 v13, s3")
            A("v_cndmask_b32 v10, v10, v13, vcc")
            A(f"s_branch {N}_f1x")
            A.label(f"{N}_f1g")
            A("v_bfe_u32 v13, v1, 1, 1")
            A("v_cmp_gt_u32 vcc, 16, v1")
            if g2p and g2p[0] == 0:
                assert rot2[1] == 8 and rot2[3] == 1 and not rblk
                tb_ = 0
                for nt_ in range(8):
                    for st in range(4):
                        tb_ |= (1 << (((st + nt_) & 7) >> 1)) << (4 * nt_)
                A(f"s_lshl_b32 s3, {NT}, 2")
                A(f"s_lshr_b32 s91, {hex(tb_)}, s3")
                A("s_and_b32 s91, s91, 15")
                A("s_mul_i32 s91, s91, 0x101")
            else:
                A(f"s_mov_b32 s91, {hex(g2p[0]) if g2p else '0xfffff'}")
            A("v_cndmask_b32 v10, v13, v10, vcc")
            A(f"s_lshl_b32 s3, {NT}, 1")
            A("v_add_u32 v10, s3, v10")
            A("v_and_b32 v13, 1, v1")
            A(f"s_lshl_b32 s3, {TT}, 1")
            A("v_add_u32 v13, s3, v13")
            A("v_cndmask_b32 v9, v13, v9, vcc")
            A.label(f"{N}_f1x")
            A("v_lshl_add_u32 v9, v9, 4, v10")
            A(f"v_lshlrev_b32 v9, {8 if ey else 7}, v9")
            if g2p:
                assert not (qpf or qpre or ppf or qreg)
                A("v_mov_b32 v13, v9")
                A(f"s_cmp_eq_u32 {W}, 0")
                A(f"s_cbranch_scc0 {N}_lw1")
        if ey:
            A(f"s_cmp_eq_u32 {TY}, 2")
            A(f"s_cbranch_scc1 {N}_lo0")
            def lwait(tag, n):
                A.label(f"{N}_{tag}0")
                A("ds_read_b32 v10, v12 offset:4")
                A("s_sub_u32 s18, s18, 1")
                A("s_waitcnt lgkmcnt(0)")
                A("v_readfirstlane_b32 s3, v10")
                A(f"s_cmp_ge_u32 s3, {n}")
                A(f"s_cbranch_scc1 {N}_{tag}1")
                A("s_sleep 1")
                A("s_cmp_gt_i32 s18, 0")
                A(f"s_cbranch_scc1 {N}_{tag}0")
                A.label(f"{N}_{tag}1")
            lwait("ya", eyt[0])
            A(f"s_mov_b32 s18, {SPIN}")
            A(f"s_mov_b32 exec_lo, s91")
            A(f"s_mov_b32 exec_hi, 0")
            A.label(f"{N}_yp0")
            A(f"buffer_load_dwordx4 v[16:19], v9, s[{SWS}:{SWS+3}], s57 offen offset:128 sc1")
            A("s_waitcnt vmcnt(0)")
            A("v_min_u32 v10, v16, v17")
            A("v_min3_u32 v10, v10, v18, v19")
            A("v_cmp_eq_u32 vcc, 0, v10")
            A("s_sub_u32 s18, s18, 1")
            A("s_cmp_eq_u64 vcc, 0")
            A(f"s_cbranch_scc1 {N}_yp1")
            A(f"s_sleep {psleep}")
            A("s_cmp_gt_i32 s18, 0")
            A(f"s_cbranch_scc1 {N}_yp0")
            A.label(f"{N}_yp1")
            A("s_mov_b64 exec, -1")
            G(11)
            A(f"s_mov_b32 s18, {SPIN << 4}")
            if eyt[1]:
                lwait("yb", eyt[1])
            A(f"s_branch {N}_lp1")
        if own_wait:
            A.label(f"{N}_lo0")
            A("ds_read_b32 v10, v12")
            A("s_sub_u32 s18, s18, 1")
            A("s_waitcnt lgkmcnt(0)")
            A("v_readfirstlane_b32 s3, v10")
            A("s_cmp_eq_u32 s3, 4")
            A(f"s_cbranch_scc1 {N}_lo1")
            A("s_sleep 1")
            A("s_cmp_gt_i32 s18, 0")
            A(f"s_cbranch_scc1 {N}_lo0")
            A.label(f"{N}_lo1")
        A(f"s_mov_b32 s18, {SPIN}")
        if pull1:
            A(f"s_mov_b32 exec_lo, s91")
            A(f"s_mov_b32 exec_hi, 0")
        else:
            A(f"s_lshl_b32 s3, {NT}, 2")
            A("s_lshr_b32 s57, 0x1343, s3")
            A("s_and_b32 s57, s57, 15")
            A("s_lshl_b32 s57, s57, 3")
            A(f"s_cmp_eq_u32 {TY}, 2")
            A("s_cselect_b32 s57, 20, s57")
            A("s_sub_u32 s57, s57, 1")
            A("v_min_u32 v9, s57, v1")
            A("v_lshlrev_b32 v9, 2, v9")
            A(f"s_lshl_b32 s57, {JOB}, 10")
            A(f"s_add_u32 s57, s57, {W_F1}")
        A.label(f"{N}_lp0")
        A(f"buffer_load_dword v10, v9, s[{SWS}:{SWS+3}], s57 offen sc1")
        A("s_waitcnt vmcnt(0)")
        A("v_cmp_eq_u32 vcc, 0, v10")
        A("s_sub_u32 s18, s18, 1")
        A("s_cmp_eq_u64 vcc, 0")
        A(f"s_cbranch_scc1 {N}_lp1")
        if psleep:
            A(f"s_sleep {psleep}")
        A("s_cmp_gt_i32 s18, 0")
        A(f"s_cbranch_scc1 {N}_lp0")
        A.label(f"{N}_lp1")
        if pull1:
            A("s_mov_b64 exec, -1")
        for _ in range(dly1):
            A("s_sleep 16")
        A("v_mov_b32 v10, 2")
        A("ds_write_b32 v8, v10")
        A(f"s_branch {N}_lgo")
        A.label(f"{N}_lw1")
        A("ds_read_b32 v10, v8")
        A("s_sub_u32 s18, s18, 1")
        A("s_waitcnt lgkmcnt(0)")
        A("v_readfirstlane_b32 s3, v10")
        A("s_cmp_eq_u32 s3, 2")
        A(f"s_cbranch_scc1 {N}_lgo")
        A("s_sleep 1")
        A("s_cmp_gt_i32 s18, 0")
        A(f"s_cbranch_scc1 {N}_lw1")
        A.label(f"{N}_lgo")
        G(2)
        A("v_and_b32 v12, 0x330, v14")
        A("v_bfe_u32 v9, v1, 2, 1")
        A("v_lshl_add_u32 v12, v9, 7, v12")
        A("v_bfe_u32 v9, v1, 3, 1")
        A("v_lshl_add_u32 v12, v9, 12, v12")
        A(f"v_add_u32 v12, {LDST}, v12")
        A(f"v_add_u32 v9, 65536, v12")
        A(f"s_cmp_eq_u32 {TY}, 2")
        A(f"s_cbranch_scc1 {N}_lg")
        KP = "s55"
        def p2_loader(isg):
            vm = Cnt(A, "vmcnt", 63)
            paux = pauxg if isg else pauxy
            if rot2:
                curB[0] = rot2[1] if isg else rot2[0]
                if rblk:
                    curL[0] = rblk[1 if isg else 0]
            if ylate and not isg:
                A(f"s_sleep {ylate}")
            def p_issue(st):
                if rot2:
                    A(f"s_add_u32 s18, {KO}, {st*128}")
                    A(f"s_and_b32 s18, s18, {blk(st)[1]}")
                    A(f"s_lshl_b32 s18, s18, 7")
                    A(f"s_add_u32 s18, s18, {PB}")
                for m in range(4):
                    A(f"s_add_u32 m0, {LDST}, {PSL[st & 3] + m*4096}")
                    if rot2:
                        A(f"s_add_u32 s3, s18, {blk(st)[0]*16384 + m*4096}")
                    else:
                        A(f"s_add_u32 s3, {PB}, {(st % 4 if 'P' in dbgm else st)*16384 + m*4096}")
                    A(f"buffer_load_dwordx4 v14, s[{SWS}:{SWS+3}], s3 offen {paux} lds")
                    vm.op(st)
            def z1_write(h):
                for wj in range(2):
                    for m in range(4):
                        A(f"ds_write_b128 {'v9' if wj else 'v12'}, {v(ZR1 + 4*(wj*8 + 4*h + m), 4)} offset:{(2-h)*16384 + (m&2)*4096 + (m&1)*64}")
            if isg and g2p:
                assert pairp and not rblk
                def have(n):
                    m_ = g2p[0]
                    for ia, ca, mk in g2p[1]:
                        if ca <= n:
                            m_ |= mk
                    return m_
                Bg_ = curB[0]
                for st in range(16):
                    at = -1 if st < 3 else (0 if st == 3 else (st - 2) & ~1)
                    b0 = st & ~(Bg_ - 1)
                    need = 0
                    for r in range(b0 // 2, (b0 + Bg_) // 2):
                        need |= 0x101 << r
                    assert have(at) & need == need or (g2p[0] == 0 and st < 4), (st, at)
                assert have(min(z1s)) & 0xf0000 == 0xf0000
            for s_ in range(3):
                if q_at[s_] == "p":
                    q_issue(s_, vm, s_)
                p_issue(s_)
            q_rload("p", vm)
            wrote = False
            for n in range(17):
                if wrote:
                    A("s_waitcnt lgkmcnt(0)")
                    wrote = False
                vm.need(n)
                if n == 16:
                    vm.need("stg")
                if n == 0:
                    G(3)
                if n == 16:
                    G(4)
                A("s_barrier")
                if 1 <= n <= 13:
                    if n + 2 in qreg:
                        q_write(n + 2, vm)
                        wrote = True
                    else:
                        q_issue(n + 2, vm, n + 2)
                if isg and g2p:
                    for ci, (ia, ca, mk) in enumerate(g2p[1]):
                        if ca == n:
                            L = f"{N}_g2c{ci}"
                            vm.need(("fl", ci))
                            A(f"s_mov_b32 exec_lo, {hex(mk)}")
                            A("s_mov_b32 exec_hi, 0")
                            A(f"v_cmp_eq_u32 vcc, 0, v{16+ci}")
                            A(f"s_mov_b32 s18, {SPIN}")
                            A(f"s_mov_b32 s3, {W_F1}")
                            A("s_cmp_eq_u64 vcc, 0")
                            A(f"s_cbranch_scc1 {L}w")
                            A.label(f"{L}p")
                            A(f"buffer_load_dword v{16+ci}, v13, s[{SWS}:{SWS+3}], s3 offen sc1")
                            A("s_waitcnt vmcnt(0)")
                            A(f"v_cmp_eq_u32 vcc, 0, v{16+ci}")
                            A("s_sub_u32 s18, s18, 1")
                            A("s_cmp_eq_u64 vcc, 0")
                            A(f"s_cbranch_scc1 {L}w")
                            A("s_sleep 2")
                            A("s_cmp_gt_i32 s18, 0")
                            A(f"s_cbranch_scc1 {L}p")
                            A.label(f"{L}w")
                            A("s_mov_b64 exec, -1")
                if pairp:
                    if n == 0:
                        p_issue(3)
                    elif n % 2 == 0 and n <= 12:
                        p_issue(n + 2)
                        p_issue(n + 3)
                elif n <= 12:
                    p_issue(n + 3)
                q_rload(n, vm)
                if isg and g2p:
                    for ci, (ia, ca, mk) in enumerate(g2p[1]):
                        if ia == n:
                            assert ia < ca < min(wot_at)
                            A(f"s_mov_b32 exec_lo, {hex(mk)}")
                            A("s_mov_b32 exec_hi, 0")
                            A(f"s_mov_b32 s3, {W_F1}")
                            A(f"buffer_load_dword v{16+ci}, v13, s[{SWS}:{SWS+3}], s3 offen sc1")
                            A("s_mov_b64 exec, -1")
                            vm.op(("fl", ci))
                if wst and n in (13, 14):
                    A(f"s_lshl_b32 s18, {W}, 12")
                    for i in range(4):
                        A(f"s_add_u32 m0, s18, {PSL[n-13] + i*1024}")
                        A(f"s_add_u32 s3, {WB}, {4096 + ((n-13)*4 + i)*28*1024}")
                        A(f"buffer_load_dwordx4 v14, s[{SWS}:{SWS+3}], s3 offen lds")
                        vm.op("stg")
                if qpf:
                    for q in ([n + qpf] if n else range(3, qpf + 1)):
                        if q <= 15 and q not in qpre:
                            q_touch(q, vm)
                if ppf and n % 2 == 0 and n + ppf + 1 <= 15:
                    st = n + ppf
                    assert (st & ~(curB[0]-1)) == ((st + 1) & ~(curB[0]-1))
                    A(f"s_lshr_b32 s3, {W}, 1")
                    A(f"s_lshl_b32 s3, s3, 7")
                    A(f"s_add_u32 s18, {KO}, s3")
                    A(f"s_add_u32 s18, s18, {st*128}")
                    A("s_and_b32 s18, s18, s55")
                    A(f"s_lshl_b32 s18, s18, 7")
                    A(f"s_add_u32 s18, s18, {PB}")
                    A(f"s_sub_u32 s18, s18, {LDST}")
                    A(f"s_and_b32 s3, {W}, 1")
                    A(f"s_lshl_b32 s3, s3, 13")
                    A(f"s_add_u32 s3, s3, s18")
                    A(f"s_add_u32 s3, s3, {(st & ~(curB[0]-1))*16384}")
                    A(f"buffer_load_dword v10, v13, s[{SWS}:{SWS+3}], s3 offen")
                    vm.op("pf")
                if isg:
                    per = 16 // len(z1s)
                    for i, at in enumerate(z1s):
                        if at == n:
                            z1_loads(range(per*i, per*i+per), vm)
                for i, at in enumerate(wot_at):
                    if at == n:
                        wot_loads(i, vm)
                if p3n and n == wtch:
                    A(f"s_bfe_u32 s3, {RANK}, 0x30002")
                    A(f"s_mul_i32 s3, s3, {28*1024}")
                    A(f"s_add_u32 s3, s3, {WB}")
                    A("v_lshlrev_b32 v2, 7, v1")
                    A("s_add_u32 s3, s3, 4096")
                    A("s_mov_b64 exec, 0xffffff")
                    A(f"buffer_load_dword v10, v2, s[{SWS}:{SWS+3}], s3 offen")
                    A("s_mov_b64 exec, -1")
                    vm.op("ipf")
                if tlbw is not None and n == tlbw[0]:
                    md = tlbw[2] if len(tlbw) > 2 else "yo"
                    ls = tlbw[3] if len(tlbw) > 3 else 18
                    if "y" in md:
                        A(f"v_lshlrev_b32 v2, {ls}, v1")
                        A(f"s_mov_b32 s3, {tlbw[4] if len(tlbw) > 4 else W_Y}")
                        if "w" in md:
                            A(f"s_cmp_eq_u32 {W}, 0")
                            A(f"s_cselect_b32 s3, s3, {WS_TOT2}")
                        if "q" in md:
                            A(f"s_lshl_b32 s18, {W}, {ls+6}")
                            A("s_add_u32 s3, s3, s18")
                        A(f"buffer_load_dword v3, v2, s[{SWS}:{SWS+3}], s3 offen {tlbw[1]}")
                        vm.op("ipf")
                    if "o" in md:
                        A("v_lshlrev_b32 v5, 15, v1")
                        A("s_mov_b32 s3, 0")
                        if "w" in md:
                            A(f"s_cmp_eq_u32 {W}, 0")
                            A(f"s_cselect_b32 s3, s3, {2048*1024}")
                        sr_ = SX if "x" in md else SO
                        if "1" in md:
                            A("s_mov_b64 exec, 1")
                        A(f"buffer_load_dword v4, v5, s[{sr_}:{sr_+3}], s3 offen {tlbw[1]}")
                        if "1" in md:
                            A("s_mov_b64 exec, -1")
                        vm.op("ipf")
                if ipf and n in ipf2:
                    A("v_lshlrev_b32 v2, 7, v1")
                    A(f"s_add_u32 s3, s68, {N}_{ipf2b}-{N}_pc0")
                    A(f"buffer_load_dword v10, v2, s[{SP}:{SP+3}], s3 offen")
                    vm.op("ipf")
                if p3s and n == 14:
                    lflag(0)
                    wrote = True
                if isg and n in (14, 15):
                    vm.need("z1")
                    z1_write(15 - n)
                    wrote = True
            if wst:
                A("s_barrier")
            A(f"s_branch {N}_p3l")
        PE_()
        PB_("ly")
        p2_loader(False)
        PE_()
        A.label(f"{N}_lg")
        PB_("lg")
        p2_loader(True)
        PE_()
        A.label(f"{N}_spare")
        A("s_waitcnt vmcnt(0)")
        A("s_barrier")
        if p3s:
            lflag(0)
            A("s_waitcnt lgkmcnt(0)")
            A("s_barrier")
        A("v_lshlrev_b32 v9, 7, v1")
        A(f"s_and_b32 s3, {RANK}, 1")
        A(f"s_lshl2_add_u32 s3, s3, {W}")
        A("s_lshl_b32 s3, s3, 13")
        A(f"s_add_u32 s3, s3, {WS_WOT}")
        for i in range(14):
            A(f"buffer_load_dword v8, v9, s[{SWS}:{SWS+3}], s3 offen")
            A("s_add_u32 s3, s3, 65536")
        for i in range(4):
            wot_loads(i)
        if stir:
            R_, SL_, KD_ = stir[:3]
            A("s_waitcnt vmcnt(0)")
            A(f"s_bfe_u32 s3, {RANK}, 0x20005")
            A(f"s_and_b32 s18, {RANK}, 3")
            A("s_lshl2_add_u32 s3, s3, s18")
            A(f"s_lshl2_add_u32 s3, s3, {W}")
            A("s_lshl_b32 s3, s3, 17")
            A(f"s_add_u32 s3, s3, {W_H2}")
            A(f"s_mov_b32 s18, {R_}")
            if len(stir) > 3:
                for _ in range(stir[3] // 127):
                    A("s_sleep 127")
                A(f"s_sleep {stir[3] % 127}")
            A.label(f"{N}_stir")
            if KD_ == "w":
                A(f"buffer_store_dwordx4 v[2:5], v14, s[{SWS}:{SWS+3}], s3 offen sc1")
            else:
                A(f"buffer_load_dwordx4 v[2:5], v14, s[{SWS}:{SWS+3}], s3 offen {KD_[1:]}")
            A("s_add_u32 s3, s3, 1024")
            A(f"s_sleep {SL_}")
            A("s_sub_u32 s18, s18, 1")
            A("s_cmp_lg_u32 s18, 0")
            A(f"s_cbranch_scc1 {N}_stir")
            A("s_waitcnt vmcnt(0)")
            assert R_ <= 128
        A(f"s_branch {N}_p3l")

    FR, FS, ACC, CSA, ONE = 32, 52, 136, 224, 16
    A.label(f"{N}_comp")
    if tw:
        assert tw[0] != "s" or all(tw[1:4])
        A("s_load_dwordx2 s[96:97], s[0:1], 80")
    def tlb_touch(tag):
        for wv, sr, ls in ((0, SWS, tw[1]), (1, SO, tw[2]), (2, SX, tw[3])):
            if not ls:
                continue
            A(f"s_cmp_eq_u32 s19, {wv}")
            A(f"s_cbranch_scc0 {N}_{tag}_tw{wv}")
            if len(tw) > 4:
                A(f"s_mov_b32 s3, {tw[4] if wv == 0 else 0}")
            else:
                A("s_lshr_b32 s3, s2, 3")
                A(f"s_lshl_b32 s3, s3, {6 + ls}")
                A(f"s_min_u32 s3, s3, s{sr+2}")
            A(f"v_lshlrev_b32 v240, {ls}, v1")
            A(f"buffer_load_dword v241, v240, s[{sr}:{sr+3}], s3 offen")
            A.label(f"{N}_{tag}_tw{wv}")
    A("v_and_b32 v26, 15, v1")
    A("v_lshrrev_b32 v27, 4, v1")
    STO = "s69"
    A(f"s_lshl_b32 s3, {RB}, 4")
    A(f"s_add_u32 s3, s3, {CG}")
    A(f"s_lshl_b32 {STO}, s3, 10")
    A(f"s_add_u32 {STO}, {STO}, {W_ST}")
    A("s_getreg_b32 s18, hwreg(HW_REG_XCC_ID, 0, 3)")
    A("s_add_u32 s18, s18, 1")
    A(f"s_lshl_b32 {KEY}, s18, 8")
    A("s_and_b32 s3, s2, 7")
    A("s_lshl_b32 s3, s3, 5")
    A(f"s_or_b32 {KEY}, {KEY}, s3")
    A("s_lshr_b32 s3, s2, 3")
    A(f"s_or_b32 {KEY}, {KEY}, s3")
    A("v_mov_b32 v24, s18")
    TV = "v15" if tsp else "v14"
    if tsp:
        A(f"v_lshlrev_b32 v15, {tsp}, v1")
    for i in range(4):
        A(f"v_mov_b32 v{ACC+i}, 0")
    A(f"s_and_b32 s57, {RB}, 7")
    JD, JS = 32, 48
    A("s_cmp_eq_u32 s19, 3")
    A(f"s_cbranch_scc1 {N}_j3")
    A("s_lshl1_add_u32 s48, s2, s19")
    A("s_and_b32 s3, s2, 127")
    A("s_cmp_eq_u32 s19, 2")
    A("s_cselect_b32 s48, s3, s48")
    A("s_lshl_b32 s48, s48, 12")
    A("s_waitcnt lgkmcnt(0)")
    A("s_bitcmp1_b32 s2, 7")
    A("s_cselect_b64 s[16:17], s[10:11], s[8:9]")
    A("s_cmp_eq_u32 s19, 2")
    A("s_cselect_b64 s[16:17], s[16:17], s[4:5]")
    srd(A, SW, "s16", "s17", 2048 * 1024)
    A("s_cmp_eq_u32 s19, 2")
    A(f"s_cselect_b32 s{SW+2}, {512*1024}, s{SW+2}")
    for j in range(4):
        A(f"buffer_load_dwordx4 {v(JD+4*j,4)}, v14, s[{SW}:{SW+3}], s48 offen offset:{j*1024} {saux}")
    A(f"s_branch {N}_tx")
    A.label(f"{N}_j3")
    A("s_load_dwordx2 s[16:17], s[0:1], 72")
    A(f"s_lshl_b32 s49, s2, {(8 if ey else 7) if pull1 else 10}")
    A(f"s_add_u32 s49, s49, {W_BX}")
    A("v_lshrrev_b32 v20, 3, v1")
    A("v_and_b32 v21, 7, v1")
    A("v_lshrrev_b32 v22, 5, v1")
    A("v_lshlrev_b32 v22, 1, v22")
    A("v_xor_b32 v21, v21, v22")
    A("v_xor_b32 v22, 4, v21")
    A("v_lshlrev_b32 v21, 4, v21")
    A("v_lshlrev_b32 v22, 4, v22")
    A("v_lshl_add_u32 v21, v20, 10, v21")
    A("v_lshl_add_u32 v22, v20, 10, v22")
    A("s_lshr_b32 s50, s2, 3")
    A("s_and_b32 s51, s2, 7")
    A("s_lshl_b32 s48, s50, 15")
    A("s_lshl_b32 s3, s51, 7")
    A("s_add_u32 s48, s48, s3")
    A("s_waitcnt lgkmcnt(0)")
    srd(A, SI, "s16", "s17", 896 * 1024)
    srd_ws()
    A("s_cmp_eq_u32 s2, 0")
    A(f"s_cbranch_scc0 {N}_nan")
    A(f"s_mov_b32 s3, {W_TB}")
    A(f"buffer_store_dwordx4 {v(ACC,4)}, {TV}, s[{SWS}:{SWS+3}], s3 offen sc1")
    srd(A, SDB, "s12", "s13", 256)
    A("s_mov_b64 exec, 1")
    A("s_waitcnt vmcnt(0)")
    A(f"buffer_store_dword v24, v14, s[{SDB}:{SDB+3}], 0 offen sc1")
    A("s_mov_b64 exec, -1")
    A.label(f"{N}_nan")
    for m in range(4):
        A(f"s_mov_b32 m0, {LTR + m*1024}")
        A(f"s_add_u32 s3, s48, {m*8192}")
        A(f"buffer_load_dwordx4 v{21+(m&1)}, s[{SI}:{SI+3}], s3 offen {saux} lds")
    A(f"buffer_store_dwordx4 {v(ACC,4)}, v14, s[{SWS}:{SWS+3}], {STO} offen sc1")
    A(f"s_mov_b64 exec, {'0xffff' if ey else '0xff'}")
    A(f"buffer_store_dwordx4 {v(ACC,4)}, v14, s[{SWS}:{SWS+3}], s49 offen sc1")
    if ey and not pull2:
        A("s_mov_b64 exec, 0xff")
    A(f"s_lshl_b32 s49, s2, {9 if pull2 else f2s}")
    A(f"s_add_u32 s49, s49, {W_F2}")
    if pull2:
        A("s_mov_b32 exec_lo, -1")
    A(f"buffer_store_dwordx4 {v(ACC,4)}, v14, s[{SWS}:{SWS+3}], s49 offen sc1")
    A("s_mov_b64 exec, -1")
    A("s_mul_i32 s51, s51, 112")
    A("s_add_u32 s51, s51, s50")
    A("s_lshl_b32 s51, s51, 10")
    A(f"s_add_u32 s51, s51, {WS_WOT}")
    A("s_cmp_ge_u32 s2, 224")
    A(f"s_cselect_b32 s51, {WS_TOT2}, s51")
    A.label(f"{N}_tx")
    srd(A, SX, "s4", "s5", 2048 * 1024)
    srd_ws()
    srd(A, SDB, "s12", "s13", 256)
    if tw:
        srd(A, SO, "s96", "s97", 2048 * 1024)
        if tw[0] == "s":
            tlb_touch("st")
    A("v_lshrrev_b32 v28, 2, v26")
    A("v_and_b32 v29, 3, v26")
    A("v_lshl_add_u32 v28, v28, 3, v29")
    A("s_lshl_b32 s3, s19, 5")
    A("v_add_u32 v28, s3, v28")
    A("v_lshlrev_b32 v28, 7, v28")
    A("v_bfe_u32 v29, v26, 1, 1")
    A("v_bfe_u32 v25, v26, 3, 1")
    A("v_lshl_or_b32 v29, v25, 1, v29")
    A("v_bfe_u32 v25, v26, 2, 1")
    A("v_lshl_or_b32 v29, v25, 2, v29")
    A("v_xor_b32 v29, v29, v27")
    A("v_lshl_add_u32 v2, v29, 4, v28")
    A("v_xor_b32 v3, 32, v2")
    A("v_add_u32 v3, 512, v3")
    A("v_xor_b32 v4, 64, v2")
    A("v_xor_b32 v5, 64, v3")
    A("v_bfe_u32 v29, v26, 1, 3")
    A("v_xor_b32 v29, v29, v27")
    A("v_lshlrev_b32 v28, 7, v26")
    A("v_lshl_add_u32 v6, v29, 4, v28")
    A(f"v_add_u32 v10, {LW}, v6")
    A(f"v_add_u32 v6, {LD}, v6")
    A("v_xor_b32 v7, 32, v6")
    A("v_xor_b32 v8, 64, v6")
    A("v_xor_b32 v9, 64, v7")
    A("v_xor_b32 v11, 32, v10")
    A("v_xor_b32 v12, 64, v10")
    A("v_xor_b32 v13, 64, v11")
    A(f"s_cmp_eq_u32 {ABO}, 1")
    A(f"s_cbranch_scc1 {N}_natr")
    A("v_lshrrev_b32 v28, 2, v26")
    A("v_lshl_add_u32 v28, v27, 3, v28")
    A("v_lshlrev_b32 v28, 7, v28")
    A("v_and_b32 v29, 3, v26")
    A("v_lshl_add_u32 v28, v29, 3, v28")
    A("v_bfe_u32 v29, v26, 3, 1")
    A("v_and_b32 v25, 1, v27")
    A("v_lshl_or_b32 v29, v25, 1, v29")
    A("v_xor_b32 v29, s19, v29")
    A("v_lshl_add_u32 v10, v29, 5, v28")
    A(f"v_add_u32 v10, {LW}, v10")
    for tt in range(1, 4):
        A(f"v_xor_b32 v{10+tt}, {tt*32}, v10")
    A.label(f"{N}_natr")
    for i in range(4, 96):
        A(f"v_mov_b32 v{ACC+i}, 0")
    for i in range(4):
        A(f"v_mov_b32 v{ONE+i}, 0x3f803f80")
    A("v_lshlrev_b32 v28, 2, v1")
    if pull1:
        A(f"s_lshl4_add_u32 s3, {RB}, {CG}")
        A(f"s_lshl_b32 s3, s3, {8 if ey else 7}")
        A(f"s_add_u32 s3, s3, {W_F1}")
        A("v_mov_b32 v252, s3")
        if ey:
            A("s_lshl2_add_u32 s3, s19, s3")
            A("v_mov_b32 v253, s3")
    else:
        A(f"s_mul_i32 s3, {U0}, 11")
        A("s_lshr_b32 s3, s3, 5")
        A("s_lshl_b32 s3, s3, 2")
        A("s_lshr_b32 s18, 0xA9765210, s3")
        A("s_lshr_b32 s3, 0xC9865410, s3")
        for r in ("s18", "s3"):
            A(f"s_bfe_u32 s48, {r}, 0x20002")
            A("s_lshl_b32 s48, s48, 10")
            A(f"s_and_b32 {r}, {r}, 3")
            A(f"s_lshl_b32 {r}, {r}, 5")
            A(f"s_add_u32 {r}, {r}, s48")
        A("v_mov_b32 v22, s18")
        A("v_mov_b32 v23, s3")
        A("v_cmp_gt_u32 vcc, 8, v1")
        A("v_bfe_u32 v21, v1, 2, 1")
        A("v_lshlrev_b32 v21, 17, v21")
        A("v_cndmask_b32 v22, v23, v22, vcc")
        A("v_and_b32 v23, 3, v1")
        A("v_lshl_add_u32 v21, v23, 12, v21")
        A("v_add_u32 v21, v21, v22")
        A(f"s_lshr_b32 s48, {RB}, 3")
        A(f"s_lshl1_add_u32 s3, {ISB}, s48")
        A("s_lshl_b32 s3, s3, 15")
        A("s_lshl2_add_u32 s3, s57, s3")
        A(f"s_add_u32 s3, s3, {W_F1}")
        A("v_add_u32 v252, s3, v21")
        A(f"s_lshr_b32 s49, {CG}, 1")
        A("s_lshl_b32 s49, s49, 10")
        A(f"s_add_u32 s49, s49, {W_F1 + 16384}")
        A(f"s_lshr_b32 s3, {RB}, 1")
        A("s_lshl_b32 s3, s3, 15")
        A("s_add_u32 s3, s3, s49")
        A(f"s_and_b32 s18, {CG}, 1")
        A("s_lshl3_add_u32 s3, s18, s3")
        A(f"s_and_b32 s50, {RB}, 1")
        A("s_lshl2_add_u32 s3, s50, s3")
        A("s_add_u32 s3, s3, 64")
        A("v_and_b32 v21, 1, v1")
        A("v_mul_u32_u24 v21, 7168, v21")
        A("v_cmp_gt_u32 vcc, 16, v1")
        A("v_add_u32 v21, s3, v21")
        A("v_lshlrev_b32 v22, 15, v1")
        A("v_cndmask_b32 v252, v21, v252, vcc")
        A("s_mul_i32 s3, s48, 7168")
        A("s_add_u32 s3, s3, s49")
        A("s_lshl_b32 s18, s18, 5")
        A("s_add_u32 s3, s3, s18")
        A("s_lshl2_add_u32 s3, s57, s3")
        A(f"s_sub_u32 s3, s3, {18 << 15}")
        A("v_cmp_gt_u32 vcc, 18, v1")
        A("v_add_u32 v253, s3, v22")
        A("v_cndmask_b32 v252, v253, v252, vcc")
    A("s_cmp_eq_u32 s19, 3")
    A(f"s_cbranch_scc1 {N}_k3")
    for i in range(8):
        A(f"v_mov_b32 v{JS+i}, 0")
    A("s_lshl1_add_u32 s48, s2, s19")
    A("s_lshl_b32 s48, s48, 4")
    A(f"s_add_u32 s48, s48, {W_RS}")
    A("s_lshl_b32 s49, s2, 4")
    A(f"s_add_u32 s49, s49, {W_RS + 16384}")
    A("v_mov_b32 v20, 0")
    for j in range(4):
        A(f"s_waitcnt vmcnt({3-j+(1 if tw and tw[0] == 's' else 0)})")
        for d in range(4):
            A(f"v_dot2c_f32_bf16 v{JS+j}, v{JD+4*j+d}, v{ONE}")
            A(f"v_dot2c_f32_bf16 v{JS+4+j}, v{JD+4*j+d}, v{JD+4*j+d}")
    A("s_nop 2")
    for dpp in ("quad_perm:[1,0,3,2] row_mask:0xf", "quad_perm:[2,3,0,1] row_mask:0xf", "row_half_mirror row_mask:0xf", "row_mirror row_mask:0xf",
                "row_bcast:15 row_mask:0xa", "row_bcast:31 row_mask:0xc"):
        for i in range(8):
            A(f"v_add_f32_dpp v{JS+i}, v{JS+i}, v{JS+i} {dpp} bank_mask:0xf")
    A("s_mov_b32 exec_lo, 0")
    A("s_mov_b32 exec_hi, 0x80000000")
    A("s_cmp_eq_u32 s19, 2")
    A(f"s_cbranch_scc0 {N}_k0")
    A(f"buffer_store_dwordx4 {v(JS,4)}, v20, s[{SWS}:{SWS+3}], s49 offen sc1")
    A(f"s_branch {N}_kx")
    A.label(f"{N}_k0")
    for i in range(8):
        A(f"v_mul_f32 v{JS+i}, 0x3b000000, v{JS+i}")
    for j in range(4):
        A(f"v_fma_f32 v{JS+4+j}, -v{JS+j}, v{JS+j}, v{JS+4+j}")
    for j in range(4):
        A(f"v_add_f32 v{JS+4+j}, {EPS}, v{JS+4+j}")
    for j in range(4):
        A(f"v_rsq_f32 v{JS+4+j}, v{JS+4+j}")
    A("s_add_u32 s49, s48, 8192")
    A(f"buffer_store_dwordx4 {v(JS,4)}, v20, s[{SWS}:{SWS+3}], s49 offen sc1")
    A(f"buffer_store_dwordx4 {v(JS+4,4)}, v20, s[{SWS}:{SWS+3}], s48 offen sc1")
    A(f"s_branch {N}_kx")
    A.label(f"{N}_k3")
    A("v_bfe_u32 v20, v1, 2, 2")
    A("v_lshl_add_u32 v20, v27, 2, v20")
    A("v_lshlrev_b32 v20, 7, v20")
    A(f"v_add_u32 v20, {LTR}, v20")
    A("v_and_b32 v21, 1, v1")
    A("v_lshl_add_u32 v20, v21, 3, v20")
    A("v_bfe_u32 v21, v1, 1, 1")
    A("v_lshlrev_b32 v22, 1, v27")
    for db in range(4):
        A(f"v_xor_b32 v23, {2*db}, v22")
        A("v_or_b32 v23, v23, v21")
        A(f"v_lshl_add_u32 v{JS+db}, v23, 4, v20")
    A("s_waitcnt vmcnt(3)")
    for db in range(4):
        A(f"ds_read_b64_tr_b16 {v(JD+4*db,2)}, v{JS+db}")
        A(f"ds_read_b64_tr_b16 {v(JD+2+4*db,2)}, v{JS+db} offset:2048")
    A("s_waitcnt lgkmcnt(0)")
    for db in range(4):
        if hf16:
            for d in range(4):
                t = 20 + 2 * (d & 1)
                A(f"v_lshlrev_b32 v{t}, 16, v{JD+4*db+d}")
                A(f"v_and_b32 v{t+1}, 0xffff0000, v{JD+4*db+d}")
                A(f"v_cvt_pk_f16_f32 v{JD+4*db+d}, v{t}, v{t+1}")
        A(f"s_add_u32 s3, s51, {db*28*1024}")
        A(f"buffer_store_dwordx4 {v(JD+4*db,4)}, v14, s[{SWS}:{SWS+3}], s3 offen sc1")
    A.label(f"{N}_kx")
    A("s_mov_b64 exec, -1")
    A(f"s_cmp_eq_u32 {ABO}, 1")
    A(f"s_cbranch_scc1 {N}_cab")

    def special(b, tag):
        if b == pub_at:
            A("s_waitcnt vmcnt(0)")
            A("s_cmp_eq_u32 s19, 3")
            A(f"s_cbranch_scc0 {N}_{tag}_nan")
            A(f"s_mov_b32 s18, {SPIN}")
            A.label(f"{N}_{tag}_an0")
            A("v_readfirstlane_b32 s3, v20")
            A("s_sub_u32 s18, s18, 1")
            A("s_cmp_lg_u32 s3, 0")
            A(f"s_cbranch_scc1 {N}_{tag}_nan")
            A("s_cmp_le_i32 s18, 0")
            A(f"s_cbranch_scc1 {N}_{tag}_nan")
            A(f"buffer_load_dword v20, off, s[{SDB}:{SDB+3}], 0 sc1")
            A("s_waitcnt vmcnt(0)")
            A(f"s_branch {N}_{tag}_an0")
            A.label(f"{N}_{tag}_nan")
        if b == tbl_at:
            A("s_cmp_eq_u32 s19, 3")
            A(f"s_cbranch_scc0 {N}_{tag}_ntl")
            A(f"s_mov_b32 s3, {W_TB}")
            A(f"buffer_load_dwordx4 v[20:23], {TV}, s[{SWS}:{SWS+3}], s3 offen {taux}")
            A.label(f"{N}_{tag}_ntl")
        if b == rank_at:
            A("s_cmp_eq_u32 s19, 3")
            A(f"s_cbranch_scc0 {N}_{tag}_nrk")
            A(f"s_mov_b32 s18, {SPIN}")
            A.label(f"{N}_{tag}_rk0")
            A("s_waitcnt vmcnt(0)")
            A("v_min_u32 v24, v20, v21")
            A("v_min3_u32 v24, v24, v22, v23")
            A("v_cmp_eq_u32 vcc, 0, v24")
            A("s_sub_u32 s18, s18, 1")
            A("s_cmp_eq_u64 vcc, 0")
            A(f"s_cbranch_scc1 {N}_{tag}_rk1")
            A("s_cmp_le_i32 s18, 0")
            A(f"s_cbranch_scc1 {N}_{tag}_rk1")
            A("s_sleep 2")
            A(f"s_mov_b32 s3, {W_TB}")
            A(f"buffer_load_dwordx4 v[20:23], {TV}, s[{SWS}:{SWS+3}], s3 offen sc1")
            A(f"s_branch {N}_{tag}_rk0")
            A.label(f"{N}_{tag}_rk1")
            A(f"s_mov_b32 {RANK}, 0")
            A("s_mov_b32 s48, 0")
            A("s_mov_b32 s49, 0")
            A(f"s_lshr_b32 s18, {KEY}, 8")
            for j in range(4):
                A(f"v_lshl_add_u32 v24, v{20+j}, 8, v28")
                A(f"v_cmp_gt_u32 s[50:51], s18, v{20+j}")
                A(f"v_add_u32 v24, {j}, v24")
                A(f"v_cmp_eq_u32 s[52:53], s18, v{20+j}")
                A(f"v_cmp_gt_u32 vcc, {KEY}, v24")
                A("s_bcnt1_i32_b64 s3, s[50:51]")
                A("s_add_u32 s48, s48, s3")
                A("s_bcnt1_i32_b64 s3, s[52:53]")
                A("s_add_u32 s49, s49, s3")
                A("s_bcnt1_i32_b64 s3, vcc")
                A(f"s_add_u32 {RANK}, {RANK}, s3")
            A("s_and_b32 s48, s48, 31")
            A("s_xor_b32 s49, s49, 32")
            A("s_or_b32 s48, s48, s49")
            A("s_cmp_eq_u32 s48, 0")
            A(f"s_cselect_b32 s3, {0 if (nofast or gmap) else 256}, 0")
            A(f"s_or_b32 {RANK}, {RANK}, s3")
            A(f"v_mov_b32 v20, {RANK}")
            for j in range(3):
                A(f"v_mov_b32 v{21+j}, 0")
            A(f"v_mov_b32 v24, {LMISC}")
            A("ds_write_b128 v24, v[20:23]")
            A("s_waitcnt lgkmcnt(0)")
            A.label(f"{N}_{tag}_nrk")

    def after(b, tag):
        if tw and b == tw[0]:
            tlb_touch(tag)
        if b == pub_at - 1:
            A("s_cmp_eq_u32 s19, 3")
            A(f"s_cbranch_scc0 {N}_{tag}_nal")
            A(f"buffer_load_dword v20, off, s[{SDB}:{SDB+3}], 0 sc1")
            A.label(f"{N}_{tag}_nal")
        if b == pub_at:
            A("s_cmp_eq_u32 s19, 3")
            A(f"s_cbranch_scc0 {N}_{tag}_npb")
            if relx:
                A("v_readfirstlane_b32 s18, v20")
                A(f"s_lshr_b32 s3, {KEY}, 8")
                A("s_sub_u32 s3, s3, s18")
                A("s_and_b32 s3, s3, 7")
                A("s_add_u32 s3, s3, 1")
                A("v_mov_b32 v24, s3")
                A("s_lshl_b32 s3, s3, 8")
                A(f"s_and_b32 {KEY}, {KEY}, 255")
                A(f"s_or_b32 {KEY}, {KEY}, s3")
            if tsp:
                A(f"s_bfe_u32 s3, {KEY}, 0x60002")
                A(f"s_lshl_b32 s3, s3, {tsp}")
                A(f"s_and_b32 s18, {KEY}, 3")
                A("s_lshl2_add_u32 s3, s18, s3")
            else:
                A(f"s_and_b32 s3, {KEY}, 255")
                A("s_lshl_b32 s3, s3, 2")
            A(f"s_add_u32 s3, s3, {W_TB}")
            A("s_mov_b64 exec, 1")
            A(f"buffer_store_dword v24, off, s[{SWS}:{SWS+3}], s3 sc1")
            A("s_mov_b64 exec, -1")
            A.label(f"{N}_{tag}_npb")

    def p1_compute(ztype):
        tag = "cz" if ztype else "cab"
        A.label(f"{N}_{tag}")
        lg = Cnt(A, "lgkmcnt", 15)
        if ztype:
            tiles = [("z2", i) for i in range(4)] + [("z1", i) for i in range(4)] + [("ab", i) for i in range(3)]
        else:
            tiles = [("ab", i) for i in range(11)]
        def reads(ss):
            st, sub = ss >> 1, ss & 1
            sl = st & 3
            f = FR + FS * (ss & 1)
            r = []
            def mk(s_, t_):
                r.append((s_, t_))
            def wr(w):
                k, i = tiles[w]
                fw = f + 8 + 4 * w
                if k == "ab":
                    if ztype:
                        mk(f"ds_read_b128 {v(fw,4)}, v{6+2*sub+(i&1)} offset:{sl*6144 + i*2048}", (ss, "w", w))
                    elif i < 8:
                        mk(f"ds_read_b128 {v(fw,4)}, v{10+2*sub+(i&1)} offset:{sl*16384 + i*2048}", (ss, "w", w))
                    else:
                        mk(f"ds_read_b128 {v(fw,4)}, v{6+2*sub+(i&1)} offset:{sl*6144 + (i-8)*2048}", (ss, "w", w))
                else:
                    o = sl * 16384 + (8192 if k == "z1" else 0) + sub * 4096
                    mk(f"ds_read_b64_tr_b16 {v(fw,2)}, v{10+i} offset:{o}", (ss, "w", w))
                    mk(f"ds_read_b64_tr_b16 {v(fw+2,2)}, v{10+i} offset:{o+512}", (ss, "w", w))
            mk(f"ds_read_b128 {v(f,4)}, v{2+2*sub} offset:{sl*16384}", (ss, "x", 0))
            wr(0)
            mk(f"ds_read_b128 {v(f+4,4)}, v{3+2*sub} offset:{sl*16384}", (ss, "x", 1))
            for w in range(1, len(tiles)):
                wr(w)
            return r
        def accof(w, T):
            k, i = tiles[w]
            if k == "z1":
                return ACC + 32 + (T * 4 + i) * 4
            return ACC + (w * 2 + T) * 4
        ml = []
        for w in range(len(tiles)):
            ml += [(w, 0), (w, 1)]
            if ztype and w in (0, 4):
                ml.append((w, "c"))
        def mf(ss, idx):
            f = FR + FS * (ss & 1)
            w, T = ml[idx]
            wa = v(f + 8 + 4 * w, 4)
            lg.need((ss, "w", w))
            if T == "c":
                c = CSA + (4 if w else 0)
                A(f"v_mfma_f32_16x16x32_bf16 {v(c,4)}, {v(ONE,4)}, {wa}, {v(c,4)}")
                return
            lg.need((ss, "x", T))
            ac = accof(w, T)
            xa = v(f + 4 * T, 4)
            if tiles[w][0] == "z1":
                A(f"v_mfma_f32_16x16x32_bf16 {v(ac,4)}, {wa}, {xa}, {v(ac,4)}")
            else:
                A(f"v_mfma_f32_16x16x32_bf16 {v(ac,4)}, {xa}, {wa}, {v(ac,4)}")
        nm = len(ml)
        PB_(tag, 4)
        special(0, tag)
        if stamp:
            st2(A, 1)
        A("s_barrier")
        after(0, tag)
        if stamp:
            st2(A, 2)
            lg.all()
        for s_, t_ in reads(0):
            A(s_); lg.op(t_)
        for ss in range(16):
            nxt = reads(ss + 1) if ss < 15 else []
            first = 0
            if ss & 1:
                first = 4
            ri = 0
            for i in range(nm):
                mf(ss, i)
                if (ss & 1) and i == 3 and ss < 15:
                    lg.all()
                    special((ss >> 1) + 1, tag)
                    A("s_barrier")
                    after((ss >> 1) + 1, tag)
                    if stamp:
                        st2(A, 2 + (ss >> 1) + 1)
                        lg.all()
                if i >= first - 1:
                    slots = nm - 1 - i
                    rem = len(nxt) - ri
                    k = 1 if rem <= slots else rem - slots
                    k = min(max(k, 1), 2) if slots > 0 else rem
                    for _ in range(min(k, rem)):
                        A(nxt[ri][0]); lg.op(nxt[ri][1]); ri += 1
            assert ri == len(nxt)
        if stamp:
            st2(A, 10)
        E(1)
        PE_()
        PB_("e" + tag)
        RQ = FR
        CZ = 48
        AC = 56
        ZR = 80
        ZC = 84
        TT = 100
        SS = 116
        nab = 3 if ztype else 11
        w0 = 8 if ztype else 0
        A("s_lshl_b32 s3, s19, 7")
        A(f"s_add_u32 s3, s3, {LRM}")
        A("v_lshl_add_u32 v28, v27, 5, s3")
        A(f"v_lshlrev_b32 v25, 2, v26")
        if ztype:
            A("s_lshl_b32 s18, s19, 6")
            A(f"s_add_u32 s18, s18, {LCSW}")
            A("v_add_u32 v24, s18, v25")
            A("v_lshl_add_u32 v23, v27, 4, s18")
            A("v_lshrrev_b32 v22, 2, v26")
            A("v_and_b32 v21, 3, v26")
            A("v_lshl_add_u32 v22, v22, 3, v21")
            A("v_lshl_add_u32 v22, v22, 2, s3")
            A(f"v_mov_b32 v30, {f32(C1)}")
            A(f"v_mov_b32 v31, {f32(C0)}")
            A(f"ds_write_b32 v24, v{CSA}")
            A(f"ds_write_b32 v24, v{CSA+4} offset:256")
        A(f"s_lshl_b32 s48, {RB}, 2")
        A("s_add_u32 s48, s48, s19")
        A("s_lshl_b32 s49, s48, 13")
        A(f"s_mul_i32 s50, {ISB}, {WS_B - WS_A}")
        A("s_add_u32 s50, s50, s49")
        A(f"s_add_u32 s50, s50, {WS_A}")
        A("s_waitcnt lgkmcnt(0)")
        A("s_barrier")
        E(2)
        if est:
            A("s_waitcnt lgkmcnt(0)")
        for h in range(2):
            A(f"ds_read_b128 {v(RQ+4*h,4)}, v28 offset:{h*16}")
            A(f"ds_read_b128 {v(RQ+8+4*h,4)}, v28 offset:{512+h*16}")
        def czr():
            for i in range(4):
                A(f"v_xor_b32 v21, {i*64}, v24")
                A(f"ds_read_b32 v{CZ+2*i}, v21")
        if ztype and not ey:
            czr()
        A(f"v_add_u32 v25, {LCSD}, v25")
        for i in range(nab):
            A(f"ds_read_b32 v{AC+2*i}, v25 offset:{i*64}")
        if ztype and ey:
            czr()
        if ztype:
            for T in range(2):
                A(f"ds_read2_b32 {v(ZR+2*T,2)}, v22 offset0:{4*T} offset1:{128+4*T}")
            for i in range(4):
                A(f"v_xor_b32 v21, {i*64}, v23")
                A(f"ds_read_b128 {v(ZC+4*i,4)}, v21 offset:256")

        def fold(ac, cs, RR=RQ):
            for d in range(4):
                A(f"v_pk_fma_f32 {v(ac+2*d,2)}, {v(RQ+8+2*d,2)}, {v(cs,2)}, {v(ac+2*d,2)} op_sel_hi:[1,0,1] neg_lo:[0,1,0] neg_hi:[0,1,0]")
            for d in range(4):
                A(f"v_pk_mul_f32 {v(ac+2*d,2)}, {v(ac+2*d,2)}, {v(RR+2*d,2)}")
        def gelu(ac, tm):
            pr = [ac, ac + 2, ac + 4, ac + 6]
            for i, r in enumerate(pr):
                A(f"v_pk_mul_f32 {v(tm+2*i,2)}, {v(r,2)}, {v(r,2)}")
            for i, r in enumerate(pr):
                A(f"v_pk_fma_f32 {v(tm+2*i,2)}, {v(tm+2*i,2)}, v[30:31], v[30:31] op_sel:[0,0,1] op_sel_hi:[1,0,1]")
            for i, r in enumerate(pr):
                A(f"v_pk_mul_f32 {v(tm+2*i,2)}, {v(tm+2*i,2)}, {v(r,2)}")
            for i in range(8):
                A(f"v_exp_f32 v{tm+i}, v{tm+i}")
            for i, r in enumerate(pr):
                A(f"v_pk_add_f32 {v(tm+2*i,2)}, {v(tm+2*i,2)}, 1.0 op_sel_hi:[1,0]")
            for i in range(8):
                A(f"v_rcp_f32 v{tm+i}, v{tm+i}")
            for i, r in enumerate(pr):
                A(f"v_pk_mul_f32 {v(r,2)}, {v(tm+2*i,2)}, {v(r,2)}")
        def cvt(ac):
            for d in range(4):
                A(f"v_cvt_pk_bf16_f32 v{ac+d}, v{ac+2*d}, v{ac+2*d+1}")
        RA = SS if ey else RQ
        def aflag():
            A("s_mov_b64 exec, 1")
            A(f"buffer_store_dword v{ONE}, v253, s[{SWS}:{SWS+3}], 0 offen offset:128 sc1")
            A("s_mov_b64 exec, -1")
        def tick(n=1):
            A(f"v_mov_b32 v21, {LMISC + 12}")
            A(f"v_mov_b32 v20, {n}")
            A("s_mov_b64 exec, 1")
            A("ds_add_u32 v21, v20")
            A("s_mov_b64 exec, -1")
        def ab_epi():
            A(f"s_lshl_b32 s3, {ISB}, 31")
            for i in range(8):
                A(f"v_xor_b32 v{RA+i}, s3, v{RQ+i}")
            for i in range(nab):
                ac = accof(w0 + i, 0)
                A(f"s_add_u32 s3, {U0}, {i}")
                A("s_lshr_b32 s18, s3, 3")
                A("s_lshl_b32 s18, s18, 19")
                A("s_and_b32 s3, s3, 7")
                A("s_lshl_b32 s3, s3, 10")
                A("s_add_u32 s3, s3, s18")
                A("s_add_u32 s3, s3, s50")
                fold(ac, AC + 2 * i, RA)
                cvt(ac)
                if "A" not in dbgm:
                    A(f"buffer_store_dwordx4 {v(ac,4)}, v14, s[{SWS}:{SWS+3}], s3 offen {st_aux}")
        def flag():
            L = f"{N}_{tag}_fl"
            A("ds_add_rtn_u32 v20, v21, v20")
            A("s_waitcnt lgkmcnt(0)")
            A("v_readfirstlane_b32 s3, v20")
            if not pull1:
                A(f"s_mov_b32 exec_lo, {'0x3ffffff' if ztype else '0xffff'}")
            A("s_cmp_eq_u32 s3, 3")
            A(f"s_cbranch_scc0 {L}")
            A(f"buffer_store_dword v{ONE}, v252, s[{SWS}:{SWS+3}], 0 offen sc1")
            A.label(L)
            A("s_mov_b64 exec, -1")
        def flag_pre():
            A(f"v_mov_b32 v21, {LMISC + 8}")
            A("v_mov_b32 v20, 1")
            A("s_mov_b64 exec, 1")
        if not ztype:
            A("s_waitcnt lgkmcnt(0)")
            A("s_nop 4")
            ab_epi()
            if ey:
                tick(2)
            flag_pre()
            A("s_waitcnt vmcnt(0)")
            flag()
            if ey:
                aflag()
            PE_()
            return
        A("s_mov_b32 s94, 0xaaaaaaaa")
        A("s_mov_b32 s95, 0xaaaaaaaa")
        A("s_mov_b32 s96, 0xcccccccc")
        A("s_mov_b32 s97, 0xcccccccc")
        if ey:
            A("s_waitcnt lgkmcnt(10)")
            ab_epi()
        A(f"s_waitcnt lgkmcnt({6 if ey else nab + 6})")
        for i in range(4):
            if ey and i == eya:
                A("s_waitcnt vmcnt(0)")
                aflag()
            ac = accof(i, 0)
            fold(ac, CZ + 2 * i)
            gelu(ac, TT + (i & 1) * 8)
            for d in range(4):
                if i == 0:
                    A(f"v_pk_mul_f32 {v(SS+8+2*d,2)}, {v(ac+2*d,2)}, {v(ac+2*d,2)}")
                else:
                    A(f"v_pk_fma_f32 {v(SS+8+2*d,2)}, {v(ac+2*d,2)}, {v(ac+2*d,2)}, {v(SS+8+2*d,2)}")
                if i == 1:
                    A(f"v_pk_add_f32 {v(SS+2*d,2)}, {v(accof(0,0)+2*d,2)}, {v(ac+2*d,2)}")
                elif i > 1:
                    A(f"v_pk_add_f32 {v(SS+2*d,2)}, {v(SS+2*d,2)}, {v(ac+2*d,2)}")
        A("s_nop 1")
        for i in range(8):
            A(f"v_add_f32_dpp v{SS+i}, v{SS+i}, v{SS+i} row_ror:8 row_mask:0xf bank_mask:0x3")
        for i in range(8):
            A(f"v_add_f32_dpp v{SS+i}, v{SS+8+i}, v{SS+8+i} row_ror:8 row_mask:0xf bank_mask:0xc")
        for i in range(4):
            A(f"v_add_f32_dpp v{SS+i}, v{SS+i}, v{SS+i} row_half_mirror row_mask:0xf bank_mask:0x5")
        for i in range(4):
            A(f"v_add_f32_dpp v{SS+i}, v{SS+4+i}, v{SS+4+i} row_half_mirror row_mask:0xf bank_mask:0xa")
        for dpp in ("quad_perm:[1,0,3,2]", "quad_perm:[2,3,0,1]"):
            for i in range(4):
                A(f"v_add_f32_dpp v{SS+i}, v{SS+i}, v{SS+i} {dpp} row_mask:0xf bank_mask:0xf")
        A(f"v_cndmask_b32 v{SS}, v{SS}, v{SS+1}, s[94:95]")
        A(f"v_cndmask_b32 v{SS+2}, v{SS+2}, v{SS+3}, s[94:95]")
        A(f"v_cndmask_b32 v{SS}, v{SS}, v{SS+2}, s[96:97]")
        A("v_lshlrev_b32 v28, 2, v1")
        A("s_lshl_b32 s3, s19, 8")
        A(f"v_or_b32 v{SS}, 1, v{SS}")
        A("v_add_u32 v28, s3, v28")
        A(f"buffer_store_dword v{SS}, v28, s[{SWS}:{SWS+3}], {STO} offen sc1")
        if stamp:
            st2(A, 11)
        E(3)
        A("s_waitcnt lgkmcnt(0)")
        if not ey:
            ab_epi()
        elif eya > 3:
            A("s_waitcnt vmcnt(1)")
            aflag()
        E(4)
        A("s_mul_i32 s52, s48, 56")
        A(f"s_lshl_b32 s3, {CG}, 1")
        A("s_add_u32 s52, s52, s3")
        A("s_lshr_b32 s3, s19, 1")
        A("s_add_u32 s53, s52, s3")
        A("s_xor_b32 s3, s3, 1")
        A("s_add_u32 s54, s52, s3")
        A("s_lshl_b32 s53, s53, 10")
        A("s_lshl_b32 s54, s54, 10")
        A(f"s_add_u32 s53, s53, {W_Z1}")
        A(f"s_add_u32 s54, s54, {W_Z1}")
        A(f"v_add_u32 v22, 28672, v14")
        if z1cp == 2:
            A(f"v_add_u32 v23, {4*MB}, v14")
            A(f"v_add_u32 v24, {4*MB}, v22")
        A(f"s_lshl_b32 s56, {RB}, 14")
        A(f"s_add_u32 s56, s56, {W_ST}")
        for i in range(1, 4):
            A(f"s_add_u32 s{56+i}, s56, {4096*i}")
        PT, PT2 = 232, 116
        vm = Cnt(A, "vmcnt", 63)
        def polls(pt=PT):
            for c in range(14):
                A(f"buffer_load_dword v{pt+c}, v28, s[{SWS}:{SWS+3}], s{56+c//4} offen offset:{(c%4)*1024} sc1")
                vm.op(pt)
        for c in range(14):
            A(f"v_mov_b32 v{PT+c}, 0")
        A(f"s_lshr_b32 s52, {CG}, 1")
        A("s_lshl_b32 s52, s52, 19")
        A(f"s_and_b32 s3, {CG}, 1")
        A("s_lshl_b32 s3, s3, 12")
        A("s_add_u32 s52, s52, s3")
        A("s_add_u32 s52, s52, s49")
        A(f"s_add_u32 s52, s52, {WS_Z2}")
        A(f"s_mov_b32 s18, {SPIN}")
        A("s_and_b32 s3, s19, 1")
        A("s_cmp_eq_u32 s3, 0")
        for g in range(5):
            if g == pl_at[0]:
                E(5)
                polls()
            if ey and g == ey:
                tick()
            if len(pl_at) > 1 and g == pl_at[1]:
                polls(PT2)
            if g == 4:
                break
            T, e = g >> 1, g & 1
            ac = ACC + 32 + g * 8
            rm = v(ZR + 2 * T, 2)
            for i in range(4):
                r = ac + 2 * i
                cs = ZC + 4 * (2 * e + (i >> 1)) + 2 * (i & 1)
                A(f"v_pk_fma_f32 {v(r,2)}, {v(cs,2)}, {rm}, {v(r,2)} op_sel:[0,1,0] op_sel_hi:[1,1,1] neg_lo:[0,1,0] neg_hi:[0,1,0]")
            for i in range(4):
                r = ac + 2 * i
                A(f"v_pk_mul_f32 {v(r,2)}, {v(r,2)}, {rm} op_sel_hi:[1,0]")
            gelu(ac, TT + (g & 1) * 8)
            cvt(ac)
            A(f"s_cbranch_scc1 {N}_nsw{g}")
            A(f"v_swap_b32 v{ac}, v{ac+2}")
            A(f"v_swap_b32 v{ac+1}, v{ac+3}")
            A.label(f"{N}_nsw{g}")
            if "Z" in dbgm:
                continue
            A(f"buffer_store_dwordx4 {v(ac,4)}, {'v22' if T else 'v14'}, s[{SWS}:{SWS+3}], s{53+e} offen {st_aux if 'z' not in dbgm else ''}")
            vm.op("z1")
            if z1cp == 2:
                A(f"buffer_store_dwordx4 {v(ac,4)}, {'v24' if T else 'v23'}, s[{SWS}:{SWS+3}], s{53+e} offen {st_aux}")
                vm.op("z1")
        A("s_lshl_b32 s3, s19, 10")
        A("v_xor_b32 v22, s3, v14")
        E(6)
        vm.need(PT)
        E(7)
        def pcheck(lab_ok):
            A(f"v_and_b32 v21, v{PT}, v{PT+1}")
            for c in range(2, 14, 2):
                A(f"v_bitop3_b32 v21, v21, v{PT+c}, v{PT+c+1} bitop3:0x80")
            A("v_and_b32 v21, 1, v21")
            A("v_cmp_eq_u32 vcc, 0, v21")
            A("s_sub_u32 s18, s18, 1")
            A("s_cmp_eq_u64 vcc, 0")
            A(f"s_cbranch_scc1 {lab_ok}")
        if len(pl_at) > 1:
            pcheck(f"{N}_pok")
            A("s_waitcnt vmcnt(0)")
            for c in range(0, 14, 2):
                A(f"v_pk_mov_b32 {v(PT+c,2)}, {v(PT2+c,2)}, {v(PT2+c,2)} op_sel:[0,1]")
        A(f"s_branch {N}_pchk")
        A.label(f"{N}_poll")
        A("s_waitcnt vmcnt(0)")
        polls()
        A("s_waitcnt vmcnt(0)")
        A.label(f"{N}_pchk")
        pcheck(f"{N}_pok")
        A("s_cmp_gt_i32 s18, 0")
        A(f"s_cbranch_scc1 {N}_poll")
        A.label(f"{N}_pok")
        if stamp:
            st2(A, 12)
        E(8)
        if est:
            A(f"s_sub_u32 s{SREG[12]}, {SPIN}, s18")
            A(f"s_mul_i32 s{SREG[12]}, s{SREG[12]}, 100")
            A(f"s_add_u32 s{SREG[12]}, s{SREG[12]}, s{SREG[0]}")
        for c in range(3):
            A(f"v_pk_add_f32 {v(PT+2*c,2)}, {v(PT+2*c,2)}, {v(PT+6+2*c,2)}")
        A(f"v_pk_add_f32 {v(PT,2)}, {v(PT,2)}, {v(PT+12,2)}")
        A(f"v_pk_add_f32 {v(PT+2,2)}, {v(PT+2,2)}, {v(PT+4,2)}")
        A(f"v_pk_add_f32 {v(PT,2)}, {v(PT,2)}, {v(PT+2,2)}")
        inv = f32(1.0 / 896)
        A(f"v_add_f32 v{PT}, v{PT}, v{PT+1}")
        A(f"v_mul_f32 v{PT}, {inv}, v{PT}")
        A("s_nop 1")
        A(f"v_mov_b32_dpp v{PT+1}, v{PT} row_ror:8 row_mask:0xf bank_mask:0xf")
        A(f"v_fma_f32 v{PT+1}, -v{PT}, v{PT}, v{PT+1}")
        A(f"v_add_f32 v{PT+1}, {EPS}, v{PT+1}")
        A(f"v_rsq_f32 v{PT+1}, v{PT+1}")
        A("s_nop 0")
        A(f"v_mul_f32 v{PT}, -v{PT}, v{PT+1}")
        A("s_nop 0")
        for i in range(8):
            A(f"v_mov_b32_dpp v{RQ+i}, v{PT+1} row_newbcast:{i} row_mask:0xf bank_mask:0xf")
        for i in range(8):
            A(f"v_mov_b32_dpp v{RQ+8+i}, v{PT} row_newbcast:{i} row_mask:0xf bank_mask:0xf")
        for i in range(4):
            ac = accof(i, 0)
            for d in range(4):
                A(f"v_pk_fma_f32 {v(ac+2*d,2)}, {v(ac+2*d,2)}, {v(RQ+2*d,2)}, {v(RQ+8+2*d,2)}")
            cvt(ac)
            if i:
                A(f"v_xor_b32 v{22+i}, {i*1024}, v22")
            A(f"buffer_store_dwordx4 {v(ac,4)}, v{22+i}, s[{SWS}:{SWS+3}], s52 offen {st_aux}")
        E(9)
        if ey:
            tick()
        flag_pre()
        A("s_waitcnt vmcnt(0)")
        E(10)
        flag()
        E(11)
        A(f"s_branch {N}_c_p2")
        PE_()

    p1_compute(True)
    p1_compute(False)
    A.label(f"{N}_c_p2")
    if stamp or est:
        st2(A, 13)
        st2_flush(A, range(1, 14), "s19", SWS)
    if "2" not in phases:
        A.label(L_exit)
        A("s_endpgm")
        return dict(name=name, vgpr=256, sgpr=102, grid=256, block=512, lds=LDS_TOTAL)
    PB_("c2")
    G(1)
    A("s_load_dwordx2 s[96:97], s[0:1], 80")
    A(f"v_mov_b32 v8, {LMISC}")
    A("ds_read_b32 v9, v8")
    FR2, AC2, BSP, PK = 16, 112, 240, 176
    WI, WJ, FL2, CN2, PT_, PO_ = "s56", "s57", "s68", "s69", "s54", "s55"
    A(f"s_and_b32 {WI}, s19, 1")
    A(f"s_lshr_b32 {WJ}, s19, 1")
    A("v_bfe_u32 v17, v1, 1, 3")
    A("v_xor_b32 v16, v27, v17")
    A(f"s_lshl_b32 s3, {WJ}, 16")
    A("v_lshlrev_b32 v18, 7, v26")
    A("v_add_u32 v18, s3, v18")
    A("v_lshl_add_u32 v2, v16, 4, v18")
    A("v_xor_b32 v3, 64, v2")
    A(f"s_lshl_b32 s18, {WI}, 11")
    A("s_add_u32 s3, s3, s18")
    A("v_add_u32 v6, s3, v14")
    A(f"s_lshl_b32 s3, {WI}, 12")
    A("v_add_u32 v5, s3, v14")
    A(f"v_add_u32 v4, {PSL[0]}, v5")
    A(f"s_mov_b32 {PT_}, {hex(sum((PSL[i] >> 12) << (8*i) for i in range(4)))}")
    A(f"s_mov_b32 {PO_}, 0x80008")
    A(f"s_lshl_b32 s3, {WJ}, 8")
    A(f"s_add_u32 s3, s3, {LBS}")
    A("v_lshl_add_u32 v7, v26, 1, s3")
    for jt in range(8):
        A(f"ds_read_u16_d16_hi v{BSP+jt}, v7 offset:{jt*32}")
    A("s_waitcnt lgkmcnt(0)")
    A(f"v_readfirstlane_b32 {RANK}, v9")
    srd(A, SO, "s96", "s97", 2048 * 1024)
    A(f"s_and_b32 {RANK}, {RANK}, 255")
    p2_decode()
    A(f"s_cmp_eq_u32 {TY}, 3")
    A(f"s_cbranch_scc1 {N}_csp")
    A(f"s_lshl1_add_u32 s3, {TY}, {KH}")
    A("s_cmp_eq_u32 s3, 4")
    A("s_cselect_b32 s3, 0xffff0000, 0")
    for jt in range(8):
        A(f"v_and_b32 v{AC2+16*jt}, s3, v{BSP+jt}")
        A(f"v_and_b32 v{AC2+16*jt+1}, s3, v{BSP+jt}")
    for jt in range(8):
        for i in range(1, 8):
            A(f"v_pk_mov_b32 {v(AC2+16*jt+2*i,2)}, {v(AC2+16*jt,2)}, {v(AC2+16*jt,2)}")
    if pull2:
        A(f"s_lshl2_add_u32 {FL2}, {JOB}, s19")
        A(f"s_lshl_b32 {FL2}, {FL2}, 7")
        A(f"s_add_u32 {FL2}, {FL2}, {W_F2}")
        A(f"s_lshl1_add_u32 s49, {TY}, {KH}")
        A("s_mov_b32 s67, 1")
    else:
        A(f"s_lshl1_add_u32 {FL2}, {TT}, {WJ}")
        A(f"s_lshl_b32 {FL2}, {FL2}, {f2s+4}")
        A(f"s_lshl1_add_u32 s3, {NT}, {WI}")
        A(f"s_lshl_b32 s18, s3, {f2s}")
        A(f"s_lshl1_add_u32 s49, {TY}, {KH}")
        A("s_lshl2_add_u32 s18, s49, s18")
        A("s_add_u32 s18, s18, 112")
        A(f"s_mul_i32 s48, {KH}, 14")
        A("s_add_u32 s3, s3, s48")
        A("s_lshl_b32 s3, s3, 2")
        A(f"s_cmp_eq_u32 {TY}, 2")
        A("s_cselect_b32 s3, s3, s18")
        A("s_mov_b32 s67, 0x101")
        A("s_cselect_b32 s67, 0xffff, s67")
        A(f"s_add_u32 {FL2}, {FL2}, s3")
        A(f"s_add_u32 {FL2}, {FL2}, {W_F2}")
    ysz = 4 * yps if yps >= 128 * ynb * KB else 128 * ynb * KB
    hsz = 2 * hps if hps >= 128 * hnb * KB else 128 * hnb * KB
    assert yps >= 128 * ynb * KB or (yps >= 16 * KB and 4 * yps <= ynb * KB)
    assert hps >= 128 * hnb * KB or (hps >= 28 * KB and 2 * hps <= hnb * KB)
    assert W_Y + ysz <= W_H and W_H + hsz <= WS_TOT2 and z1cp != 2
    A(f"s_mul_i32 s49, s49, {yps}")
    A(f"s_add_u32 s49, s49, {W_Y}")
    A(f"s_mul_i32 s3, {KH}, {hps}")
    A(f"s_add_u32 s3, s3, {W_H}")
    A(f"s_cmp_eq_u32 {TY}, 2")
    A("s_cselect_b32 s49, s3, s49")
    A(f"s_cselect_b32 s18, {hnb}, {ynb}")
    A(f"s_lshl1_add_u32 s48, {TT}, {WJ}")
    A("s_lshl3_add_u32 s48, s48, 7")
    A("s_mul_i32 s48, s48, s18")
    A(f"s_lshl2_add_u32 s48, {NT}, s48")
    A(f"s_lshl1_add_u32 s48, {WI}, s48")
    A("s_lshl_b32 s48, s48, 10")
    A("s_add_u32 s48, s48, s49")
    A("s_lshl_b32 s49, s18, 10")
    A(f"s_mov_b32 {CN2}, 5")
    if pst:
        if pst == 1:
            A("s_mov_b64 exec, 0xff")
        A("s_mov_b32 s3, s48")
        for jt in range(8):
            if pst < 3 or jt in (0, 7):
                A(f"buffer_store_dwordx4 {v(AC2,4)}, v14, s[{SWS}:{SWS+3}], s3 offen sc1")
            A("s_sub_u32 s3, s3, s49")
        A("s_mov_b64 exec, -1")
    order = [("P", 0)] + [("Q", i) for i in range(8)] + [("P", 1), ("P", 2), ("P", 3)]
    def read(sl, sub, n):
        f = FR2 + 48 * sub
        k, i = order[n]
        if k == "P":
            A(f"ds_read_b128 {v(f+4*i,4)}, v4 offset:{sub*8192 + i*1024}")
        else:
            A(f"ds_read_b128 {v(f+16+4*i,4)}, v{2+sub} offset:{sl*16384 + i*2048}")
    def mfma(sub, idx):
        f = FR2 + 48 * sub
        it, jt = idx >> 3, idx & 7
        acc = AC2 + (jt * 4 + it) * 4
        A(f"v_mfma_f32_16x16x32_bf16 {v(acc,4)}, {v(f+4*it,4)}, {v(f+16+4*jt,4)}, {v(acc,4)}")
    def z1read(b, dst):
        jt, p_ = b >> 1, b & 1
        A(f"ds_read_b128 {v(dst,4)}, v6 offset:{(1 if jt >= 4 else 2)*16384 + (jt&3)*4096 + p_*1024}")
    def stage_h(sl, last=False):
        rl = [0, 1, 2, 3, 4, 9, 10, 11]
        ml_ = [it * 8 + jt for it in range(4) for jt in range(4)]
        A("s_waitcnt lgkmcnt(0)")
        for i in range(16):
            mfma(0, ml_[i])
            if i < 8:
                read(sl, 1, rl[i])
            if i == 10 and not last:
                A(f"s_bfe_u32 s3, {PT_}, {PO_}")
                A(f"s_add_u32 {PO_}, {PO_}, 8")
                A("v_lshl_add_u32 v4, s3, 12, v5")
        A("s_waitcnt lgkmcnt(0)")
        mfma(1, ml_[0])
        mfma(1, ml_[1])
        A("s_barrier")
        for i in range(2, 16):
            mfma(1, ml_[i])
            if i - 2 < 8 and not last:
                read((sl + 1) % 3, 0, rl[i - 2])
            if last and i - 2 < 8:
                b = 15 - (i - 2)
                z1read(b, FR2 + 4 * (b - 8))
    def stage(sl, last=False):
        if "h" in dbgm:
            return stage_h(sl, last)
        A("s_waitcnt lgkmcnt(0)")
        for i in range(32):
            mfma(0, i)
            if i % 2 == 0 and i // 2 < 12:
                read(sl, 1, i // 2)
            if i == 26 and not last:
                A(f"s_bfe_u32 s3, {PT_}, {PO_}")
                A(f"s_add_u32 {PO_}, {PO_}, 8")
                A("v_lshl_add_u32 v4, s3, 12, v5")
        A("s_waitcnt lgkmcnt(0)")
        mfma(1, 0)
        mfma(1, 1)
        A("s_barrier")
        for i in range(2, 32):
            mfma(1, i)
            if i % 2 == 0 and (i - 2) // 2 < 12 and not last:
                read((sl + 1) % 3, 0, (i - 2) // 2)
            if last and i % 2 == 0 and (i - 2) // 2 < 8:
                b = 15 - (i - 2) // 2
                z1read(b, FR2 + 4 * (b - 8))
    if p3n == 4:
        assert not ctch
        cw_base()
    def ctouch():
        A("s_mov_b64 exec, 0xffffff")
        A(f"buffer_load_dword v10, v11, s[{SWS}:{SWS+3}], s59 offen")
        A("s_mov_b64 exec, -1")
    if ctch:
        A("s_mul_i32 s18, s19, 7")
        A(f"s_and_b32 s3, {RANK}, 3")
        A("s_mul_i32 s3, s3, 224")
        A("s_add_u32 s3, s3, s18")
        A("s_lshl_b32 s3, s3, 10")
        A(f"s_add_u32 s59, s3, {WS_WOT + 4096}")
        A(f"s_bfe_u32 s3, {RANK}, 0x30002")
        A(f"s_mul_i32 s3, s3, {28*1024}")
        A("s_add_u32 s59, s59, s3")
        A("v_lshlrev_b32 v11, 7, v1")
        if ctch == 9:
            ctouch()
    G(2)
    if warm:
        k_, slp, ext = warm
        def dm(n_):
            for i in range(n_):
                A(f"v_mfma_f32_16x16x32_bf16 {v(16+4*(i%8),4)}, {v(48+4*(i%4),4)}, {v(64+4*(i%8),4)}, {v(16+4*(i%8),4)}")
        A("s_mov_b32 s18, 200")
        A.label(f"{N}_wm0")
        A("ds_read_b32 v10, v8 offset:4")
        dm(k_)
        if slp:
            A(f"s_sleep {slp}")
        A("s_sub_u32 s18, s18, 1")
        A("s_waitcnt lgkmcnt(0)")
        A("v_readfirstlane_b32 s3, v10")
        A("s_cmp_eq_u32 s3, 2")
        A(f"s_cbranch_scc1 {N}_wm1")
        A("s_cmp_gt_i32 s18, 0")
        A(f"s_cbranch_scc1 {N}_wm0")
        A.label(f"{N}_wm1")
        dm(ext)
        A("s_nop 7")
        A("s_nop 7")
    A("s_barrier")
    G(3)
    for n in range(12):
        read(0, 0, n)
    A.label(f"{N}_cloop")
    for sl in range(3):
        stage(sl)
    A(f"s_sub_u32 {CN2}, {CN2}, 1")
    if 2 <= ctch <= 5:
        A(f"s_cmp_lg_u32 {CN2}, {ctch-1}")
        A(f"s_cbranch_scc1 {N}_nct")
        ctouch()
        A.label(f"{N}_nct")
    if gst:
        for k, c in ((10, 4), (11, 2), (12, 1)):
            A(f"s_cmp_lg_u32 {CN2}, {c}")
            A(f"s_cbranch_scc1 {N}_gs{k}")
            G(k)
            A("s_waitcnt lgkmcnt(0)")
            A.label(f"{N}_gs{k}")
    A(f"s_cmp_lg_u32 {CN2}, 0")
    A(f"s_cbranch_scc1 {N}_cloop")
    A.label(f"{N}_late")
    if ctch == 1:
        ctouch()
    def ep_store(b, aux=st2_aux):
        A(f"buffer_store_dwordx4 {v(PK+4*b,4)}, v14, s[{SWS}:{SWS+3}], s48 offen offset:{(b&1)*1024} {aux}")
        if b & 1 == 0 and b:
            A("s_sub_u32 s48, s48, s49")
    def stage_pe(isg):
        lg = Cnt(A, "lgkmcnt", 15)
        Q0 = lambda jt: FR2 + 16 + 4 * jt
        Q1 = lambda jt: FR2 + 64 + 4 * jt
        grp = [(0, jt) for jt in range(7, 7 - pea, -1)]
        r0 = list(range(7 - pea, -1, -1))
        for jt in range(7, -1, -1):
            grp.append((1, jt))
            if r0:
                grp.append((0, r0.pop(0)))
        slots = [(sub, jt, it) for sub, jt in grp for it in (2, 3, 0, 1)]
        gend = {g: 4 * i + 3 for i, g in enumerate(grp)}
        pool = sorted([(gend[(0, jt)], Q0(jt)) for jt in range(8)] + [(gend[(1, jt)], Q1(jt)) for jt in range(8)])
        zq, zat = {}, {}
        for i, b in enumerate(range(15, -1, -1)):
            at, q = pool[i]
            if b < 8:
                at = max(at, peb)
            zq[b] = q
            zat.setdefault(max(at, 12), []).append(b)
        rd1 = [9, 10, 11, 0] + [8 - i for i in range(8)]
        rd1 = [10, 11, 0, 9] + [8 - i for i in range(8)]
        side = []
        for jt in range(7, -1, -1):
            for b in (2 * jt + 1, 2 * jt):
                acc = AC2 + 8 * b
                e = gend[(1, jt)] + 1
                u0_ = 240 + (b & 1) * 8
                if isg:
                    side.append((e, "z", b))
                    for d in range(4):
                        side.append((e, "v", f"v_lshlrev_b32 v{u0_+2*d}, 16, v{zq[b]+d}"))
                        side.append((e, "v", f"v_and_b32 v{u0_+2*d+1}, 0xffff0000, v{zq[b]+d}"))
                side.append((e, "h", jt))
                if isg:
                    for d in range(4):
                        side.append((e, "v", f"v_pk_mul_f32 {v(acc+2*d,2)}, {v(acc+2*d,2)}, {v(u0_+2*d,2)}"))
                cv = "f16" if isg and hf16 else "bf16"
                for d in range(3, -1, -1):
                    side.append((e, "v", f"v_cvt_pk_{cv}_f32 v{PK+4*b+d}, v{acc+2*d}, v{acc+2*d+1}"))
                side.append((e, "s", b))
        mark = {}
        zdone = set()
        def emit_side(slot, budget):
            while side and side[0][0] <= slot and budget > 0:
                _, kind, p = side[0]
                if kind == "z":
                    if p not in zdone:
                        return
                    lg.need(("z", p))
                elif kind == "h":
                    gap = len(A.lines) - mark[p]
                    if gap < 10:
                        if slot < 64:
                            return
                        A(f"s_nop {10 - gap - 1 if 10 - gap - 1 <= 7 else 7}")
                        if 10 - gap - 1 > 7:
                            A("s_nop 1")
                elif kind == "v":
                    A(p)
                    budget -= 1
                else:
                    ep_store(p)
                    budget -= 1
                side.pop(0)
        A("s_waitcnt lgkmcnt(0)")
        for i, (sub, jt, it) in enumerate(slots):
            if sub == 1 and it == 2:
                lg.need(("q", jt))
            mfma(sub, it * 8 + jt)
            if sub == 1 and it == 1:
                mark[jt] = len(A.lines)
            if i < 12:
                read(0, 1, rd1[i])
                lg.op(("q", 11 - i) if i >= 4 else "p")
            if i == peb:
                lg.need(("q", 0))
                A("s_barrier")
            if isg:
                for b in zat.get(i, []):
                    z1read(b, zq[b])
                    lg.op(("z", b))
                    zdone.add(b)
            emit_side(i, 4)
        G(4)
        emit_side(64, 10000)
        assert not side
    if pe:
        assert p3n == 5
        A(f"s_cmp_eq_u32 {TY}, 2")
        A(f"s_cbranch_scc1 {N}_epg")
        stage_pe(False)
        A(f"s_branch {N}_epx")
        A.label(f"{N}_epg")
        stage_pe(True)
        cw_last = 0
    _cut2 = len(A.lines)
    stage(0, last=True)
    G(4)
    for _ in range(dly2):
        A("s_sleep 16")
    A(f"s_cmp_eq_u32 {TY}, 2")
    A(f"s_cbranch_scc1 {N}_epg")
    PE_()
    PB_("ey")
    A("s_nop 7")
    if p3n == 4:
        A("s_waitcnt lgkmcnt(0)")
        cw_at(16)
    for b in range(15, -1, -1):
        acc = AC2 + 8 * b
        for d in range(3, -1, -1):
            A(f"v_cvt_pk_bf16_f32 v{PK+4*b+d}, v{acc+2*d}, v{acc+2*d+1}")
        if "Y" not in dbgm and not ("y" in dbgm and b < 8):
            ep_store(b)
        cw_at(b)
    A(f"s_branch {N}_epx")
    PE_()
    A.label(f"{N}_epg")
    PB_("eg")
    for b in range(7, -1, -1):
        z1read(b, 48 + 4 * b)
    U = 96
    cw_at(16)
    for b in range(15, -1, -1):
        acc = AC2 + 8 * b
        z = FR2 + 4 * (b - 8) if b >= 8 else 48 + 4 * b
        if b == 15:
            A("s_waitcnt lgkmcnt(8)")
        if b == 7:
            A("s_waitcnt lgkmcnt(0)")
        u0_ = U + (b & 1) * 8
        for d in range(4):
            u = u0_ + d * 2
            A(f"v_lshlrev_b32 v{u}, 16, v{z+d}")
            A(f"v_and_b32 v{u+1}, 0xffff0000, v{z+d}")
        for d in range(4):
            u = u0_ + d * 2
            A(f"v_pk_mul_f32 {v(acc+2*d,2)}, {v(acc+2*d,2)}, {v(u,2)}")
        for d in range(3, -1, -1):
            A(f"v_cvt_pk_{'f16' if hf16 else 'bf16'}_f32 v{PK+4*b+d}, v{acc+2*d}, v{acc+2*d+1}")
        if "H" not in dbgm:
            ep_store(b)
        cw_last = cw_at(b)
    PE_()
    if pe:
        del A.lines[_cut2:]
    TB, DB = "s56", "s57"
    def p3_new(role, part=None):
        ld = role == "l"
        Wr = W if ld else "s19"
        hf = 1 if ld else 0
        nb = 4 if ld else 3
        WF = WL if ld else WC
        tg = "p3" + role
        cut0 = len(A.lines)
        if p3perm:
            A(f"s_lshr_b32 s3, {RANK}, 5")
            A("s_lshl_b32 s3, s3, 2")
            A(f"s_lshr_b32 s3, {hex(sum(p << (4*i) for i, p in enumerate(p3perm)))}, s3")
            A("s_and_b32 s3, s3, 7")
            A("s_lshl_b32 s3, s3, 5")
            A(f"s_and_b32 {RANK}, {RANK}, 31")
            A(f"s_or_b32 {RANK}, {RANK}, s3")
        A(f"s_lshr_b32 {TB}, {RANK}, 3")
        A(f"s_lshr_b32 s62, {RANK}, 2")
        A(f"s_and_b32 {DB}, {RANK}, 3")
        A(f"s_lshl1_add_u32 {DB}, {DB}, {hf}")
        A("v_and_b32 v4, 7, v0")
        A("v_bfe_u32 v5, v0, 3, 5")
        A("v_lshlrev_b32 v15, 10, v5")
        A("v_lshl_add_u32 v15, v4, 4, v15")
        A("s_lshl_b32 s60, s62, 15")
        A(f"s_lshl_b32 s3, {DB}, 7")
        A("s_add_u32 s60, s60, s3")
        if part is None:
            A(f"buffer_load_dwordx4 {v(XR,4)}, v15, s[{SX}:{SX+3}], s60 offen")
        A(f"s_bfe_u32 s61, {TB}, 0x10001")
        A("s_lshl_b32 s61, s61, 8")
        A(f"s_add_u32 s61, s61, {W_F2}")
        A(f"s_mov_b32 s18, {SPIN}")
        A(f"s_mul_i32 s63, {Wr}, 7")
        if not ld:
            A("s_add_u32 s63, s63, 4")
        A("s_lshr_b32 s3, s63, 1")
        A(f"s_add_u32 s91, s63, {6 if p3s else nb-1}")
        A("s_lshr_b32 s91, s91, 1")
        A("v_and_b32 v13, 3, v1")
        A("v_add_u32 v13, s3, v13")
        A("v_min_u32 v13, s91, v13")
        A("v_bfe_u32 v12, v1, 2, 1")
        A("v_mad_u32_u24 v12, v12, 14, v13")
        A("v_and_b32 v13, 1, v12")
        A("v_lshrrev_b32 v12, 1, v12")
        A("v_lshl_add_u32 v12, v12, 2, v13")
        A(f"s_lshr_b32 s3, {TB}, 2")
        A("s_lshl_b32 s3, s3, 7")
        A("s_add_u32 s3, s3, 64")
        A("v_add_u32 v12, s3, v12")
        A("v_lshlrev_b32 v12, 7, v12")
        A(f"s_mul_i32 s48, s62, {2*hnb}")
        A("s_add_u32 s48, s48, s63")
        A("s_lshl_b32 s48, s48, 10")
        A(f"s_add_u32 s48, s48, {W_H}")
        for i in range(1, 4):
            A(f"s_add_u32 s{48+i}, s48, {(i>>1)*hps + (i&1)*hnb*1024}")
        A(f"s_mul_i32 s90, s62, {ynb}")
        A(f"s_add_u32 s90, s90, {DB}")
        A("s_lshl_b32 s90, s90, 11")
        A(f"s_mul_i32 s3, {Wr}, {yps}")
        A("s_add_u32 s90, s90, s3")
        A(f"s_add_u32 s90, s90, {W_Y - (2048 if p3s or ly else 0)}")
        A(f"s_lshr_b32 s3, {TB}, 4")
        A(f"s_lshl2_add_u32 s3, s3, {Wr}")
        A("s_lshl_b32 s3, s3, 3")
        A(f"s_bfe_u32 s91, {TB}, 0x20002")
        A("s_add_u32 s3, s3, s91")
        A("s_lshl_b32 s3, s3, 4")
        A(f"s_and_b32 s91, {DB}, 6")
        A("s_lshl1_add_u32 s3, s91, s3")
        if p3s or ly:
            A("s_sub_u32 s3, s3, 8")
            A("v_add_u32 v13, s3, v1")
            A("v_lshlrev_b32 v13, 7, v13")
        else:
            A(f"s_add_u32 s3, s3, {hf}")
            A("s_lshl_b32 s3, s3, 7")
            A("v_mov_b32 v13, s3")
        A("v_cmp_gt_u32 vcc, 8, v1")
        A(f"s_lshr_b32 s3, {Wr}, 1")
        A(f"s_mul_i32 s91, s3, {(80 if p3s and ld else 64)*KB}")
        A("v_cndmask_b32 v12, v13, v12, vcc")
        A(f"s_and_b32 s3, {Wr}, 1")
        A("s_lshl_b32 s3, s3, 11")
        A("s_add_u32 s91, s91, s3")
        A(f"s_add_u32 s91, s91, {(48 if ld else 16)*KB}")
        if part == "setup":
            cw_base()
            return
        if part == "rest":
            del A.lines[cut0:]
            A(f"buffer_load_dwordx4 {v(XR,4)}, v15, s[{SX}:{SX+3}], s60 offen")
            A(f"s_mov_b32 s18, {SPIN}")
            for i in range(8 if wst else 0, cpo):
                cw_one(i)
            if "w" in dbgm:
                G(11)
            if cprio:
                A(f"s_setprio {cprio}")
            if not p3s:
                A(f"s_mov_b64 exec, {'0xff' if ly else '0x1ff'}")
        elif p3s and not ld:
            keep = []
            for ln in A.lines[cut0:]:
                t = ln.strip()
                if any(x in t for x in ("v12", "v13", "vcc", "s90", "s61")):
                    continue
                keep.append(ln)
            A.lines[cut0:] = keep
        else:
            A(f"s_mov_b64 exec, {'0x3ff' if p3s or ly else '0x1ff'}")
        def poll(t2, isy):
            A.label(f"{N}_{t2}p")
            A(f"buffer_load_dword v13, v12, s[{SWS}:{SWS+3}], s61 offen {paux3}")
            A("s_waitcnt vmcnt(0)")
            A("v_cmp_eq_u32 vcc, 0, v13")
            A("s_sub_u32 s18, s18, 1")
            A(("s_cmp_lt_u32 vcc_lo, 256" if p3s or ly else "s_bitcmp0_b32 vcc_lo, 8") if isy else "s_cmp_eq_u64 vcc, 0")
            A(f"s_cbranch_scc1 {N}_{t2}w")
            ps = psleep3[0 if isy else 1] if part is None else csl
            if ps:
                A(f"s_sleep {ps}")
            A("s_cmp_gt_i32 s18, 0")
            A(f"s_cbranch_scc1 {N}_{t2}p")
            A.label(f"{N}_{t2}w")
        def acc(j, it):
            return AC3 + (j * 8 + it) * 4
        ytl = [(j, e) for j in range(2) for e in (range(4) if p3s or ly else (2*hf, 2*hf+1))]
        if ly and not ld:
            ytl = []
        if p3s and not ld:
            ytl = []
            A("s_lshl_b32 s3, s19, 8")
            A(f"s_add_u32 s3, s3, {LFG}")
            A("v_lshl_add_u32 v12, v1, 2, s3")
            A.label(f"{N}_{tg}hp")
            A("ds_read_b32 v13, v12")
            A("s_sub_u32 s18, s18, 1")
            A("s_waitcnt lgkmcnt(0)")
            A("v_readfirstlane_b32 s3, v13")
            A("s_cmp_lg_u32 s3, 0")
            A(f"s_cbranch_scc1 {N}_{tg}hw")
            if lsl:
                A(f"s_sleep {lsl}")
            A(f"s_cmp_gt_i32 s18, {-64*SPIN}")
            A(f"s_cbranch_scc1 {N}_{tg}hp")
            A.label(f"{N}_{tg}hw")
        elif part == "rest":
            poll(tg + "h", False)
            A("s_mov_b64 exec, -1")
            for j, e in ytl:
                A(f"buffer_load_dwordx4 {v(acc(j, 2*e)+4,4)}, v14, s[{SWS}:{SWS+3}], s90 offen offset:{(e&1)*1024}")
                if (j, e) == ytl[len(ytl)//2 - 1]:
                    A(f"s_add_u32 s90, s90, {ynb*1024}")
        else:
            if p3s:
                A(f"s_lshl_b32 s3, {W}, 8")
                A(f"s_add_u32 s3, s3, {LFG}")
                A("v_mov_b32 v2, s3")
                A("v_mov_b32 v3, 1")
            poll(tg + "y", True)
            A("s_mov_b64 exec, -1")
            for j, e in ytl:
                A(f"buffer_load_dwordx4 {v(acc(j, 2*e)+4,4)}, v14, s[{SWS}:{SWS+3}], s90 offen offset:{(e if p3s or ly else e&1)*1024}")
                if (j, e) == ytl[len(ytl)//2 - 1]:
                    A(f"s_add_u32 s90, s90, {ynb*1024}")
            if ld:
                G(10)
            A("s_mov_b64 exec, 0xff")
            A("s_cmp_eq_u32 vcc_lo, 0")
            A(f"s_cbranch_scc1 {N}_{tg}hw")
            poll(tg + "h", False)
            if p3s:
                A("ds_write_b32 v2, v3")
            A("s_mov_b64 exec, -1")
        G(6)
        vm = Cnt(A, "vmcnt", 63)
        prs = [(k, j) for k in range(nb) for j in range(2)]
        def HB(n):
            return 144 + 8 * (n % 6)
        def pload(n):
            k, j = prs[n]
            for p_ in range(2):
                A(f"buffer_load_dwordx4 {v(HB(n)+4*p_,4)}, v14, s[{SWS}:{SWS+3}], s{48+2*p_+j} offen offset:{k*1024} {haux}")
                vm.op(n)
        for n in range(6):
            pload(n)
            if part == "rest" and n in (1, 3):
                for i in range(cpo, 24):
                    if i >> 3 == (n + 1) // 2:
                        cw_one(i)
                        vm.op(n + 1)
        xt = 24 - cpo if part == "rest" else 0
        for i_, (j, e) in enumerate(ytl):
            A(f"s_waitcnt vmcnt({12 + xt + len(ytl) - 1 - i_})")
            d0 = acc(j, 2*e)
            for d in range(4):
                A(f"v_lshlrev_b32 v{d0+2*d}, 16, v{d0+4+d}")
                A(f"v_and_b32 v{d0+2*d+1}, 0xffff0000, v{d0+4+d}")
        TP = [2, 4, 6, 12]
        def padd(n):
            a, b = HB(n), HB(n) + 4
            if hf16:
                return [f"v_pk_add_f16 v{a+d}, v{a+d}, v{b+d}" for d in range(4)]
            ops = []
            for d in range(4):
                ta, tb = TP[(d & 1) * 2], TP[(d & 1) * 2 + 1]
                ops.append([f"v_lshlrev_b32 v{ta}, 16, v{a+d}", f"v_and_b32 v{ta+1}, 0xffff0000, v{a+d}",
                            f"v_lshlrev_b32 v{tb}, 16, v{b+d}", f"v_and_b32 v{tb+1}, 0xffff0000, v{b+d}",
                            f"v_pk_add_f32 {v(ta,2)}, {v(ta,2)}, {v(tb,2)}",
                            f"v_cvt_pk_bf16_f32 v{a+d}, v{ta}, v{ta+1}"])
            seq = ops[0][:4] + ops[1][:4] + [ops[0][4], ops[1][4], ops[0][5], ops[1][5]]
            seq += ops[2][:4] + ops[3][:4] + [ops[2][4], ops[3][4], ops[2][5], ops[3][5]]
            return seq
        WA, RA = WF(0, 0), WF(1, 0)
        T0, T1 = WF(2, 0), WF(2, 0) + 1
        adr = [f"v_and_b32 v{T0}, 15, v1",
               f"v_lshrrev_b32 v{T1}, 4, v1",
               f"v_xor_b32 v{T1}, v{T1}, v{T0}",
               f"v_lshlrev_b32 v{T1}, 4, v{T1}",
               f"v_and_b32 v{T0}, 3, v1",
               f"v_lshl_add_u32 v{T1}, v{T0}, 9, v{T1}",
               f"v_bfe_u32 v{T0}, v1, 2, 2",
               f"v_lshl_add_u32 v{T1}, v{T0}, 12, v{T1}",
               f"v_add_u32 v{WA}, s91, v{T1}"] + [f"v_xor_b32 v{WA+i}, {i*64}, v{WA}" for i in range(1, 4)]
        adr += [f"v_bfe_u32 v{T0}, v0, 3, 4",
                f"v_and_b32 v{T1}, 7, v0",
                f"v_lshlrev_b32 v{T1}, 1, v{T1}",
                f"v_xor_b32 v{T1}, v{T1}, v{T0}",
                f"v_lshlrev_b32 v{T1}, 4, v{T1}",
                f"v_bfe_u32 v{T0}, v0, 3, 2",
                f"v_lshl_add_u32 v{T1}, v{T0}, 9, v{T1}",
                f"v_bfe_u32 v{T0}, v0, 5, 3",
                f"v_lshl_add_u32 v{T1}, v{T0}, 12, v{T1}",
                f"v_add_u32 v{RA}, {hf*256}, v{T1}"]
        def dsw(j, it):
            A(f"ds_write_b128 v{WA+(it&3)}, {v(acc(j,it),4)} offset:{(it>>2)*256 + j*16384}")
        NP = len(prs)
        vm.need(0)
        G(7)
        for o in padd(0):
            A(o)
        A("s_nop 1")
        for n in range(NP):
            k, j = prs[n]
            side = []
            if n + 1 < NP:
                side = padd(n + 1)
            pre = list(adr) if n == 2 else []
            for it in range(8):
                c_ = v(acc(j, it), 4) if (k > 0 or (j, it >> 1) in ytl) else "0"
                A(f"v_mfma_f32_16x16x32_{'f16' if hf16 else 'bf16'} {v(acc(j,it),4)}, {v(WF(it,k),4)}, {v(HB(n),4)}, {c_}")
                if pre:
                    per = -(-len(pre) // (8 - it))
                    for o in pre[:per]:
                        A(o)
                    pre = pre[per:]
                if it == p3t and n + 1 < NP:
                    vm.need(n + 1)
                if it >= p3t and side:
                    per = -(-len(side) // (8 - it)) if it < 7 else len(side)
                    for o in side[:per]:
                        A(o)
                    side = side[per:]
                if n == NP - 1:
                    dsw(0, it)
            if n + 6 < NP:
                pload(n + 6)
            if n + 1 < NP:
                A("s_nop 1")
        G(8)
        A(f"v_mov_b32 v2, v{RA}")
        A(f"v_xor_b32 v3, 16, v{RA}")
        A(f"v_add_u32 v4, {80*KB if p3s else 65536}, v{RA}")
        A(f"v_xor_b32 v5, 16, v4")
        for it in range(8):
            dsw(1, it)
    A.label(f"{N}_epx")
    PB_("p3")
    if p3n == 5:
        assert cpo >= 8
        if wst:
            assert pe and not p3s
            A("s_lshl_b32 s3, s19, 12")
            A(f"s_add_u32 s3, s3, {PSL[0]}")
            A("v_add_u32 v2, s3, v14")
            A(f"v_add_u32 v3, {PSL[1] - PSL[0]}, v2")
            for it in range(8):
                A(f"ds_read_b128 {v(WC(it,0),4)}, v{2 + (it >> 2)} offset:{(it & 3)*1024}")
        p3_new("c", "setup")
        A("s_waitcnt lgkmcnt(0)")
        if wst:
            A("s_barrier")
    A(f"v_lshlrev_b32 v2, {f2s}, v1")
    A("v_mov_b32 v3, 1")
    if p3n == 1:
        cw_loads()
    A("s_mov_b32 exec_lo, s67")
    A("s_mov_b32 exec_hi, 0")
    if not p3n:
        G(6)
        A("s_waitcnt vmcnt(8)")
        G(7)
    A(f"s_waitcnt vmcnt({24 if p3n == 1 else cw_last})")
    A(f"buffer_store_dword v3, v2, s[{SWS}:{SWS+3}], {FL2} offen {faux3}")
    A("s_mov_b64 exec, -1")
    G(5)
    if wbl == 1:
        A(f"s_cmp_eq_u32 {TY}, 2")
        A(f"s_cbranch_scc0 {N}_p3c")
        A("s_cmp_eq_u32 s19, 0")
        A(f"s_cbranch_scc0 {N}_p3c")
        A("buffer_wbl2 sc1")
    if p3n == 4:
        for i in range(cwm, 24):
            cw_one(i)
        if "w" in dbgm:
            G(11)
            A("s_waitcnt vmcnt(0)")
            G(12)
    A(f"s_branch {N}_{'p3c0' if p3n == 2 else 'p3c'}")
    A.label(f"{N}_csp")
    A("s_barrier")
    if p3s:
        A("s_barrier")
    A.label(f"{N}_p3c0")
    if p3n == 5:
        p3_new("c", "setup")
        if wst:
            for i in range(8):
                cw_one(i)
    elif p3n:
        cw_loads()
        if "w" in dbgm and p3n != 5:
            G(11)
            A("s_waitcnt vmcnt(0)")
            G(12)

    TB, DB = "s56", "s57"
    def p3_common():
        if p3perm:
            A(f"s_lshr_b32 s3, {RANK}, 5")
            A("s_lshl_b32 s3, s3, 2")
            A(f"s_lshr_b32 s3, {hex(sum(p << (4*i) for i, p in enumerate(p3perm)))}, s3")
            A("s_and_b32 s3, s3, 7")
            A("s_lshl_b32 s3, s3, 5")
            A(f"s_and_b32 {RANK}, {RANK}, 31")
            A(f"s_or_b32 {RANK}, {RANK}, s3")
        A(f"s_lshr_b32 {TB}, {RANK}, 3")
        A(f"s_and_b32 {DB}, {RANK}, 7")
        A("v_and_b32 v4, 7, v0")
        A("v_lshrrev_b32 v5, 3, v0")
        A("v_lshlrev_b32 v6, 10, v5")
        A("v_lshl_add_u32 v6, v4, 4, v6")
        A(f"s_lshl_b32 s60, {TB}, 16")
        A(f"s_lshl_b32 s3, {DB}, 7")
        A("s_add_u32 s60, s60, s3")
        A(f"buffer_load_dwordx4 {v(XR,4)}, v6, s[{SX}:{SX+3}], s60 offen")
        A("v_and_b32 v3, 15, v5")
        A("v_lshlrev_b32 v4, 1, v4")
        A("v_xor_b32 v4, v4, v3")
        A("v_lshlrev_b32 v4, 4, v4")
        A("v_lshl_add_u32 v4, v5, 8, v4")
        A(f"v_add_u32 v2, {RBUF[0]}, v4")
        A("v_xor_b32 v3, 16, v2")
        A(f"v_add_u32 v4, {RBUF[2]}, v4")
        A("v_xor_b32 v5, 16, v4")
        A("v_and_b32 v12, 15, v1")
        A("v_lshrrev_b32 v13, 4, v1")
        A("v_xor_b32 v13, v13, v12")
        A("v_lshlrev_b32 v13, 4, v13")
        A("v_lshl_add_u32 v7, v12, 8, v13")
        if pull2:
            A(f"s_bfe_u32 s61, {TB}, 0x10001")
            A("s_lshl_b32 s61, s61, 8")
        else:
            A(f"s_lshl_b32 s61, {RANK}, {f2s}")
        A(f"s_add_u32 s61, s61, {W_F2}")
        A(f"s_mov_b32 s18, {SPIN}")
    def p3_poll(tag):
        A.label(f"{N}_{tag}p")
        A(f"buffer_load_dword v13, v12, s[{SWS}:{SWS+3}], s61 offen {paux3}")
        A.label(f"{N}_{tag}c")
        A("s_waitcnt vmcnt(0)")
        A("v_cmp_eq_u32 vcc, 0, v13")
        A("s_sub_u32 s18, s18, 1")
        if pull2 and tag == "p3y":
            A("s_bitcmp0_b32 vcc_lo, 8")
        else:
            A("s_cmp_eq_u32 vcc_hi, 0" if tag == "p3y" else "s_cmp_eq_u64 vcc, 0")
        A(f"s_cbranch_scc1 {N}_{tag}w")
        ps = psleep if psleep3 is None else psleep3[tag == "p3l"]
        if ps:
            A(f"s_sleep {ps}")
        A("s_cmp_gt_i32 s18, 0")
        A(f"s_cbranch_scc1 {N}_{tag}p")
        A.label(f"{N}_{tag}w")
    if p3n:
        assert pull2 and not wbl
        A.label(f"{N}_p3c")
        p3_new("c", "rest" if p3n == 5 else None)
        A(f"s_branch {N}_p3f")
        A.label(f"{N}_p3l")
        p3_new("l")
        A.label(f"{N}_p3f")
        for d in range(4):
            A(f"v_lshlrev_b32 v{96+2*d}, 16, v{XR+d}")
            A(f"v_and_b32 v{96+2*d+1}, 0xffff0000, v{XR+d}")
        A("s_waitcnt lgkmcnt(0)")
        A("s_barrier")
        R = 24
        bo = [16 * KB, 18 * KB, 48 * KB, 50 * KB]
        bo = bo + ([0, 2 * KB, 48 * KB, 50 * KB] if p3s else bo)
        for w in range(8):
            for c in range(2):
                A(f"ds_read_b128 {v(R + (w*2+c)*4, 4)}, v{(2 if w < 4 else 4) + c} offset:{bo[w]}")
        for w in range(8):
            A(f"s_waitcnt lgkmcnt({14-2*w})")
            for d in range(4):
                A(f"v_pk_add_f32 {v(96+2*d,2)}, {v(96+2*d,2)}, {v(R+w*8+2*d,2)}")
        for d in range(4):
            A(f"v_cvt_pk_bf16_f32 v{8+d}, v{96+2*d}, v{96+2*d+1}")
        A(f"buffer_store_dwordx4 v[8:11], v15, s[{SO}:{SO+3}], s60 offen {oaux}")
    _cut = len(A.lines)
    A.label(f"{N}_p3c")
    p3_common()
    G(8)
    A(f"s_branch {N}_p3f")
    A.label(f"{N}_p3l")
    p3_common()
    A(f"s_mul_i32 s62, {W}, 7")
    A("s_lshr_b32 s3, s62, 1")
    A("v_bfe_u32 v12, v1, 2, 1")
    A("v_mul_u32_u24 v12, 14, v12")
    A("v_and_b32 v13, 3, v1")
    A("v_add3_u32 v12, v12, v13, s3")
    if pull2:
        A("v_and_b32 v13, 1, v12")
        A("v_lshrrev_b32 v12, 1, v12")
        A("v_lshl_add_u32 v12, v12, 2, v13")
        A(f"s_lshr_b32 s3, {TB}, 2")
        A("s_lshl_b32 s3, s3, 7")
        A("s_add_u32 s3, s3, 64")
        A("v_add_u32 v12, s3, v12")
        A("v_lshlrev_b32 v12, 7, v12")
    else:
        A("v_lshlrev_b32 v12, 2, v12")
    A(f"s_mul_i32 s48, {TB}, {4*hnb}")
    A("s_add_u32 s48, s48, s62")
    A("s_lshl_b32 s48, s48, 10")
    A(f"s_add_u32 s48, s48, {W_H}")
    if "q" in dbgm:
        A(f"s_and_b32 s3, {DB}, 1")
        A(f"s_mul_i32 s3, s3, {2*hnb*1024}")
        A("s_add_u32 s48, s48, s3")
    for i in range(1, 8):
        A(f"s_add_u32 s{48+i}, s48, {(i>>2)*hps + (i&3)*hnb*1024}")
    A(f"s_lshl_b32 s3, {W}, 3")
    A(f"s_lshr_b32 s3, {hex(sum((RBUF[i] >> 12) << (8*i) for i in range(4)))}, s3")
    A("s_and_b32 s3, s3, 255")
    A("v_lshl_add_u32 v7, s3, 12, v7")
    A(f"s_mul_i32 s90, {TB}, {2*ynb}")
    A(f"s_add_u32 s90, s90, {DB}")
    A("s_lshl_b32 s90, s90, 11")
    A(f"s_mul_i32 s3, {W}, {yps}")
    A("s_add_u32 s90, s90, s3")
    A(f"s_add_u32 s90, s90, {W_Y}")
    if pull2:
        A(f"s_lshr_b32 s3, {TB}, 4")
        A(f"s_lshl2_add_u32 s3, s3, {W}")
        A("s_lshl_b32 s3, s3, 3")
        A(f"s_bfe_u32 s91, {TB}, 0x20002")
        A("s_add_u32 s3, s3, s91")
        A("s_lshl_b32 s3, s3, 4")
        A(f"s_and_b32 s91, {DB}, 6")
        A("s_lshl1_add_u32 s3, s91, s3")
        A(f"s_and_b32 s91, {DB}, 1")
        A("s_add_u32 s3, s3, s91")
        A("s_lshl_b32 s3, s3, 7")
    else:
        A(f"s_lshl2_add_u32 s3, {W}, 112")
    A("v_mov_b32 v13, s3")
    A(f"v_cmp_gt_u32 vcc, {8 if pull2 else 32}, v1")
    A("s_nop 1")
    A("v_cndmask_b32 v12, v13, v12, vcc")
    if pull2:
        A("s_mov_b64 exec, 0x1ff")
    p3_poll("p3y")
    if pull2:
        A("s_mov_b64 exec, -1")
    for j in range(4):
        for e in range(2):
            A(f"buffer_load_dwordx4 {v(AC3+32+(j*2+e)*4,4)}, v14, s[{SWS}:{SWS+3}], s90 offen offset:{e*1024}")
        if j < 3:
            A(f"s_add_u32 s90, s90, {ynb*1024}")
    G(10)
    A("s_cmp_eq_u32 vcc_lo, 0")
    A(f"s_cbranch_scc1 {N}_p3lw")
    if pull2:
        A("s_mov_b64 exec, 0xff")
    p3_poll("p3l")
    if pull2:
        A("s_mov_b64 exec, -1")
    G(6)
    if wbl == 2:
        A(f"s_and_b32 s3, {RANK}, 31")
        A(f"s_lshl2_add_u32 s3, s3, {W}")
        A("s_cmp_eq_u32 s3, 124")
        A(f"s_cbranch_scc0 {N}_nwb")
        A("buffer_wbl2 sc1")
        A.label(f"{N}_nwb")
    vm = Cnt(A, "vmcnt", 63)
    hl = [(k, p_, j) for k in range(7) for p_ in range(2) for j in range(2 if "q" in dbgm else 4)]
    NH = len(hl)
    def hload(i):
        k, p_, j = hl[i]
        A(f"buffer_load_dwordx4 {v(HFR[i%16],4)}, {'v14' if k < 4 else 'v15'}, s[{SWS}:{SWS+3}], s{48+4*p_+j} offen offset:{(k&3)*1024} {haux}")
        vm.op(i)
    for i in range(16):
        hload(i)
    for i in range(32):
        if i % 4 == 0:
            A(f"s_waitcnt vmcnt({16 + 7 - i//4})")
        A(f"v_lshlrev_b32 v{AC3+2*i}, 16, v{AC3+32+i}")
        A(f"v_and_b32 v{AC3+2*i+1}, 0xffff0000, v{AC3+32+i}")
    for i in range(NH):
        k, p_, j = hl[i]
        vm.need(i)
        if i == 0:
            G(7)
        for it in range(4):
            acc = AC3 + (j * 4 + it) * 4
            A(f"v_mfma_f32_16x16x32_{'f16' if hf16 else 'bf16'} {v(acc,4)}, {v(WOTR(it,k),4)}, {v(HFR[i%16],4)}, {v(acc,4)}")
        if i + 16 < NH:
            hload(i + 16)
    G(8)
    for it in range(1, 4):
        A(f"v_xor_b32 v{64+it}, {it*64}, v7")
    for j in range(4):
        if j == 3:
            A("s_nop 4")
        for it in range(4):
            acc = AC3 + (j * 4 + it) * 4
            A(f"ds_write_b128 v{64+it if it else 7}, {v(acc,4)} offset:{j*4096}")
    A.label(f"{N}_p3f")
    A("s_waitcnt vmcnt(0)")
    for d in range(4):
        A(f"v_lshlrev_b32 v{16+2*d}, 16, v{XR+d}")
        A(f"v_and_b32 v{16+2*d+1}, 0xffff0000, v{XR+d}")
    A("s_waitcnt lgkmcnt(0)")
    A("s_barrier")
    R = 24
    for w in range(4):
        for c in range(2):
            A(f"ds_read_b128 {v(R + (w*2+c)*4, 4)}, v{(2 if w < 2 else 4) + c} offset:{RBUF[w] - RBUF[0 if w < 2 else 2]}")
    for w in range(4):
        A(f"s_waitcnt lgkmcnt({6-2*w})")
        for d in range(4):
            A(f"v_pk_add_f32 {v(16+2*d,2)}, {v(16+2*d,2)}, {v(R+w*8+2*d,2)}")
    for d in range(4):
        A(f"v_cvt_pk_bf16_f32 v{12+d}, v{16+2*d}, v{16+2*d+1}")
    A(f"buffer_store_dwordx4 v[12:15], v6, s[{SO}:{SO+3}], s60 offen {oaux}")
    if p3n:
        del A.lines[_cut:]
    PE_()
    if gst:
        A("s_waitcnt vmcnt(0)")
        G(9)
        if amp:
            wg, wv, k1, k2 = amp
            A("s_waitcnt lgkmcnt(0)")
            A(f"s_cmp_eq_u32 s2, {wg}")
            A(f"s_cbranch_scc0 {L_exit}")
            A(f"s_cmp_eq_u32 s19, {wv}")
            A(f"s_cbranch_scc0 {L_exit}")
            A(f"s_sub_u32 s90, s{SREG[k2]}, s{SREG[k1]}")
            A("s_lshl_b32 s90, s90, 4")
            A("s_min_u32 s90, s90, 4000000")
            A("s_memtime s[92:93]")
            A("s_waitcnt lgkmcnt(0)")
            A("s_mov_b32 s91, s92")
            A.label(f"{N}_amp")
            A("s_sleep 4")
            A("s_memtime s[92:93]")
            A("s_waitcnt lgkmcnt(0)")
            A("s_sub_u32 s3, s92, s91")
            A("s_cmp_lt_u32 s3, s90")
            A(f"s_cbranch_scc1 {N}_amp")
        else:
            st2_flush(A, range(1, 13), "s19", SWS)
    A.label(L_exit)
    A("s_endpgm")
    A.label(f"{N}_end")
    return dict(name=name, vgpr=256, sgpr=102, grid=256, block=512, lds=LDS_TOTAL, pf=pf)
```

```python
from mk_m import *
MB = 1 << 20
KB = 1024
P = (4,5,0,1,6,7,2,3)
E = dict(D, stamp=2, rot2=(4,8,1,1), rot1="x4", xaux="", waux="", saux="", z1cp=1, ipf=1, ipf2=(1,5,9,13), ipf2b="lgo", pl_at=(3,), oaux="sc1", gmap=4, z1s=(1,3,5,7,9,11,12,13), psleep3=(16,16), f2s=7, relx=1, p3perm=P, spq=1, uni=1)
F = dict(E, pull1=1, pull2=1)
X = dict(F, ey=3, eyt=(8,0))
Z = dict(X, p3n=5, hf16=1, p3t=5, wtch=14, csl=8, pe=1, peb=36)
Z = dict(Z, pe=0)
ZL = (6,7,8,9,10,11,12,13)
R4 = dict(Z, rot2=(4,4,1,1))
G3 = (0x0303, [(0, 2, 0xf0f0f), (4, 6, 0x3f3f), (8, 10, 0xffff)])
Z2 = dict(Z, pe=1, peb=36)
GB = (0xf0f0f, [(4, 6, 0xfffff)])
LY = dict(hnb=56, hps=28*KB, ynb=64, yps=16*KB)
Z3 = dict(Z2, g2p=GB, **LY)
GE = (0x0f0f, [(0, 1, 0xf0000), (4, 6, 0xffff)])
GD = (0, [(1, 2, 0xf0f0f), (4, 6, 0xffff)])
Z4 = dict(Z3, g2p=GD, z1s=(2,3,5,7,9,11,12,13))
V = dict(
 a=dict(Z4),
 b=dict(Z4, psleep=1),
 c=dict(Z4, psleep=0),
 d=dict(Z4, psleep=1, csl=4),
)
run(V)
```
